```python
import torch

def _softmax(x, axis=-1):
    return torch.softmax(x, dim=axis)

def _gelu(x):
    return torch.nn.functional.gelu(x, approximate='tanh')

def _silu(x):
    return torch.nn.functional.silu(x)

def _sigmoid(x):
    return torch.sigmoid(x)

def _layernorm(x, axis=-1, eps=1e-05):
    m = x.mean(dim=axis, keepdim=True)
    v = x.var(dim=axis, keepdim=True, unbiased=False)
    return (x - m) / torch.sqrt(v + eps)

def _scatter_add(tgt, idx, src, axis=0):
    return tgt.clone().index_add_(axis, idx, src)

def _segment_sum(src, seg, n):
    out = torch.zeros((n,) + src.shape[1:], dtype=src.dtype)
    return out.index_add_(0, seg, src)

def _pad(x, pw):
    flat = tuple((v for pair in reversed(pw) for v in pair))
    return torch.nn.functional.pad(x, flat)
kernel_name = 'adaLN_cond__mha_block_cached__geglu_ffn__decode'

def setup_inputs():

    _w = lambda a: (lambda t: t.to(torch.bfloat16) if t.is_floating_point() else t)(torch.as_tensor(a))

    def _A_setup():
        B, Sq, D = (4, 1, 512)
        H, Sk, Dh = (32, 8192, 128)
        return {'x': _w((lambda *s: torch.randn(*s, dtype=torch.bfloat16) * 0.05)(B, Sq, D)), 'k_cache': _w((lambda *s: torch.randn(*s, dtype=torch.bfloat16) * 3.2)(B, H, Sk, Dh)), 'v_cache': _w((lambda *s: torch.randn(*s, dtype=torch.bfloat16) * 0.4)(B, H, Sk, Dh)), 'wq': _w((lambda *s: torch.randn(*s, dtype=torch.bfloat16) * 3.2)(D, H * Dh) * D ** (-0.5)), 'wo': _w((lambda *s: torch.randn(*s, dtype=torch.bfloat16) * 0.4)(H * Dh, D) * (H * Dh) ** (-0.5))}
    _A_in = _A_setup()

    def _B_setup():
        B, S, D, F = (4, 1, 512, 1792)
        return {'x': _w((lambda *s: torch.randn(*s, dtype=torch.bfloat16) * 0.05)(B, S, D)), 'w_gate': _w((lambda *s: torch.randn(*s, dtype=torch.bfloat16) * 0.05)(D, F)), 'w_up': _w((lambda *s: torch.randn(*s, dtype=torch.bfloat16) * 0.05)(D, F)), 'w_down': _w((lambda *s: torch.randn(*s, dtype=torch.bfloat16) * 0.05)(F, D))}
    _B_in = _B_setup()
    return {'A_x': _A_in['x'], 'A_k_cache': _A_in['k_cache'], 'A_v_cache': _A_in['v_cache'], 'A_wq': _A_in['wq'], 'A_wo': _A_in['wo'], 'B_x': _B_in['x'], 'B_w_gate': _B_in['w_gate'], 'B_w_up': _B_in['w_up'], 'B_w_down': _B_in['w_down'], 'c': _w((lambda *s: torch.randn(*s, dtype=torch.bfloat16) * 0.1)(4, 512) * 8.0), 'w_mod': _w((lambda *s: torch.randn(*s, dtype=torch.bfloat16) * 0.1)(512, 6 * 512) * 512 ** (-0.5) * 8.0)}

def reference(A_x, A_k_cache, A_v_cache, A_wq, A_wo, B_x, B_w_gate, B_w_up, B_w_down, c, w_mod):

    def _A_ref(x, k_cache, v_cache, wq, wo):
        B, Sq, D = x.shape
        H, Dh = (32, 128)
        q = (lambda x, *d: x.permute(*d))((x @ wq).reshape(B, Sq, H, Dh), 0, 2, 1, 3)
        scores = torch.einsum('bhqd,bhkd->bhqk', q, k_cache) * Dh ** (-0.5)
        p = _softmax(scores, axis=-1)
        o = torch.einsum('bhqk,bhkd->bhqd', p, v_cache)
        return (lambda x, *d: x.permute(*d))(o, 0, 2, 1, 3).reshape(B, Sq, H * Dh) @ wo

    def _B_ref(x, w_gate, w_up, w_down):
        return _gelu(x @ w_gate) * (x @ w_up) @ w_down
    x = A_x
    mod = (_silu(c) @ w_mod).reshape(c.shape[0], 6, 1, -1)
    sa, ca, ga, sb, cb, gb = (mod[:, 0].clone(), mod[:, 1].clone(), mod[:, 2].clone(), mod[:, 3].clone(), mod[:, 4].clone(), mod[:, 5].clone())
    h = _layernorm(x, axis=-1) * (1 + ca) + sa
    x = x + ga * _A_ref(h, A_k_cache, A_v_cache, A_wq, A_wo)
    h = _layernorm(x, axis=-1) * (1 + cb) + sb
    x = x + gb * _B_ref(h, B_w_gate, B_w_up, B_w_down)
    return x
```

```python
import re

TRANS = ("v_exp_f32", "v_log_f32", "v_rcp_f32", "v_rsq_f32", "v_sqrt_f32", "v_sin_f32", "v_cos_f32", "v_rcp_iflag_f32")

def regs_of(tok):
    tok = tok.strip()
    neg = tok.lstrip("-")
    m = re.fullmatch(r"abs\((.*)\)", neg)
    if m: neg = m.group(1)
    m = re.fullmatch(r"\|(.*)\|", neg)
    if m: neg = m.group(1)
    tok = neg
    m = re.fullmatch(r"([vsa])(\d+)", tok)
    if m: return {(m.group(1), int(m.group(2)))}
    m = re.fullmatch(r"([vsa])\[(\d+):(\d+)\]", tok)
    if m: return {(m.group(1), i) for i in range(int(m.group(2)), int(m.group(3)) + 1)}
    if tok in ("vcc", "vcc_lo", "vcc_hi"): return {("x", "vcc")}
    if tok in ("exec", "exec_lo", "exec_hi"): return {("x", "exec")}
    if tok == "m0": return {("x", "m0")}
    return set()

class Ins:
    def __init__(self, text):
        self.text = text
        t = text.split(";")[0].strip()
        self.label = t[:-1] if t.endswith(":") else None
        self.op = None; self.dst = set(); self.src = set(); self.kind = "other"
        self.dpp = False; self.target = None; self.states = 1; self.srcC = set(); self.srcAB = set(); self.passes = 0
        self.wide_data = set(); self.ldsdma = False
        if self.label or not t or t.startswith("."):
            self.states = 0; self.kind = "none"; return
        parts = t.split(None, 1)
        op = parts[0]; self.op = op
        rest = parts[1] if len(parts) > 1 else ""
        ops = []; depth = 0; cur = ""
        for ch in rest:
            if ch in "[(": depth += 1
            if ch in "])": depth -= 1
            if ch == "," and depth == 0: ops.append(cur.strip()); cur = ""
            else: cur += ch
        if cur.strip(): ops.append(cur.strip())
        mods = ""
        if ops:
            last = ops[-1].split(None, 1)
            ops[-1] = last[0]; mods = last[1] if len(last) > 1 else ""
        self.ops = ops; self.mods = mods
        R = [regs_of(o) for o in ops]
        U = lambda l: set().union(*l) if l else set()
        base = re.sub(r"_(e32|e64|dpp|sdwa)$", "", op)
        self.base = base
        if op == "s_nop":
            self.states = int(ops[0], 0) + 1; self.kind = "salu"
        elif op.startswith("s_cbranch") or op == "s_branch":
            self.kind = "branch"; self.target = ops[0]
        elif op.startswith(("s_load", "s_buffer_load", "s_memtime", "s_memrealtime", "s_atomic")):
            self.kind = "smem"; self.dst = R[0]; self.src = U(R[1:])
        elif op.startswith("s_"):
            self.kind = "salu"
            if op.startswith(("s_cmp", "s_bitcmp", "s_waitcnt", "s_barrier", "s_sleep", "s_setprio", "s_endpgm", "s_setreg")):
                self.src = U(R)
            else:
                self.dst = R[0]; self.src = U(R[1:])
                if "saveexec" in op: self.dst |= {("x", "exec")}
        elif op.startswith("v_mfma"):
            self.kind = "mfma"; self.dst = R[0]; self.srcAB = R[1] | R[2]; self.srcC = R[3]; self.src = self.srcAB | self.srcC
            self.passes = 8 if "32x32x16" in op else 4
            assert "16x16x32_bf16" in op or "32x32x16_bf16" in op, op
        elif op.startswith("v_"):
            self.kind = "valu"
            self.dpp = "_dpp" in op or "row_" in mods or "quad_perm" in mods
            if base.startswith("v_cmp"):
                self.dst = R[0]; self.src = U(R[1:])
                assert not base.startswith("v_cmpx")
            elif base.startswith("v_permlane"):
                self.dst = R[0] | R[1]; self.src = R[0] | R[1]
            elif base in ("v_add_co_u32", "v_sub_co_u32", "v_addc_co_u32", "v_subb_co_u32"):
                self.dst = R[0] | R[1]; self.src = U(R[2:])
            else:
                self.dst = R[0]; self.src = U(R[1:])
                if base in ("v_fmac_f32", "v_dot2c_f32_bf16", "v_writelane_b32"): self.src |= R[0]
            self.dppsrc = R[1] if self.dpp else set()
        elif op in ("buffer_wbl2", "buffer_inv"):
            self.kind = "vmem"
        elif op.startswith(("buffer_", "global_", "flat_")):
            self.kind = "vmem"
            lds = " lds" in (" " + mods) or "_lds_" in op
            self.ldsdma = lds
            if "load" in op and not lds:
                self.dst = R[0]; self.src = U(R[1:])
            elif "atomic" in op and "sc0" in mods and op.startswith("global"):
                self.dst = R[0]; self.src = U(R[1:])
            else:
                self.src = U(R)
                if "store" in op and ("x4" in op or "x3" in op):
                    self.wide_data = R[0] if op.startswith("buffer_") else R[1]
        elif op.startswith("ds_"):
            self.kind = "ds"
            if "read" in op or "rtn" in op or "permute" in op or "swizzle" in op:
                self.dst = R[0]; self.src = U(R[1:])
            else:
                self.src = U(R)
        else:
            raise ValueError("unknown op " + text)

def need(p, c):
    n = 0
    V = lambda s: {r for r in s if r[0] in "va"}
    S = lambda s: {r for r in s if r[0] == "s" or r == ("x", "vcc")}
    if p.kind == "valu":
        pv = V(p.dst); ps = S(p.dst)
        if c.kind == "mfma" and pv & c.src: n = max(n, 2)
        if c.kind == "valu":
            if c.dpp and pv & (c.src | c.dst): n = max(n, 2)
            if c.base.startswith("v_permlane") and pv & c.src: n = max(n, 2)
            if c.base in ("v_readlane_b32", "v_readfirstlane_b32") and pv & c.src: n = max(n, 1)
            if ps & c.src:
                n = max(n, 4 if c.base in ("v_readlane_b32", "v_writelane_b32") else 2)
            if p.base in TRANS and pv & c.src: n = max(n, 1)
            if c.base == "v_div_fmas_f32" and ("x", "vcc") in p.dst: n = max(n, 4)
        if c.kind == "vmem" and ps & c.src: n = max(n, 5)
        if c.kind in ("salu", "smem", "branch") and ps & c.src: n = max(n, 1)
    if p.kind == "mfma":
        big = 8 if p.passes == 4 else 12
        if c.kind == "mfma":
            if p.dst & c.srcAB: n = max(n, big)
            if p.dst & c.srcC and not (p.dst == c.srcC and p.passes == c.passes): n = max(n, big - 2)
            if p.dst & c.dst and not (p.dst == c.srcC and p.passes == c.passes): n = max(n, big)
        elif c.kind in ("valu", "vmem", "ds"):
            if p.dst & (c.src | c.dst): n = max(n, big)
            if c.kind == "valu" and p.srcC & c.dst: n = max(n, 3 if p.passes == 4 else 7)
    if p.kind == "salu" and ("x", "m0") in p.dst and c.kind == "vmem" and c.ldsdma: n = max(n, 1)
    if p.kind == "vmem" and p.wide_data and p.wide_data & c.dst:
        n = max(n, 2)
    return n

class Asm:
    def __init__(self):
        self.lines = []
        self.uid = 0
    def __call__(self, s):
        for l in s.split("\n"):
            l = l.strip()
            if l: self.lines.append(l)
    def label(self, base="L"):
        self.uid += 1
        return f"{base}_{self.uid}"
    def finalize(self):
        ins = [Ins(l) for l in self.lines]
        MAXD = 13
        i = 0
        nops = 0
        while i < len(ins):
            c = ins[i]
            if c.kind in ("none",):
                i += 1; continue
            br = {}
            req = 0
            stack = [(i, 0)]; seen = {}
            while stack:
                j, d = stack.pop()
                k = j - 1
                while k >= 0:
                    p = ins[k]
                    if p.label:
                        for bi, b in enumerate(ins):
                            if b.kind == "branch" and b.target == p.label:
                                if seen.get(bi, 99) > d:
                                    seen[bi] = d
                                    stack.append((bi, d + 1))
                        k -= 1; continue
                    if p.kind == "none":
                        k -= 1; continue
                    if p.op in ("s_branch", "s_endpgm"): break
                    r = need(p, c) - d
                    if r > req: req = r
                    d += p.states
                    if d >= MAXD: break
                    k -= 1
            if req > 0:
                ins.insert(i, Ins(f"s_nop {req-1}")); nops += 1
                i += 1
            i += 1
        return "\n".join(("" if x.label else "    ") + x.text for x in ins) + "\n", nops
```

```python
import sys
from asmlib import Asm

KN = "adaLN_cond__mha_block_cached__geglu_ffn__decode_kernel"

WS_H   = 0x0000
WS_Q   = 0x8000
WS_MOD = 0x10000
WS_ML  = 0x18000
WS_X1  = 0x1C000
WS_ACT = 0x24000
WS_Y   = 0x40000
WS_ST  = 0x800000
L_CNT  = 0x0000
L_N    = 0x0100
L_QB   = 0x0400
L_PM   = 0x0800
L_PQ   = 0x1800
L_OP   = 0x2800
L_OB   = 0x3800
L_H2   = 0x4000
L_SC   = 0x5000
L_SA   = 0x9000
L_SB   = 0xD000
L_SF   = 0x11000
LDS_SIZE = 0x11000 + 56 * 1024

LOG2E = 0x3fb8aa3b
SCALE = 0x3db504f3

pX, pK, pV, pWQ, pWO, pBX, pWG, pWU, pWD, pC, pWM, pOUT, pDBG, pWS = [f"s[{16+2*i}:{17+2*i}]" for i in range(14)]
def lo(p): return "s" + p[2:p.index(":")]
def hi(p): return "s" + p[p.index(":")+1:-1]
SRDC, SRDN = "s[44:47]", "s[48:51]"
sTC, sTN, sOF, sLC = "s52", "s53", "s54", "s55"
sB, sH, sSide, sPair, sTO, sW = "s56", "s57", "s58", "s59", "s60", "s61"
sM1, sM2, sM3 = "s[62:63]", "s[64:65]", "s[66:67]"
sXc, sXr = "s68", "s69"

def vr(b, n=4): return f"v[{b}:{b+n-1}]"

def gen(D=5, Df=6, G=1, stamps=False, wpol="nt", hrep=8, xrep=8, TO=1 << 17):
    a = Asm()
    nst = [0]
    def stamp(k):
        if stamps: a(f"s_memrealtime s[{70+2*k}:{71+2*k}]")
    def stamps_out(ks):
        if not stamps: return
        a("s_waitcnt lgkmcnt(0)")
        a("s_mov_b64 exec, 1")
        a("s_lshl_b32 s4, s2, 3\ns_add_u32 s4, s4, s3\ns_lshl_b32 s4, s4, 6")
        a(f"s_add_u32 s4, s4, {WS_ST}\nv_mov_b32 v1, s4")
        for k in ks:
            a(f"v_mov_b32 v2, s{70+2*k}\nglobal_store_dword v1, v2, {pWS} offset:{4*k}")
    def exec_set(lo_, hi_):
        a(f"s_mov_b32 exec_lo, {hex(lo_)}\ns_mov_b32 exec_hi, {hex(hi_)}")
    def exec_all(): a("s_mov_b64 exec, -1")
    def poll(loads, regs, tmp, sleep=0):
        L, Dn = a.label("Lpoll"), a.label("Lpdone")
        a(f"s_mov_b32 {sTO}, {TO}")
        a(f"{L}:")
        for l in loads: a(l)
        a("s_waitcnt vmcnt(0)")
        r = list(regs)
        if len(r) == 1: t = r[0]
        else:
            t = tmp
            if len(r) % 2 == 0:
                a(f"v_max_u32 {t}, {r[0]}, {r[1]}"); r = r[2:]
            else:
                a(f"v_max3_u32 {t}, {r[0]}, {r[1]}, {r[2]}"); r = r[3:]
            while r:
                a(f"v_max3_u32 {t}, {t}, {r[0]}, {r[1]}"); r = r[2:]
        a(f"v_cmp_eq_u32 vcc, -1, {t}")
        a("s_cmp_eq_u64 vcc, 0")
        a(f"s_cbranch_scc1 {Dn}")
        a(f"s_sub_u32 {sTO}, {sTO}, 1")
        a(f"s_cbranch_scc1 {Dn}")
        if sleep: a(f"s_sleep {sleep}")
        a(f"s_branch {L}")
        a(f"{Dn}:")
    def wave_reduce(op, regs, tmps):
        for sh in (8, 4, 2, 1):
            for r in regs: a(f"{op}_dpp {r}, {r}, {r} row_ror:{sh} row_mask:0xf bank_mask:0xf")
        for pl in ("v_permlane16_swap_b32", "v_permlane32_swap_b32"):
            for r, t in zip(regs, tmps): a(f"v_mov_b32 {t}, {r}")
            for r, t in zip(regs, tmps): a(f"{pl} {r}, {t}")
            for r, t in zip(regs, tmps): a(f"{op} {r}, {r}, {t}")
    def rnd2(x0, x1, t):
        a(f"v_cvt_pk_bf16_f32 {t}, {x0}, {x1}\nv_lshlrev_b32 {x0}, 16, {t}\nv_and_b32 {x1}, 0xffff0000, {t}")
    def unpack(dst, src, n):
        for i in range(n):
            a(f"v_lshlrev_b32 v{dst+2*i}, 16, v{src+i}\nv_and_b32 v{dst+2*i+1}, 0xffff0000, v{src+i}")

    a(f"; @launch grid=(256,1,1) block=(512,1,1) lds={LDS_SIZE}")
    a('.amdgcn_target "amdgcn-amd-amdhsa--gfx950"')
    a(f".text\n.globl {KN}\n.p2align 8\n.type {KN},@function\n{KN}:")
    a("s_cmp_ge_u32 s2, 256\ns_cbranch_scc1 L_end")
    a("s_load_dwordx16 s[16:31], s[0:1], 0\ns_load_dwordx8 s[32:39], s[0:1], 64\ns_load_dwordx4 s[40:43], s[0:1], 96")
    a("v_lshrrev_b32 v1, 6, v0\nv_and_b32 v0, 63, v0\nv_readfirstlane_b32 s3, v1")
    a(f"s_lshr_b32 {sB}, s2, 6\ns_bfe_u32 {sH}, s2, 0x50001\ns_and_b32 {sSide}, s2, 1\ns_lshr_b32 {sPair}, s2, 1")
    a(f"s_and_b32 {sXc}, s2, 7\ns_lshr_b32 {sXr}, s2, 3\ns_and_b32 {sW}, s3, 3")
    a("s_cmp_ge_u32 s3, 4\ns_cbranch_scc1 L_helper")

    vK, vV, vCur, vNxt, vSp, vM, vL, vS, vP, vNM = "v1", "v2", "v3", "v4", "v5", "v6", "v7", "v8", "v9", "v10"
    T0 = 12
    BQ = 20
    DD = 36
    RING = 64; X0 = 128; X1 = 192
    a(f"v_and_b32 v12, 15, v0\nv_lshrrev_b32 v13, 4, v0")
    a(f"v_lshlrev_b32 {vK}, 6, v12\nv_lshl_add_u32 {vK}, v13, 4, {vK}")
    a(f"v_lshlrev_b32 {vV}, 4, v0")
    a(f"s_mul_i32 s4, s3, {G*1024}")
    a(f"v_add_u32 {vK}, s4, {vK}\nv_add_u32 {vV}, s4, {vV}")
    a(f"s_lshl_b32 s5, s2, 20")
    a("s_waitcnt lgkmcnt(0)")
    stamp(0)
    a(f"s_add_u32 s44, {lo(pK)}, s5\ns_addc_u32 s45, {hi(pK)}, 0\ns_mov_b32 s46, 0x100000\ns_mov_b32 s47, 0x20000")
    def issue(p, slot, va, srd, st):
        if G == 1: so, imm = p * 4096, 0
        elif G == 4: so, imm = (p >> 2) * 16384, (p & 3) * 1024
        else: so, imm = (p >> 2) * 4096, (p & 3) * 1024
        if isinstance(st, int): a(f"s_mov_b32 {sOF}, {st+so}")
        else: a(f"s_add_u32 {sOF}, {st}, {so}")
        a(f"buffer_load_dwordx4 {vr(slot)}, {va}, {srd}, {sOF} offen offset:{imm} nt")
    fill = [(t, p, base + 4 * p) for t, base in ((0, X0), (1, X1), (2, RING)) for p in range(16)]
    for idx, (t, p, slot) in enumerate(fill):
        if idx == Df:
            a(f"s_mov_b32 s48, s44\ns_mov_b32 s49, s45\ns_mov_b32 s50, 0x100000\ns_mov_b32 s51, 0x20000")
            a(f"s_mov_b32 s62, 0x22222222\ns_mov_b32 s63, 0x22222222\ns_mov_b32 s64, 0x44444444\ns_mov_b32 s65, 0x44444444")
            a(f"s_mov_b32 s66, 0x88888888\ns_mov_b32 s67, 0x88888888")
            a(f"s_lshl_b32 s4, s3, 12\ns_add_u32 s4, s4, {L_SC}\nv_lshl_add_u32 {vSp}, v0, 2, s4")
            a(f"v_mov_b32 {vM}, 0xff7fffff\nv_mov_b32 {vL}, 0")
            a(f"v_mov_b32 {vCur}, {vK}\nv_mov_b32 {vNxt}, {vK}")
            a("s_barrier")
        if idx >= Df: a(f"s_waitcnt vmcnt({Df-1})")
        issue(p, slot, vK, SRDC, t * 65536)
    stamp(1)
    a(f"v_mov_b32 v12, {L_CNT}")
    a("L_waitq:\nds_read_b32 v13, v12 offset:8\ns_waitcnt lgkmcnt(0)\nv_readfirstlane_b32 s4, v13\ns_cmp_lg_u32 s4, 0\ns_cbranch_scc1 L_gotq\ns_sleep 1\ns_branch L_waitq\nL_gotq:")
    stamp(2)
    a(f"v_lshlrev_b32 v12, 4, v0\nds_read_b128 v[16:19], v12 offset:{L_QB}")
    a("v_bfe_u32 v13, v0, 2, 2")
    a("s_waitcnt lgkmcnt(0)")
    for t in range(4):
        a(f"v_cmp_eq_u32 vcc, {t}, v13")
        for r in range(4): a(f"v_cndmask_b32 v{BQ+4*t+r}, 0, v{16+r}, vcc")
    def k_step(n, slot):
        u, t = n >> 2, n & 3
        d = vr(DD + 4 * u)
        a(f"v_mfma_f32_16x16x32_bf16 {d}, {vr(slot)}, {vr(BQ+4*t)}, {'0' if t == 0 else d}")
    def k_group(u):
        T = T0 + u
        o = [(u + i) & 3 for i in (1, 2, 3)]
        a(f"v_add_f32_dpp v{T}, v{DD+4*u+o[0]}, v{DD+4*u+u} quad_perm:[{o[0]},{o[0]},{o[0]},{o[0]}] row_mask:0xf bank_mask:0xf")
        for x in o[1:]:
            a(f"v_add_f32_dpp v{T}, v{DD+4*u+x}, v{T} quad_perm:[{x},{x},{x},{x}] row_mask:0xf bank_mask:0xf")
    def k_finish(off):
        a(f"v_cndmask_b32 v12, v12, v13, {sM1}\nv_cndmask_b32 v12, v12, v14, {sM2}\nv_cndmask_b32 v12, v12, v15, {sM3}")
        a(f"v_cvt_pk_bf16_f32 v12, v12, v12\nv_and_b32 v12, 0xffff0000, v12\nv_mul_f32 v12, {hex(SCALE)}, v12")
        a(f"v_cvt_pk_bf16_f32 v12, v12, v12\nv_and_b32 v12, 0xffff0000, v12")
        a(f"ds_write_b32 {vSp}, v12 offset:{off}")
        a(f"v_max_f32 v13, {vM}, v12\nv_sub_f32 v14, {vM}, v13\nv_sub_f32 v15, v12, v13")
        a(f"v_mul_f32 v14, {hex(LOG2E)}, v14\nv_mul_f32 v15, {hex(LOG2E)}, v15\nv_exp_f32 v14, v14\nv_exp_f32 v15, v15")
        a(f"v_mov_b32 {vM}, v13\nv_fma_f32 {vL}, {vL}, v14, v15")
    def k_tile(base, off, pre=None, post=None):
        for n in range(16):
            if pre: pre(n)
            k_step(n, base + 4 * n)
            if post: post(n)
            if n & 3 == 0 and n: k_group((n >> 2) - 1)
        k_group(3)
        k_finish(off)
    k_tile(RING, 2 * 256, pre=lambda n: a("s_waitcnt vmcnt(15)"), post=lambda n: issue(n, RING + 4 * n, vK, SRDC, 3 * 65536))
    k_tile(X0, 0)
    k_tile(X1, 256)
    def preB(n):
        if n + D >= 16:
            issue(n + D - 16, RING + 4 * (n + D - 16), vK, SRDC, 4 * 65536); a(f"s_waitcnt vmcnt({D})")
        else: a(f"s_waitcnt vmcnt({15-n})")
    k_tile(RING, 3 * 256, pre=preB)
    stamp(3)
    a(f"s_mov_b32 {sTC}, {4*65536}\ns_mov_b32 {sTN}, {5*65536}\nv_add_u32 {vSp}, {4*256}, {vSp}")
    a(f"s_lshl_b32 s5, {sPair}, 21\ns_add_u32 s6, {lo(pV)}, s5\ns_addc_u32 s7, {hi(pV)}, 0\ns_lshl_b32 s8, {sSide}, 20")
    def pre_steady(n):
        p = n + D
        if p < 16: issue(p, RING + 4 * p, vCur, SRDC, sTC)
        else: issue(p - 16, RING + 4 * (p - 16), vNxt, SRDN, sTN)
    a("L_kloop:")
    a(f"s_cmp_lg_u32 {sTN}, {16*65536}\ns_cbranch_scc1 L_knosw")
    a(f"s_mov_b32 s48, s6\ns_mov_b32 s49, s7\ns_mov_b32 s50, 0x200000\ns_mov_b32 {sTN}, s8\nv_mov_b32 {vNxt}, {vV}")
    a("L_knosw:")
    k_tile(RING, 0, pre=lambda n: (pre_steady(n), a(f"s_waitcnt vmcnt({D})")))
    a(f"v_add_u32 {vSp}, 256, {vSp}")
    a(f"s_add_u32 {sTC}, {sTC}, 65536\ns_add_u32 {sTN}, {sTN}, 65536")
    a(f"s_cmp_lg_u32 {sTC}, {16*65536}\ns_cbranch_scc1 L_kloop")
    stamp(4)
    a(f"s_mov_b32 s44, s6\ns_mov_b32 s45, s7\ns_mov_b32 s46, 0x200000\ns_mov_b32 {sTC}, s8")
    a(f"v_subrev_u32 {vSp}, {16*256}, {vSp}")
    a(f"ds_read_b32 {vS}, {vSp}")
    a(f"v_mov_b32 v12, {vM}")
    wave_reduce("v_max_f32", ["v12"], ["v13"])
    a(f"v_sub_f32 v14, {vM}, v12\nv_mul_f32 v14, {hex(LOG2E)}, v14\nv_exp_f32 v14, v14\nv_mul_f32 v13, {vL}, v14")
    wave_reduce("v_add_f32", ["v13"], ["v14"])
    a(f"v_mul_f32 {vNM}, {hex(LOG2E | 0x80000000)}, v12")
    a("v_min_u32 v12, -2, v12\nv_min_u32 v13, -2, v13")
    a(f"s_lshl_b32 s4, {sPair}, 7\ns_lshl_b32 s5, {sSide}, 5\ns_add_u32 s4, s4, s5\ns_lshl_b32 s5, s3, 3\ns_add_u32 s4, s4, s5\ns_add_u32 s4, s4, {WS_ML}")
    a("v_mov_b32 v14, s4\ns_mov_b64 exec, 1")
    a(f"global_store_dwordx2 v14, v[12:13], {pWS} sc1")
    exec_all()
    ACC, AS, MK = DD, DD + 4, DD + 12
    a("v_and_b32 v12, 1, v0\nv_lshlrev_b32 v12, 4, v12\nv_mov_b32 v13, 0xffff\nv_lshlrev_b32 v12, v12, v13\nv_bfe_u32 v13, v0, 1, 3")
    for r in range(4):
        a(f"v_cmp_eq_u32 vcc, {r}, v13\nv_cndmask_b32 v{MK+r}, 0, v12, vcc\nv_mov_b32 v{ACC+r}, 0")
    a(f"s_mov_b32 s9, {hex(LOG2E)}\ns_mov_b32 {sLC}, 16")
    a("L_vloop:")
    a(f"s_cmp_eq_u32 {sLC}, 1\ns_cselect_b32 {sTN}, 0x40000000, {sTN}")
    a("s_waitcnt lgkmcnt(0)")
    a(f"v_fma_f32 {vP}, {vS}, s9, {vNM}\nv_exp_f32 {vP}, {vP}\nv_add_u32 {vSp}, 256, {vSp}\nv_cvt_pk_bf16_f32 {vP}, {vP}, {vP}")
    a(f"ds_read_b32 {vS}, {vSp}")
    for n in range(16):
        p = n + D
        if p < 16: issue(p, RING + 4 * p, vV, SRDC, sTC)
        else: issue(p - 16, RING + 4 * (p - 16), vV, SRDC, sTN)
        A = AS + 4 * (n & 1)
        for r in range(4):
            a(f"v_and_b32_dpp v{A+r}, {vP}, v{MK+r} row_newbcast:{4*(n&3)+(n>>2)} row_mask:0xf bank_mask:0xf")
        a(f"s_waitcnt vmcnt({D})")
        a(f"v_mfma_f32_16x16x32_bf16 {vr(ACC)}, {vr(A)}, {vr(RING+4*n)}, {vr(ACC)}")
    a(f"s_mov_b32 {sTC}, {sTN}\ns_add_u32 {sTN}, {sTN}, 65536")
    a(f"s_sub_u32 {sLC}, {sLC}, 1\ns_cmp_lg_u32 {sLC}, 0\ns_cbranch_scc1 L_vloop")
    stamp(5)
    a("v_and_b32 v12, 15, v0\nv_lshlrev_b32 v12, 5, v12\nv_bfe_u32 v13, v0, 4, 1\nv_lshl_add_u32 v12, v13, 4, v12")
    a("v_lshrrev_b32 v13, 5, v0\nv_lshl_add_u32 v12, v13, 9, v12\ns_lshl_b32 s4, s3, 10\nv_add_u32 v12, s4, v12")
    a(f"ds_write_b128 v12, {vr(ACC)} offset:{L_OP}")
    a("s_waitcnt vmcnt(0) lgkmcnt(0)\ns_barrier")
    a("s_cmp_ge_u32 s2, 224\ns_cbranch_scc1 L_down")
    a("s_cmp_eq_u32 s3, 1\ns_cbranch_scc1 L_ffn")
    a("s_cmp_lg_u32 s3, 0\ns_cbranch_scc1 L_fin_s")
    a("s_cmp_ge_u32 s2, 64\ns_cbranch_scc1 L_fin_s")
    a("v_and_b32 v12, 7, v0")
    a(f"s_lshl_b32 s4, s2, 7\ns_add_u32 s4, s4, {WS_MOD}\nv_lshl_add_u32 v13, v12, 4, s4")
    a(f"global_load_dwordx4 v[16:19], v13, {pWS} sc1")
    a(f"s_lshl_b32 s4, s2, 6\nv_lshl_add_u32 v13, v12, 3, s4")
    a(f"global_load_dwordx2 v[20:21], v13, {pX}")
    a(f"v_lshrrev_b32 v14, 3, v0\nv_lshl_add_u32 v13, v14, 12, v13\nv_add_u32 v13, {WS_X1}, v13")
    a(f"s_lshl_b32 s4, s2, 13\ns_add_u32 s4, s4, {WS_Y + 4096}\nv_lshl_add_u32 v14, v0, 4, s4")
    poll([f"global_load_dwordx4 {vr(64+4*i)}, v14, {pWS} offset:{i*1024-4096} sc1" for i in range(8)], [f"v{64+i}" for i in range(32)], "v15")
    stamp(6)
    for st in (16, 8, 4):
        for i in range(0, st, 2): a(f"v_pk_add_f32 v[{64+i}:{65+i}], v[{64+i}:{65+i}], v[{64+st+i}:{65+st+i}]")
    R4 = [f"v{64+i}" for i in range(4)]; T4 = [f"v{68+i}" for i in range(4)]
    for r in R4: a(f"v_add_f32_dpp {r}, {r}, {r} row_ror:8 row_mask:0xf bank_mask:0xf")
    for pl in ("v_permlane16_swap_b32", "v_permlane32_swap_b32"):
        for r, t in zip(R4, T4): a(f"v_mov_b32 {t}, {r}")
        for r, t in zip(R4, T4): a(f"{pl} {r}, {t}")
        for r, t in zip(R4, T4): a(f"v_add_f32 {r}, {r}, {t}")
    unpack(24, 20, 2)
    rnd2("v64", "v65", "v68"); rnd2("v66", "v67", "v69")
    for i in range(4): a(f"v_mul_f32 v{64+i}, v{16+i}, v{64+i}")
    rnd2("v64", "v65", "v68"); rnd2("v66", "v67", "v69")
    for i in range(4): a(f"v_add_f32 v{64+i}, v{24+i}, v{64+i}")
    a("v_cvt_pk_bf16_f32 v68, v64, v65\nv_cvt_pk_bf16_f32 v69, v66, v67\nv_min_u32 v68, -2, v68\nv_min_u32 v69, -2, v69")
    if xrep < 8:
        m = (1 << (8 * xrep)) - 1
        exec_set(m & 0xffffffff, m >> 32)
    a(f"global_store_dwordx2 v13, v[68:69], {pWS} sc1")
    stamp(7)
    a("L_fin_s:")
    stamps_out(range(8))
    a("s_endpgm")

    a("L_ffn:")
    a("v_and_b32 v12, 15, v0\nv_lshrrev_b32 v13, 4, v0\nv_lshlrev_b32 v14, 8, v13\nv_lshl_add_u32 v14, v12, 3, v14")
    a(f"v_add_u32 v14, {L_SF}, v14")
    for kb in range(16):
        a(f"ds_read_b64_tr_b16 v[{64+4*kb}:{65+4*kb}], v14 offset:{kb*1024}\nds_read_b64_tr_b16 v[{66+4*kb}:{67+4*kb}], v14 offset:{kb*1024+128}")
        if kb % 4 == 3: a("s_waitcnt lgkmcnt(0)")
    a("v_and_b32 v15, 3, v0\nv_lshlrev_b32 v15, 10, v15\nv_bfe_u32 v16, v0, 2, 2\nv_lshl_add_u32 v15, v16, 6, v15\nv_lshl_add_u32 v15, v13, 4, v15")
    a(f"s_mul_i32 s4, {sXc}, 28\ns_add_u32 s4, s4, {sXr}\ns_lshl_b32 s4, s4, 6\ns_add_u32 s4, s4, {WS_ACT}")
    a("v_and_b32 v16, 3, v0\nv_lshl_add_u32 v16, v16, 4, s4\nv_lshl_add_u32 v16, v13, 3, v16")
    a("s_barrier")
    for i in range(4): a(f"ds_read_b128 {vr(20+4*i)}, v15 offset:{L_H2+i*256}")
    for i in range(4):
        a(f"s_waitcnt lgkmcnt({3-i})")
        for k in range(4):
            d = vr(36 + 4 * k)
            a(f"v_mfma_f32_16x16x32_bf16 {d}, {vr(64+4*(4*i+k))}, {vr(20+4*i)}, {'0' if i == 0 else d}")
    for k in (1, 2, 3):
        for r in range(4): a(f"v_add_f32_dpp v{36+r}, v{36+4*k+r}, v{36+r} row_shl:{4*k} row_mask:0xf bank_mask:0xf")
    rnd2("v36", "v37", "v52"); rnd2("v38", "v39", "v53")
    for r in range(4): a(f"v_mov_b32 v{40+r}, v{36+r}")
    for r in range(4): a(f"v_permlane32_swap_b32 v{36+r}, v{40+r}")
    a("s_mov_b32 s5, 0x3d372713\ns_mov_b32 s6, 0xc0135761")
    for r in range(4): a(f"v_mul_f32 v{44+r}, v{36+r}, v{36+r}")
    for r in range(4): a(f"v_fma_f32 v{44+r}, v{44+r}, s5, 1.0")
    for r in range(4): a(f"v_mul_f32 v{44+r}, v{44+r}, v{36+r}")
    for r in range(4): a(f"v_mul_f32 v{44+r}, s6, v{44+r}")
    for r in range(4): a(f"v_exp_f32 v{44+r}, v{44+r}")
    for r in range(4): a(f"v_add_f32 v{44+r}, 1.0, v{44+r}")
    for r in range(4): a(f"v_rcp_f32 v{44+r}, v{44+r}")
    for r in range(4): a(f"v_mul_f32 v{36+r}, v{36+r}, v{44+r}")
    rnd2("v36", "v37", "v52"); rnd2("v38", "v39", "v53")
    for r in range(4): a(f"v_mul_f32 v{36+r}, v{36+r}, v{40+r}")
    a("v_cvt_pk_bf16_f32 v52, v36, v37\nv_cvt_pk_bf16_f32 v53, v38, v39\nv_min_u32 v52, -2, v52\nv_min_u32 v53, -2, v53")
    exec_set(0x000f000f, 0)
    a(f"global_store_dwordx2 v16, v[52:53], {pWS} sc1")
    stamp(6)
    stamps_out(range(7))
    a("s_endpgm")

    a("L_down:")
    a("v_and_b32 v12, 15, v0\nv_lshrrev_b32 v13, 4, v0\nv_lshlrev_b32 v14, 8, v13\nv_lshl_add_u32 v14, v12, 3, v14")
    a(f"s_mul_i32 s4, s3, {7*1024}\ns_add_u32 s4, s4, {L_SF}\nv_add_u32 v14, s4, v14")
    for kb in range(7):
        a(f"ds_read_b64_tr_b16 v[{64+4*kb}:{65+4*kb}], v14 offset:{kb*1024}\nds_read_b64_tr_b16 v[{66+4*kb}:{67+4*kb}], v14 offset:{kb*1024+128}")
    a(f"s_mul_i32 s4, s3, 7\nv_bfe_u32 v15, v0, 2, 2\nv_add_u32 v15, s4, v15\nv_add_u32 v16, 4, v15\nv_min_u32 v16, 55, v16")
    a(f"v_and_b32 v17, 3, v0\nv_lshlrev_b32 v18, 4, v17\nv_lshl_add_u32 v18, v13, 6, v18\nv_add_u32 v18, {WS_ACT}, v18")
    a("v_lshl_add_u32 v15, v15, 8, v18\nv_lshl_add_u32 v16, v16, 8, v18")
    a(f"s_lshl_b32 s5, {sXc}, 2\ns_add_u32 s5, s5, {sXr}\ns_sub_u32 s5, s5, 28")
    a("s_cmp_lg_u32 s3, 0\ns_cbranch_scc1 L_down2")
    a("s_lshl_b32 s6, s5, 5\nv_lshl_add_u32 v19, v17, 10, s6\nv_lshl_add_u32 v19, v13, 3, v19")
    a(f"v_lshlrev_b32 v56, 1, v19\nv_add_u32 v56, {WS_MOD + 3*8192}, v56")
    a(f"global_load_dwordx4 v[60:63], v56, {pWS} sc1")
    a(f"s_and_b32 s6, {sXc}, {xrep-1}\ns_lshl_b32 s6, s6, 12\ns_add_u32 s6, s6, {WS_X1}\nv_add_u32 v56, s6, v19")
    poll([f"global_load_dwordx2 v[58:59], v56, {pWS} sc1"], ["v58", "v59"], "v57")
    a("L_down2:")
    poll([f"global_load_dwordx4 v[20:23], v15, {pWS} sc1", f"global_load_dwordx4 v[24:27], v16, {pWS} sc1"], [f"v{20+i}" for i in range(8)], "v57")
    stamp(6)
    a("s_waitcnt lgkmcnt(0)")
    for kb in range(7):
        d = vr(36 + 4 * (kb & 3))
        a(f"v_mfma_f32_16x16x32_bf16 {d}, {vr(64+4*kb)}, {vr(20+4*(kb>>2))}, {'0' if kb < 4 else d}")
    for k in (3, 1, 2):
        for r in range(4): a(f"v_add_f32_dpp v{36+r}, v{36+4*k+r}, v{36+r} row_shl:{4*k} row_mask:0xf bank_mask:0xf")
    a(f"s_lshl_b32 s4, s3, 10\nv_lshl_add_u32 v12, v0, 4, s4\nds_write_b128 v12, v[36:39] offset:{L_PM}")
    a("s_waitcnt lgkmcnt(0)\ns_barrier")
    a("s_cmp_lg_u32 s3, 0\ns_cbranch_scc1 L_fin_d")
    for w in range(1, 8): a(f"ds_read_b128 {vr(64+4*w)}, v12 offset:{L_PM+w*1024}")
    unpack(28, 58, 2)
    a("s_waitcnt lgkmcnt(0)")
    for i in range(0, 4, 2): a(f"v_pk_add_f32 v[{64+i}:{65+i}], v[{36+i}:{37+i}], v[{68+i}:{69+i}]")
    for w in (2, 4, 6):
        for i in range(0, 4, 2): a(f"v_pk_add_f32 v[{64+4*w+i}:{65+4*w+i}], v[{64+4*w+i}:{65+4*w+i}], v[{68+4*w+i}:{69+4*w+i}]")
    for w in (0, 4):
        for i in range(0, 4, 2): a(f"v_pk_add_f32 v[{64+4*w+i}:{65+4*w+i}], v[{64+4*w+i}:{65+4*w+i}], v[{72+4*w+i}:{73+4*w+i}]")
    for i in range(0, 4, 2): a(f"v_pk_add_f32 v[{64+i}:{65+i}], v[{64+i}:{65+i}], v[{80+i}:{81+i}]")
    rnd2("v64", "v65", "v68"); rnd2("v66", "v67", "v69")
    for i in range(4): a(f"v_mul_f32 v{64+i}, v{60+i}, v{64+i}")
    rnd2("v64", "v65", "v68"); rnd2("v66", "v67", "v69")
    for i in range(4): a(f"v_add_f32 v{64+i}, v{28+i}, v{64+i}")
    a("v_cvt_pk_bf16_f32 v68, v64, v65\nv_cvt_pk_bf16_f32 v69, v66, v67")
    exec_set(0x000f000f, 0x000f000f)
    a(f"global_store_dwordx2 v19, v[68:69], {pOUT}")
    stamp(7)
    a("L_fin_d:")
    stamps_out(range(8))
    a("s_endpgm")

    a("L_helper:")
    vJ, vG, vRow, vHalf, vTR, vBoff, vSent = "v1", "v2", "v3", "v4", "v5", "v6", "v8"
    a(f"v_and_b32 {vJ}, 15, v0\nv_lshrrev_b32 {vG}, 4, v0\nv_lshrrev_b32 {vRow}, 1, v0\nv_and_b32 {vHalf}, 1, v0")
    a(f"s_lshl_b32 s4, {sW}, 7\nv_add_u32 {vRow}, s4, {vRow}")
    a(f"v_and_b32 v12, 3, v0\nv_lshlrev_b32 {vBoff}, 10, v12\nv_bfe_u32 v12, v0, 2, 2\nv_lshl_add_u32 {vBoff}, v12, 6, {vBoff}")
    a(f"v_lshl_add_u32 {vBoff}, {vG}, 4, {vBoff}\ns_lshl_b32 s4, {sW}, 8\nv_add_u32 {vBoff}, s4, {vBoff}")
    a(f"v_lshlrev_b32 {vTR}, 8, {vG}\nv_lshl_add_u32 {vTR}, {vJ}, 3, {vTR}\ns_lshl_b32 s10, {sW}, 12\nv_add_u32 {vTR}, s10, {vTR}")
    for i in range(4): a(f"v_mov_b32 v{8+i}, -1")
    a("s_waitcnt lgkmcnt(0)")
    stamp(0)
    def dma(n, voff, ptr, stride32, ldsbase_s, ldsoff, wait_every=0, addr64=False):
        for i in range(n):
            a(f"s_add_u32 m0, {ldsbase_s}, {ldsoff + i*1024}")
            if addr64:
                a(f"global_load_lds_dwordx4 v[{voff}:{voff+1}], off {wpol}")
                if i + 1 < n: a(f"v_add_co_u32 v{voff}, vcc, {stride32}, v{voff}\nv_addc_co_u32 v{voff+1}, vcc, 0, v{voff+1}, vcc")
            else:
                a(f"global_load_lds_dwordx4 v{voff}, {ptr} {wpol}")
                if i + 1 < n: a(f"v_add_u32 v{voff}, {stride32}, v{voff}")
            if wait_every and i % wait_every == wait_every - 1: a("s_waitcnt vmcnt(0)")
    a("s_cmp_eq_u32 s2, 255\ns_cbranch_scc1 L_clearer")
    a("s_cmp_ge_u32 s2, 192\ns_cbranch_scc1 L_nomod1")
    a(f"global_load_dwordx4 v[20:23], {vBoff}, {pC}")
    a(f"s_lshl_b32 s11, {sXc}, 3\ns_add_u32 s11, s11, {sXr}")
    a(f"s_lshl_b32 s12, {sXc}, 4\ns_add_u32 s12, s12, {sXr}\ns_sub_u32 s12, s12, 8")
    a("s_lshl_b32 s4, s11, 4\ns_lshl_b32 s5, s12, 5\ns_add_u32 s5, s5, 2048")
    a("s_cmp_lt_u32 s2, 64\ns_cselect_b32 s4, s4, s5\ns_cselect_b32 s5, 10, 4")
    a(f"v_mul_u32_u24 v12, 6144, {vRow}\nv_lshlrev_b32 v13, s5, {vHalf}\nv_add3_u32 v12, v12, v13, s4")
    dma(4, 12, pWM, 32 * 6144, "s10", L_SA)
    a(f"s_lshl_b32 s4, {sW}, 10\nv_lshl_add_u32 v13, v0, 4, s4")
    a(f"global_load_dwordx4 v[24:27], v13, {pX}")
    a("s_branch L_nomod1")
    a("L_clearer:")
    a(f"s_lshl_b32 s4, {sW}, 14\nv_lshl_add_u32 v13, v0, 4, s4")
    for i in range(16):
        a(f"global_store_dwordx4 v13, v[8:11], {pWS} offset:{(i&3)*1024} sc1")
        if i & 3 == 3 and i < 15: a("v_add_u32 v13, 4096, v13")
    a(f"s_lshl_b32 s4, {sW}, 2\nv_mov_b32 v13, s4\nv_mov_b32 v14, 1\ns_waitcnt vmcnt(0)\ns_mov_b64 exec, 1")
    a(f"global_store_dword v13, v14, {pDBG} sc1")
    exec_all()
    a("L_nomod1:")
    a(f"s_lshl_b32 s13, {sXc}, 5\ns_add_u32 s13, s13, {sXr}\ns_lshl_b32 s4, s13, 5")
    a(f"v_lshlrev_b32 v12, 13, {vRow}\nv_lshlrev_b32 v13, 4, {vHalf}\nv_add3_u32 v12, v12, v13, s4")
    dma(4, 12, pWQ, 32 * 8192, "s10", L_SB)
    a(f"v_lshlrev_b32 v12, 2, v0\nv_mov_b32 v13, 0\nds_write_b32 v12, v13 offset:{L_CNT}\ns_waitcnt lgkmcnt(0)\ns_barrier")
    vY = "v7"
    a(f"s_lshl_b32 s4, {sB}, 4\ns_lshl_b32 s5, {sW}, 2\ns_add_u32 s4, s4, s5\ns_lshl_b32 s4, s4, 13\ns_and_b32 s5, s2, 63\ns_lshl_b32 s5, s5, 7")
    a(f"s_add_u32 s4, s4, s5\ns_add_u32 s4, s4, {WS_Y}")
    a(f"v_bfe_u32 v12, v0, 2, 2\nv_lshl_add_u32 {vY}, v12, 13, s4\nv_and_b32 v12, 3, v0\nv_lshl_add_u32 {vY}, v12, 5, {vY}")
    a(f"v_bfe_u32 v12, v0, 4, 1\nv_lshl_add_u32 {vY}, v12, 4, {vY}")
    exec_set(0xffffffff, 0)
    a(f"global_store_dwordx4 {vY}, v[8:11], {pWS} sc1")
    a(f"s_cmp_lg_u32 {sW}, 0\ns_cbranch_scc1 L_clr_done")
    a(f"s_lshl_b32 s4, {sPair}, 7\ns_lshl_b32 s5, {sSide}, 5\ns_add_u32 s4, s4, s5\ns_add_u32 s4, s4, {WS_ML}\nv_lshl_add_u32 v12, v0, 4, s4")
    a(f"s_mov_b64 exec, 3\nglobal_store_dwordx4 v12, v[8:11], {pWS} sc1")
    a("s_cmp_ge_u32 s2, 224\ns_cbranch_scc1 L_clr_done")
    a(f"s_mul_i32 s4, {sXc}, 28\ns_add_u32 s4, s4, {sXr}\ns_lshl_b32 s4, s4, 6\ns_add_u32 s4, s4, {WS_ACT}")
    a(f"s_mov_b64 exec, 15\nv_lshl_add_u32 v12, v0, 4, s4\nglobal_store_dwordx4 v12, v[8:11], {pWS} sc1")
    a("s_cmp_ge_u32 s2, 64\ns_cbranch_scc1 L_clr_done")
    exec_set(0xffffffff, 0)
    a(f"s_lshl_b32 s4, s2, 6\ns_add_u32 s4, s4, {WS_X1}\nv_and_b32 v12, 3, v0\nv_lshl_add_u32 v12, v12, 4, s4\nv_lshrrev_b32 v13, 2, v0\nv_lshl_add_u32 v12, v13, 12, v12")
    a(f"global_store_dwordx4 v12, v[8:11], {pWS} sc1")
    a("L_clr_done:")
    exec_all()

    def prim_n(stage, breg, part, cnt_off, skip):
        for kb in range(4):
            a(f"ds_read_b64_tr_b16 v[{64+4*kb}:{65+4*kb}], {vTR} offset:{stage+kb*1024}\nds_read_b64_tr_b16 v[{66+4*kb}:{67+4*kb}], {vTR} offset:{stage+kb*1024+128}")
        a("s_waitcnt lgkmcnt(0)")
        for kb in range(4): a(f"v_mfma_f32_16x16x32_bf16 {vr(36+4*kb)}, {vr(64+4*kb)}, {vr(breg)}, 0")
        for k in (1, 2, 3):
            for r in range(4): a(f"v_add_f32_dpp v{36+r}, v{36+4*k+r}, v{36+r} row_shl:{4*k} row_mask:0xf bank_mask:0xf")
        a(f"s_lshl_b32 s4, {sW}, 10\nv_lshl_add_u32 v12, v0, 4, s4\nds_write_b128 v12, v[36:39] offset:{part}")
        a(f"v_mov_b32 v12, {L_CNT}\nv_mov_b32 v13, 1\ns_waitcnt lgkmcnt(0)\ns_mov_b64 exec, 1")
        a(f"ds_add_rtn_u32 v13, v12, v13 offset:{cnt_off}\ns_waitcnt lgkmcnt(0)\nv_readfirstlane_b32 s4, v13")
        exec_all()
        a(f"s_cmp_lg_u32 s4, 3\ns_cbranch_scc1 {skip}")
        a("v_and_b32 v12, 0x33, v0\nv_lshlrev_b32 v12, 4, v12")
        for w in range(4): a(f"ds_read_b128 {vr(36+4*w)}, v12 offset:{part+w*1024}")
        a("s_waitcnt lgkmcnt(0)")
        for i in range(0, 8, 2): a(f"v_pk_add_f32 v[{36+i}:{37+i}], v[{36+i}:{37+i}], v[{44+i}:{45+i}]")
        for i in range(0, 4, 2): a(f"v_pk_add_f32 v[{36+i}:{37+i}], v[{36+i}:{37+i}], v[{40+i}:{41+i}]")
    def poll_flag():
        L, Dn = a.label("Lfp"), a.label("Lfd")
        a(f"s_mov_b32 {sTO}, {TO}\nv_mov_b32 v12, 0")
        a(f"{L}:\nglobal_load_dwordx4 v[16:19], v12, {pDBG} sc1\ns_waitcnt vmcnt(0)")
        a("v_and_b32 v16, v16, v17\nv_and_b32 v18, v18, v19\nv_and_b32 v16, v16, v18\nv_readfirstlane_b32 s4, v16")
        a(f"s_cmp_lg_u32 s4, 0\ns_cbranch_scc1 {Dn}\ns_sub_u32 {sTO}, {sTO}, 1\ns_cbranch_scc1 {Dn}\ns_branch {L}\n{Dn}:")

    a("s_cmp_ge_u32 s2, 192\ns_cbranch_scc1 L_nomod2")
    a("s_waitcnt vmcnt(0)")
    stamp(1)
    unpack(28, 20, 4)
    for i in range(8): a(f"v_mul_f32 v{36+i}, {hex(LOG2E | 0x80000000)}, v{28+i}")
    for i in range(8): a(f"v_exp_f32 v{36+i}, v{36+i}")
    for i in range(8): a(f"v_add_f32 v{36+i}, 1.0, v{36+i}")
    for i in range(8): a(f"v_rcp_f32 v{44+i}, v{36+i}")
    for i in range(8): a(f"v_mul_f32 v{52+i}, v{28+i}, v{44+i}")
    for i in range(8): a(f"v_fma_f32 v{28+i}, -v{52+i}, v{36+i}, v{28+i}")
    for i in range(8): a(f"v_fma_f32 v{28+i}, v{28+i}, v{44+i}, v{52+i}")
    for i in range(8): a(f"v_cmp_u_f32 vcc, v{28+i}, v{28+i}\nv_cndmask_b32 v{28+i}, v{28+i}, v{52+i}, vcc")
    for i in range(4): a(f"v_cvt_pk_bf16_f32 v{20+i}, v{28+2*i}, v{29+2*i}")
    a("s_cmp_ge_u32 s2, 64\ns_cbranch_scc1 L_noln")
    unpack(28, 24, 4)
    a("v_add_f32 v36, v28, v29\nv_add_f32 v37, v30, v31\nv_add_f32 v38, v32, v33\nv_add_f32 v39, v34, v35\nv_add_f32 v36, v36, v37\nv_add_f32 v38, v38, v39\nv_add_f32 v36, v36, v38")
    wave_reduce("v_add_f32", ["v36"], ["v37"])
    a("v_mul_f32 v36, 0x3b000000, v36")
    for i in range(8): a(f"v_sub_f32 v{40+i}, v{28+i}, v36")
    a("v_mul_f32 v37, v40, v40")
    for i in range(1, 8): a(f"v_fmac_f32 v37, v{40+i}, v{40+i}")
    wave_reduce("v_add_f32", ["v37"], ["v38"])
    a("v_mul_f32 v37, 0x3b000000, v37")
    rnd2("v36", "v37", "v38")
    a("v_add_f32 v37, 0x3727c5ac, v37\nv_cvt_pk_bf16_f32 v37, v37, v37\nv_and_b32 v37, 0xffff0000, v37\nv_sqrt_f32 v37, v37")
    a("v_cvt_pk_bf16_f32 v37, v37, v37\nv_and_b32 v37, 0xffff0000, v37\nv_rcp_f32 v38, v37")
    for i in range(8): a(f"v_sub_f32 v{28+i}, v{28+i}, v36")
    for i in range(0, 8, 2): rnd2(f"v{28+i}", f"v{29+i}", "v39")
    for i in range(8): a(f"v_mul_f32 v{40+i}, v{28+i}, v38")
    for i in range(8): a(f"v_fma_f32 v{28+i}, -v{40+i}, v37, v{28+i}")
    for i in range(8): a(f"v_fma_f32 v{40+i}, v{28+i}, v38, v{40+i}")
    for i in range(0, 8, 2): rnd2(f"v{40+i}", f"v{41+i}", "v39")
    a(f"s_lshl_b32 s4, {sW}, 5\nv_mov_b32 v12, s4\ns_lshl_b64 exec, 1, s11")
    a(f"ds_write_b128 v12, v[40:43] offset:{L_N}\nds_write_b128 v12, v[44:47] offset:{L_N+16}")
    exec_all()
    a("L_noln:")
    prim_n(L_SA, 20, L_PM, 0, "L_nomod2")
    rnd2("v36", "v37", "v40"); rnd2("v38", "v39", "v41")
    a("s_cmp_lt_u32 s2, 64\ns_cbranch_scc1 L_hprod")
    a(f"s_lshr_b32 s4, s12, 5\ns_lshl_b32 s4, s4, 13\ns_and_b32 s5, s12, 31\ns_lshl_b32 s5, s5, 6\ns_add_u32 s4, s4, s5\ns_add_u32 s4, s4, {WS_MOD}")
    a(f"v_lshl_add_u32 v12, {vJ}, 11, s4\nv_lshl_add_u32 v12, {vG}, 4, v12")
    exec_set(0x000f000f, 0x000f000f)
    a(f"global_store_dwordx4 v12, v[36:39], {pWS} sc1")
    exec_all()
    a("s_branch L_nomod2")
    a("L_hprod:")
    a(f"v_and_b32 v12, 3, v0\nv_lshlrev_b32 v13, 5, v12\nv_bfe_u32 v14, v0, 4, 1\nv_lshl_add_u32 v13, v14, 4, v13\nds_read_b128 v[44:47], v13 offset:{L_N}")
    for r in range(4): a(f"v_mov_b32 v{40+r}, v{36+r}")
    for r in range(4): a(f"v_permlane32_swap_b32 v{36+r}, v{40+r}")
    for r in range(4): a(f"v_add_f32 v{40+r}, 1.0, v{40+r}")
    rnd2("v40", "v41", "v48"); rnd2("v42", "v43", "v49")
    a("s_waitcnt lgkmcnt(0)")
    for r in range(4): a(f"v_mul_f32 v{40+r}, v{44+r}, v{40+r}")
    rnd2("v40", "v41", "v48"); rnd2("v42", "v43", "v49")
    for r in range(4): a(f"v_add_f32 v{40+r}, v{40+r}, v{36+r}")
    a("v_cvt_pk_bf16_f32 v48, v40, v41\nv_cvt_pk_bf16_f32 v49, v42, v43\nv_min_u32 v48, -2, v48\nv_min_u32 v49, -2, v49")
    a(f"s_lshl_b32 s4, s11, 4\nv_lshl_add_u32 v50, v12, 10, s4\nv_lshl_add_u32 v50, v14, 3, v50")
    a(f"v_bfe_u32 v13, v0, 2, 2\nv_lshl_add_u32 v50, v13, 12, v50\nv_lshrrev_b32 v13, 5, v0\nv_lshl_add_u32 v50, v13, 14, v50")
    stamp(2)
    poll_flag()
    if hrep == 4: exec_set(0xffffffff, 0)
    elif hrep == 2: exec_set(0x00ff00ff, 0)
    elif hrep == 1: exec_set(0x000f000f, 0)
    a(f"global_store_dwordx2 v50, v[48:49], {pWS} offset:{WS_H} sc1")
    exec_all()
    a("s_branch L_flagged")
    a("L_nomod2:")
    poll_flag()
    a("L_flagged:")
    stamp(3)
    a(f"s_and_b32 s4, {sXc}, {hrep-1}\ns_lshl_b32 s4, s4, 12\nv_add_u32 v14, s4, {vBoff}")
    poll([f"global_load_dwordx4 v[20:23], v14, {pWS} offset:{WS_H} sc1"], ["v20", "v21", "v22", "v23"], "v15")
    stamp(4)
    prim_n(L_SB, 20, L_PQ, 4, "L_qdone")
    a("v_cvt_pk_bf16_f32 v48, v36, v37\nv_cvt_pk_bf16_f32 v49, v38, v39\nv_min_u32 v48, -2, v48\nv_min_u32 v49, -2, v49")
    a(f"s_lshl_b32 s4, s13, 5\ns_add_u32 s4, s4, {WS_Q}\nv_lshl_add_u32 v12, {vJ}, 13, s4\nv_lshl_add_u32 v12, {vG}, 3, v12")
    exec_set(0x000f000f, 0x000f000f)
    a(f"global_store_dwordx2 v12, v[48:49], {pWS} sc1")
    a(f"s_mov_b64 exec, 1\nv_mov_b32 v12, 128\nv_mov_b32 v13, 1\nglobal_atomic_add v12, v13, {pDBG} sc1")
    exec_all()
    a("L_qdone:")
    a(f"s_cmp_lg_u32 {sW}, 0\ns_cbranch_scc1 L_noq")
    a(f"s_lshl_b32 s4, {sB}, 13\ns_lshl_b32 s5, {sH}, 8\ns_add_u32 s4, s4, s5\ns_add_u32 s4, s4, {WS_Q}")
    a(f"v_and_b32 v14, 3, v0\nv_lshl_add_u32 v14, v14, 6, s4\nv_lshl_add_u32 v14, {vG}, 4, v14")
    poll([f"global_load_dwordx4 v[20:23], v14, {pWS} sc1"], ["v20", "v21", "v22", "v23"], "v15")
    a(f"v_lshlrev_b32 v12, 4, v0\nds_write_b128 v12, v[20:23] offset:{L_QB}\nv_mov_b32 v12, {L_CNT}\nv_mov_b32 v13, 1\ns_waitcnt lgkmcnt(0)")
    a("ds_write_b32 v12, v13 offset:8")
    a("L_noq:")
    stamp(5)
    a("s_cmp_ge_u32 s2, 224\ns_cbranch_scc1 L_bgdown")
    a(f"s_mul_i32 s4, {sXc}, 28\ns_add_u32 s4, s4, {sXr}\ns_lshl_b32 s4, s4, 4")
    a(f"v_mul_u32_u24 v14, 3584, {vRow}\nv_add_u32 v14, s4, v14\nv_cmp_eq_u32 vcc, 1, {vHalf}")
    a(f"v_mov_b32 v12, {lo(pWG)}\nv_mov_b32 v13, {hi(pWG)}\nv_mov_b32 v16, {lo(pWU)}\nv_mov_b32 v17, {hi(pWU)}")
    a("v_cndmask_b32 v12, v12, v16, vcc\nv_cndmask_b32 v13, v13, v17, vcc")
    a("v_add_co_u32 v12, vcc, v12, v14\nv_addc_co_u32 v13, vcc, 0, v13, vcc")
    dma(4, 12, None, 32 * 3584, "s10", L_SF, wait_every=2, addr64=True)
    a("s_branch L_bgwo")
    a("L_bgdown:")
    a(f"s_lshl_b32 s5, {sXc}, 2\ns_add_u32 s5, s5, {sXr}\ns_sub_u32 s5, s5, 28\ns_lshl_b32 s5, s5, 5")
    a(f"s_mul_i32 s4, {sW}, {14*32*1024}\ns_add_u32 s4, s4, s5\ns_mul_i32 s6, {sW}, {14*1024}")
    a(f"v_lshrrev_b32 v12, 1, v0\nv_lshlrev_b32 v12, 10, v12\nv_lshlrev_b32 v13, 4, {vHalf}\nv_add3_u32 v12, v12, v13, s4")
    dma(14, 12, pWD, 32 * 1024, "s6", L_SF, wait_every=2)
    a("L_bgwo:")
    a(f"s_lshl_b32 s4, {sH}, 17\ns_lshl_b32 s5, {sW}, 8\ns_add_u32 s4, s4, s5")
    a(f"v_lshl_add_u32 v12, {vG}, 15, s4\nv_lshl_add_u32 v12, {vJ}, 4, v12")
    for t in range(32):
        a(f"global_load_dwordx4 {vr(128+4*t)}, v12, {pWO} offset:{(t&3)*1024} {wpol}")
        if t & 3 == 3: a("v_add_u32 v12, 4096, v12")
        a("s_waitcnt vmcnt(0)")
    a("v_and_b32 v12, 1, v0\nv_cmp_eq_u32 vcc, 1, v12\nv_bfe_u32 v13, v0, 1, 2\nv_mov_b32 v16, 0x0c0c0c0c")
    for par, Bs in enumerate((0x0100, 0x0302)):
        a(f"v_mov_b32 v14, {hex(0x0c0c0000 | Bs)}\nv_mov_b32 v15, {hex((Bs << 16) | 0x0c0c)}\nv_cndmask_b32 v{17+par}, v14, v15, vcc")
    for r in range(4):
        a(f"v_cmp_eq_u32 vcc, {r}, v13\nv_cndmask_b32 v{96+r}, v16, v17, vcc\nv_cndmask_b32 v{100+r}, v16, v18, vcc")
    L, Dn = a.label("Lc1"), a.label("Lc1d")
    a(f"s_mov_b32 {sTO}, {TO}\nv_mov_b32 v12, 128")
    a(f"{L}:\nglobal_load_dword v13, v12, {pDBG} sc1\ns_waitcnt vmcnt(0)\nv_readfirstlane_b32 s4, v13")
    a(f"s_cmp_ge_u32 s4, 256\ns_cbranch_scc1 {Dn}\ns_sub_u32 {sTO}, {sTO}, 1\ns_cbranch_scc1 {Dn}\ns_sleep 16\ns_branch {L}\n{Dn}:")
    a(f"s_lshl_b32 s4, {sW}, 11\ns_add_u32 s4, s4, {WS_MOD + 8192}\nv_lshl_add_u32 v12, v0, 5, s4\nv_add_u32 v13, 8192, v12")
    a(f"global_load_dwordx4 v[104:107], v12, {pWS} sc1\nglobal_load_dwordx4 v[108:111], v12, {pWS} offset:16 sc1")
    a(f"global_load_dwordx4 v[112:115], v13, {pWS} sc1\nglobal_load_dwordx4 v[116:119], v13, {pWS} offset:16 sc1")
    a(f"s_lshl_b32 s4, {sPair}, 7\ns_add_u32 s4, s4, {WS_ML}\nv_and_b32 v14, 7, v0\nv_lshl_add_u32 v14, v14, 3, s4")
    poll([f"global_load_dwordx2 v[20:21], v14, {pWS} sc1"], ["v20", "v21"], "v15", sleep=32)
    for i in range(8): a(f"v_add_f32 v{112+i}, 1.0, v{112+i}")
    for i in range(0, 8, 2): rnd2(f"v{112+i}", f"v{113+i}", "v15")
    a("v_mov_b32 v22, v20")
    for sh in (4, 2, 1): a(f"v_max_f32_dpp v22, v22, v22 row_ror:{sh} row_mask:0xf bank_mask:0xf")
    a(f"v_sub_f32 v20, v20, v22\nv_mul_f32 v20, {hex(LOG2E)}, v20\nv_exp_f32 v20, v20\nv_mul_f32 v21, v21, v20")
    for sh in (4, 2, 1): a(f"v_add_f32_dpp v21, v21, v21 row_ror:{sh} row_mask:0xf bank_mask:0xf")
    a("v_rcp_f32 v21, v21\nv_mul_f32 v20, v20, v21")
    a(f"s_lshl_b32 s4, {sSide}, 2")
    for w in range(4):
        a(f"v_readlane_b32 s{12+w}, v20, s4\ns_add_u32 s4, s4, 1")
    a(f"v_lshlrev_b32 v20, 3, v0")
    a(f"s_lshl_b32 s4, {sW}, 9\ns_add_u32 s4, s4, {L_OB}\nv_lshl_add_u32 v21, v0, 2, s4")
    a(f"v_bfe_u32 v22, v0, 3, 1\nv_lshl_add_u32 v22, v22, 8, s4\nv_lshl_add_u32 v22, {vG}, 6, v22")
    a(f"s_and_b32 s4, {sXc}, {xrep-1}\ns_lshl_b32 s4, s4, 12\ns_lshl_b32 s5, {sW}, 10\ns_add_u32 s4, s4, s5\ns_add_u32 s4, s4, {WS_X1}\nv_lshl_add_u32 v23, v0, 4, s4")
    a(f"v_lshl_add_u32 v24, v0, 4, s5")
    stamp(6)
    a("s_waitcnt vmcnt(0) lgkmcnt(0)\ns_barrier")
    stamp(7)
    for w in range(4): a(f"ds_read_b64 v[{28+2*w}:{29+2*w}], v20 offset:{L_OP+w*1024}")
    a("s_waitcnt lgkmcnt(0)")
    a("v_mul_f32 v36, s12, v28\nv_mul_f32 v37, s12, v29")
    for w in range(1, 4): a(f"v_fmac_f32 v36, s{12+w}, v{28+2*w}\nv_fmac_f32 v37, s{12+w}, v{29+2*w}")
    a("v_cvt_pk_bf16_f32 v38, v36, v37\nv_lshlrev_b32 v39, 16, v38\nv_and_b32 v40, 0xffff0000, v38\nds_write_b32 v21, v38")
    a("v_sub_f32 v36, v36, v39\nv_sub_f32 v37, v37, v40\nv_cvt_pk_bf16_f32 v39, v36, v37\nds_write_b32 v21, v39 offset:256")
    for i in range(4): a(f"ds_read_b128 {vr(64+4*i)}, v22 offset:{16*i}")
    for t in range(32):
        if t % 8 == 0: a(f"s_waitcnt lgkmcnt({3 - t//8})")
        A = 80 + 4 * (t % 3)
        for r in range(4): a(f"v_perm_b32 v{A+r}, v{64+(t>>1)}, v{64+(t>>1)}, v{96+4*(t&1)+r}")
        if t > 0:
            Ap = 80 + 4 * ((t - 1) % 3)
            a(f"v_mfma_f32_16x16x32_bf16 v[36:39], {vr(Ap)}, {vr(128+4*(t-1))}, {'0' if t == 1 else 'v[36:39]'}")
    a(f"v_mfma_f32_16x16x32_bf16 v[36:39], {vr(80+4*(31%3))}, {vr(128+4*31)}, v[36:39]")
    for r in range(4): a(f"v_mov_b32 v{40+r}, v{36+r}")
    for r in range(4): a(f"v_permlane32_swap_b32 v{36+r}, v{40+r}")
    for r in range(4): a(f"v_add_f32 v{36+r}, v{36+r}, v{40+r}")
    for r in range(4): a(f"v_min_u32 v{36+r}, -2, v{36+r}")
    exec_set(0xffffffff, 0)
    a(f"global_store_dwordx4 {vY}, v[36:39], {pWS} sc1")
    exec_all()
    stamp(8)
    a("s_cmp_ge_u32 s2, 224\ns_cbranch_scc1 L_down")
    poll([f"global_load_dwordx4 v[28:31], v23, {pWS} sc1"], ["v28", "v29", "v30", "v31"], "v15")
    stamp(9)
    unpack(40, 28, 4)
    a("v_add_f32 v36, v40, v41\nv_add_f32 v38, v42, v43\nv_add_f32 v39, v44, v45\nv_add_f32 v48, v46, v47")
    a("v_add_f32 v36, v36, v38\nv_add_f32 v39, v39, v48\nv_add_f32 v36, v36, v39")
    wave_reduce("v_add_f32", ["v36"], ["v38"])
    a("v_mul_f32 v36, 0x3b000000, v36")
    for i in range(8): a(f"v_sub_f32 v{40+i}, v{40+i}, v36")
    a("v_mul_f32 v37, v40, v40\nv_mul_f32 v38, v41, v41")
    for i in range(2, 8): a(f"v_fmac_f32 v{37+(i&1)}, v{40+i}, v{40+i}")
    a("v_add_f32 v37, v37, v38")
    for i in range(8): a(f"v_mul_f32 v{40+i}, v{40+i}, v{112+i}")
    wave_reduce("v_add_f32", ["v37"], ["v38"])
    a("v_mov_b32 v38, 0x3727c5ac\nv_fmac_f32 v38, 0x3b000000, v37\nv_rsq_f32 v38, v38")
    for i in range(8): a(f"v_fma_f32 v{40+i}, v{40+i}, v38, v{104+i}")
    for i in range(4): a(f"v_cvt_pk_bf16_f32 v{28+i}, v{40+2*i}, v{41+2*i}")
    a(f"ds_write_b128 v24, v[28:31] offset:{L_H2}\ns_waitcnt lgkmcnt(0)\ns_barrier")
    stamp(10)
    stamps_out(range(11))
    a("L_end:\ns_endpgm")
    body, nops = a.finalize()
    tail = f""".section .rodata,"a"
.p2align 6
.amdhsa_kernel {KN}
  .amdhsa_next_free_vgpr 256
  .amdhsa_next_free_sgpr 102
  .amdhsa_accum_offset 256
  .amdhsa_group_segment_fixed_size 0
  .amdhsa_kernarg_size 112
  .amdhsa_user_sgpr_count 2
  .amdhsa_user_sgpr_kernarg_segment_ptr 1
  .amdhsa_system_sgpr_workgroup_id_x 1
  .amdhsa_float_denorm_mode_32 3
.end_amdhsa_kernel
"""
    body = body.replace("    ; @launch", "; @launch", 1)
    return body + tail

if __name__ == "__main__":
    kw = eval("dict(" + (sys.argv[2] if len(sys.argv) > 2 else "") + ")")
    open(sys.argv[1], "w").write(gen(**kw))
```

```python
import sys
from asmlib import Asm

KN = "adaLN_cond__mha_block_cached__geglu_ffn__decode_kernel"

WS_EP   = 0x0000
WS_ML   = 0x4000
WS_X1   = 0x8000
WS_ACT  = 0x10000
WS_MODP = 0x20000
WS_MODN = 0x30000
WS_Y    = 0x80000
WS_QP   = 0x100000
WS_ST   = 0x800000
L_CNT  = 0x0000
L_QB   = 0x0100
L_N    = 0x0400
L_PM   = 0x0800
L_OP   = 0x4800
L_OB   = 0x5800
L_H2   = 0x6000
L_SC   = 0x7000
L_SA   = 0xB000
L_SB   = 0xF000
L_SF   = 0x13000
LDS_SIZE = 0x13000 + 56 * 1024

LOG2E = 0x3fb8aa3b
SCALE = 0x3db504f3

pX, pK, pV, pWQ, pWO, pBX, pWG, pWU, pWD, pC, pWM, pOUT, pDBG, pWS = [f"s[{16+2*i}:{17+2*i}]" for i in range(14)]
def lo(p): return "s" + p[2:p.index(":")]
def hi(p): return "s" + p[p.index(":")+1:-1]
SRDC, SRDN = "s[44:47]", "s[48:51]"
sTC, sTN, sOF, sLC = "s52", "s53", "s54", "s55"
sB, sH, sSide, sPair, sTO, sW = "s56", "s57", "s58", "s59", "s60", "s61"
sM1, sM2, sM3 = "s[62:63]", "s[64:65]", "s[66:67]"
sXc, sXr = "s68", "s69"
sTag = ["s44", "s45", "s46", "s47"]
sT = "s26"

def vr(b, n=4): return f"v[{b}:{b+n-1}]"

def gen(D=5, Df=6, G=1, stamps=False, wpol="nt", xrep=8, TO=1 << 17, psleep=0):
    a = Asm()
    def stamp(k):
        if stamps: a(f"s_memrealtime s[{70+2*k}:{71+2*k}]")
    def stamps_out(ks):
        if not stamps: return
        a("s_waitcnt lgkmcnt(0)")
        a("s_mov_b64 exec, 1")
        a("s_lshl_b32 s4, s2, 3\ns_add_u32 s4, s4, s3\ns_lshl_b32 s4, s4, 6")
        a(f"s_add_u32 s4, s4, {WS_ST}\nv_mov_b32 v1, s4")
        for k in ks:
            a(f"v_mov_b32 v2, s{70+2*k}\nglobal_store_dword v1, v2, {pWS} offset:{4*k}")
    def exec_set(lo_, hi_):
        a(f"s_mov_b32 exec_lo, {hex(lo_)}\ns_mov_b32 exec_hi, {hex(hi_)}")
    def exec_all(): a("s_mov_b64 exec, -1")
    def tree(op2, op3, t, r):
        r = list(r)
        if len(r) % 2 == 0:
            a(f"{op2} {t}, {r[0]}, {r[1]}"); r = r[2:]
        else:
            a(f"{op3} {t}, {r[0]}, {r[1]}, {r[2]}"); r = r[3:]
        while r:
            a(f"{op3} {t}, {t}, {r[0]}, {r[1]}"); r = r[2:]
    def poll(loads, regs, tmp, sleep=0, tagged=False):
        L, Dn = a.label("Lpoll"), a.label("Lpdone")
        a(f"s_mov_b32 {sTO}, {TO}")
        a(f"{L}:")
        for l in loads: a(l)
        if tagged:
            n = len(loads)
            for i in range(n):
                a(f"s_waitcnt vmcnt({n-1-i})")
                for k in range(4): a(f"v_xor_b32 {regs[4*i+k]}, {sTag[k]}, {regs[4*i+k]}")
            tree("v_or_b32", "v_or3_b32", tmp, regs)
            a(f"v_and_b32 {tmp}, 0xff, {tmp}\nv_cmp_ne_u32 vcc, 0, {tmp}")
        else:
            a("s_waitcnt vmcnt(0)")
            tree("v_max_u32", "v_max3_u32", tmp, regs)
            a(f"v_cmp_eq_u32 vcc, -1, {tmp}")
        a("s_cmp_eq_u64 vcc, 0")
        a(f"s_cbranch_scc1 {Dn}")
        a(f"s_sub_u32 {sTO}, {sTO}, 1")
        a(f"s_cbranch_scc1 {Dn}")
        if sleep: a(f"s_sleep {sleep}")
        a(f"s_branch {L}")
        a(f"{Dn}:")
    def lds_wait(off, val, va="v12", vt="v13"):
        L, Dn = a.label("Llw"), a.label("Llwd")
        a(f"v_mov_b32 {va}, {L_CNT}")
        a(f"{L}:\nds_read_b32 {vt}, {va} offset:{off}\ns_waitcnt lgkmcnt(0)\nv_readfirstlane_b32 s4, {vt}")
        a(f"s_cmp_ge_u32 s4, {val}\ns_cbranch_scc1 {Dn}\ns_sleep 1\ns_branch {L}\n{Dn}:")
    def wave_reduce(op, regs, tmps):
        for sh in (8, 4, 2, 1):
            for r in regs: a(f"{op}_dpp {r}, {r}, {r} row_ror:{sh} row_mask:0xf bank_mask:0xf")
        for pl in ("v_permlane16_swap_b32", "v_permlane32_swap_b32"):
            for r, t in zip(regs, tmps): a(f"v_mov_b32 {t}, {r}")
            for r, t in zip(regs, tmps): a(f"{pl} {r}, {t}")
            for r, t in zip(regs, tmps): a(f"{op} {r}, {r}, {t}")
    def rnd2(x0, x1, t):
        a(f"v_cvt_pk_bf16_f32 {t}, {x0}, {x1}\nv_lshlrev_b32 {x0}, 16, {t}\nv_and_b32 {x1}, 0xffff0000, {t}")
    def rndn(base, n, tb):
        for i in range(n // 2): a(f"v_cvt_pk_bf16_f32 v{tb+i}, v{base+2*i}, v{base+2*i+1}")
        unpack(base, tb, n // 2)
    def unpack(dst, src, n):
        for i in range(n):
            a(f"v_lshlrev_b32 v{dst+2*i}, 16, v{src+i}\nv_and_b32 v{dst+2*i+1}, 0xffff0000, v{src+i}")
    def pkadd(d, x, y, n):
        for i in range(0, n, 2): a(f"v_pk_add_f32 v[{d+i}:{d+i+1}], v[{x+i}:{x+i+1}], v[{y+i}:{y+i+1}]")
    def modn_sum(dst, n4, va, tmp):
        for rb in range(4):
            for i in range(n4):
                a(f"global_load_dwordx4 {vr(tmp+4*(rb*n4+i))}, {va}, {pWS} offset:{16*i} sc1")
            if rb < 3: a(f"v_add_u32 {va}, 8192, {va}")
        a("s_waitcnt vmcnt(0)")
        for i in range(16 * n4): a(f"v_and_b32 v{tmp+i}, 0xffffff00, v{tmp+i}")
        pkadd(tmp, tmp, tmp + 8 * n4, 8 * n4)
        pkadd(dst, tmp, tmp + 4 * n4, 4 * n4)
        rndn(dst, 4 * n4, tmp)

    a(f"; @launch grid=(256,1,1) block=(512,1,1) lds={LDS_SIZE}")
    a('.amdgcn_target "amdgcn-amd-amdhsa--gfx950"')
    a(f".text\n.globl {KN}\n.p2align 8\n.type {KN},@function\n{KN}:")
    a("s_cmp_ge_u32 s2, 256\ns_cbranch_scc1 L_end")
    a("s_load_dwordx16 s[16:31], s[0:1], 0\ns_load_dwordx8 s[32:39], s[0:1], 64\ns_load_dwordx4 s[40:43], s[0:1], 96")
    a("v_lshrrev_b32 v1, 6, v0\nv_and_b32 v0, 63, v0\nv_readfirstlane_b32 s3, v1")
    a(f"v_lshlrev_b32 v12, 2, v0\nv_mov_b32 v13, 0\nds_write_b32 v12, v13 offset:{L_CNT}")
    a(f"s_lshr_b32 {sB}, s2, 6\ns_bfe_u32 {sH}, s2, 0x50001\ns_and_b32 {sSide}, s2, 1\ns_lshr_b32 {sPair}, s2, 1")
    a(f"s_and_b32 {sXc}, s2, 7\ns_lshr_b32 {sXr}, s2, 3\ns_and_b32 {sW}, s3, 3")
    a("s_cmp_ge_u32 s3, 4\ns_cbranch_scc1 L_helper")

    vK, vV, vCur, vNxt, vSp, vM, vL, vS, vP, vNM = "v1", "v2", "v3", "v4", "v5", "v6", "v7", "v8", "v9", "v10"
    T0 = 12; BQ = 20; DD = 36
    RING = 64; X0 = 128; X1 = 192
    a(f"v_and_b32 v12, 15, v0\nv_lshrrev_b32 v13, 4, v0")
    a(f"v_lshlrev_b32 {vK}, 6, v12\nv_lshl_add_u32 {vK}, v13, 4, {vK}")
    a(f"v_lshlrev_b32 {vV}, 4, v0")
    a(f"s_mul_i32 s4, s3, {G*1024}")
    a(f"v_add_u32 {vK}, s4, {vK}\nv_add_u32 {vV}, s4, {vV}")
    a(f"s_lshl_b32 s5, s2, 20")
    a("s_waitcnt lgkmcnt(0)")
    stamp(0)
    a(f"s_add_u32 s44, {lo(pK)}, s5\ns_addc_u32 s45, {hi(pK)}, 0\ns_mov_b32 s46, 0x100000\ns_mov_b32 s47, 0x20000")
    def issue(p, slot, va, srd, st):
        if G == 1: so, imm = p * 4096, 0
        elif G == 4: so, imm = (p >> 2) * 16384, (p & 3) * 1024
        else: so, imm = (p >> 2) * 4096, (p & 3) * 1024
        if isinstance(st, int): a(f"s_mov_b32 {sOF}, {st+so}")
        else: a(f"s_add_u32 {sOF}, {st}, {so}")
        a(f"buffer_load_dwordx4 {vr(slot)}, {va}, {srd}, {sOF} offen offset:{imm} {kvpol}")
    fill = [(t, p, base + 4 * p) for t, base in ((0, X0), (1, X1), (2, RING)) for p in range(16)]
    for idx, (t, p, slot) in enumerate(fill):
        if idx == Df:
            a("s_barrier")
            a(f"s_mov_b32 s48, s44\ns_mov_b32 s49, s45\ns_mov_b32 s50, 0x100000\ns_mov_b32 s51, 0x20000")
            a(f"s_mov_b32 s62, 0x22222222\ns_mov_b32 s63, 0x22222222\ns_mov_b32 s64, 0x44444444\ns_mov_b32 s65, 0x44444444")
            a(f"s_mov_b32 s66, 0x88888888\ns_mov_b32 s67, 0x88888888")
            a(f"s_lshl_b32 s4, s3, 12\ns_add_u32 s4, s4, {L_SC}\nv_lshl_add_u32 {vSp}, v0, 2, s4")
            a(f"v_mov_b32 {vM}, 0xff7fffff\nv_mov_b32 {vL}, 0")
            a(f"v_mov_b32 {vCur}, {vK}\nv_mov_b32 {vNxt}, {vK}")
        if idx >= Df: a(f"s_waitcnt vmcnt({Df-1})")
        if idx == Df: stamp(8)
        if idx == 16 + Df - 1: stamp(9)
        if idx == 32 + Df - 1: stamp(10)
        issue(p, slot, vK, SRDC, t * 65536)
    stamp(1)
    lds_wait(8, 1)
    stamp(2)
    a(f"v_and_b32 v12, 3, v0\nv_lshlrev_b32 v12, 6, v12\nv_lshrrev_b32 v13, 4, v0\nv_lshl_add_u32 v12, v13, 4, v12\nds_read_b128 v[16:19], v12 offset:{L_QB}")
    a("v_bfe_u32 v13, v0, 2, 2")
    a("s_waitcnt lgkmcnt(0)")
    for t in range(4):
        a(f"v_cmp_eq_u32 vcc, {t}, v13")
        for r in range(4): a(f"v_cndmask_b32 v{BQ+4*t+r}, 0, v{16+r}, vcc")
    def k_step(n, slot):
        u, t = n >> 2, n & 3
        d = vr(DD + 4 * u)
        a(f"v_mfma_f32_16x16x32_bf16 {d}, {vr(slot)}, {vr(BQ+4*t)}, {'0' if t == 0 else d}")
    def k_group(u):
        T = T0 + u
        o = [(u + i) & 3 for i in (1, 2, 3)]
        a(f"v_add_f32_dpp v{T}, v{DD+4*u+o[0]}, v{DD+4*u+u} quad_perm:[{o[0]},{o[0]},{o[0]},{o[0]}] row_mask:0xf bank_mask:0xf")
        for x in o[1:]:
            a(f"v_add_f32_dpp v{T}, v{DD+4*u+x}, v{T} quad_perm:[{x},{x},{x},{x}] row_mask:0xf bank_mask:0xf")
    def k_finish(off):
        a(f"v_cndmask_b32 v12, v12, v13, {sM1}\nv_cndmask_b32 v12, v12, v14, {sM2}\nv_cndmask_b32 v12, v12, v15, {sM3}")
        a(f"v_cvt_pk_bf16_f32 v12, v12, v12\nv_and_b32 v12, 0xffff0000, v12\nv_mul_f32 v12, {hex(SCALE)}, v12")
        a(f"v_cvt_pk_bf16_f32 v12, v12, v12\nv_and_b32 v12, 0xffff0000, v12")
        a(f"ds_write_b32 {vSp}, v12 offset:{off}")
        a(f"v_max_f32 v13, {vM}, v12\nv_sub_f32 v14, {vM}, v13\nv_sub_f32 v15, v12, v13")
        a(f"v_mul_f32 v14, {hex(LOG2E)}, v14\nv_mul_f32 v15, {hex(LOG2E)}, v15\nv_exp_f32 v14, v14\nv_exp_f32 v15, v15")
        a(f"v_mov_b32 {vM}, v13\nv_fma_f32 {vL}, {vL}, v14, v15")
    def k_tile(base, off, pre=None, post=None):
        for n in range(16):
            if pre: pre(n)
            k_step(n, base + 4 * n)
            if post: post(n)
            if n & 3 == 0 and n: k_group((n >> 2) - 1)
        k_group(3)
        k_finish(off)
    k_tile(RING, 2 * 256, pre=lambda n: a("s_waitcnt vmcnt(15)"), post=lambda n: issue(n, RING + 4 * n, vK, SRDC, 3 * 65536))
    k_tile(X0, 0)
    k_tile(X1, 256)
    def preB(n):
        if n + D >= 16:
            issue(n + D - 16, RING + 4 * (n + D - 16), vK, SRDC, 4 * 65536); a(f"s_waitcnt vmcnt({D})")
        else: a(f"s_waitcnt vmcnt({15-n})")
    k_tile(RING, 3 * 256, pre=preB)
    stamp(3)
    a(f"s_mov_b32 {sTC}, {4*65536}\ns_mov_b32 {sTN}, {5*65536}\nv_add_u32 {vSp}, {4*256}, {vSp}")
    a(f"s_lshl_b32 s5, {sPair}, 21\ns_add_u32 s6, {lo(pV)}, s5\ns_addc_u32 s7, {hi(pV)}, 0\ns_lshl_b32 s8, {sSide}, 20")
    def pre_steady(n):
        p = n + D
        if p < 16: issue(p, RING + 4 * p, vCur, SRDC, sTC)
        else: issue(p - 16, RING + 4 * (p - 16), vNxt, SRDN, sTN)
    a("L_kloop:")
    a(f"s_cmp_lg_u32 {sTN}, {16*65536}\ns_cbranch_scc1 L_knosw")
    a(f"s_mov_b32 s48, s6\ns_mov_b32 s49, s7\ns_mov_b32 s50, 0x200000\ns_mov_b32 {sTN}, s8\nv_mov_b32 {vNxt}, {vV}")
    a("L_knosw:")
    k_tile(RING, 0, pre=lambda n: (pre_steady(n), a(f"s_waitcnt vmcnt({D})")))
    a(f"v_add_u32 {vSp}, 256, {vSp}")
    a(f"s_add_u32 {sTC}, {sTC}, 65536\ns_add_u32 {sTN}, {sTN}, 65536")
    a(f"s_cmp_lg_u32 {sTC}, {16*65536}\ns_cbranch_scc1 L_kloop")
    stamp(4)
    a(f"s_mov_b32 s44, s6\ns_mov_b32 s45, s7\ns_mov_b32 s46, 0x200000\ns_mov_b32 {sTC}, s8")
    lds_wait(12, 4)
    a(f"v_subrev_u32 {vSp}, {16*256}, {vSp}")
    a(f"ds_read_b32 {vS}, {vSp}")
    a(f"v_mov_b32 v12, {vM}")
    wave_reduce("v_max_f32", ["v12"], ["v13"])
    a(f"v_sub_f32 v14, {vM}, v12\nv_mul_f32 v14, {hex(LOG2E)}, v14\nv_exp_f32 v14, v14\nv_mul_f32 v13, {vL}, v14")
    wave_reduce("v_add_f32", ["v13"], ["v14"])
    a(f"v_mul_f32 {vNM}, {hex(LOG2E | 0x80000000)}, v12")
    a("v_min_u32 v12, -2, v12\nv_min_u32 v13, -2, v13")
    a(f"s_lshl_b32 s4, {sPair}, 7\ns_lshl_b32 s5, {sSide}, 5\ns_add_u32 s4, s4, s5\ns_lshl_b32 s5, s3, 3\ns_add_u32 s4, s4, s5\ns_add_u32 s4, s4, {WS_ML}")
    a("v_mov_b32 v14, s4\ns_mov_b64 exec, 1")
    a(f"global_store_dwordx2 v14, v[12:13], {pWS} sc1")
    exec_all()
    ACC, AS, MK = DD, DD + 4, DD + 12
    a("v_and_b32 v12, 1, v0\nv_lshlrev_b32 v12, 4, v12\nv_mov_b32 v13, 0xffff\nv_lshlrev_b32 v12, v12, v13\nv_bfe_u32 v13, v0, 1, 3")
    for r in range(4):
        a(f"v_cmp_eq_u32 vcc, {r}, v13\nv_cndmask_b32 v{MK+r}, 0, v12, vcc\nv_mov_b32 v{ACC+r}, 0")
    a(f"s_mov_b32 s9, {hex(LOG2E)}\ns_mov_b32 {sLC}, 16")
    a("L_vloop:")
    a(f"s_cmp_eq_u32 {sLC}, 1\ns_cselect_b32 {sTN}, 0x40000000, {sTN}")
    a("s_waitcnt lgkmcnt(0)")
    a(f"v_fma_f32 {vP}, {vS}, s9, {vNM}\nv_exp_f32 {vP}, {vP}\nv_add_u32 {vSp}, 256, {vSp}\nv_cvt_pk_bf16_f32 {vP}, {vP}, {vP}")
    a(f"ds_read_b32 {vS}, {vSp}")
    for n in range(16):
        p = n + D
        if p < 16: issue(p, RING + 4 * p, vV, SRDC, sTC)
        else: issue(p - 16, RING + 4 * (p - 16), vV, SRDC, sTN)
        A = AS + 4 * (n & 1)
        for r in range(4):
            a(f"v_and_b32_dpp v{A+r}, {vP}, v{MK+r} row_newbcast:{4*(n&3)+(n>>2)} row_mask:0xf bank_mask:0xf")
        a(f"s_waitcnt vmcnt({D})")
        a(f"v_mfma_f32_16x16x32_bf16 {vr(ACC)}, {vr(A)}, {vr(RING+4*n)}, {vr(ACC)}")
    a(f"s_mov_b32 {sTC}, {sTN}\ns_add_u32 {sTN}, {sTN}, 65536")
    a(f"s_sub_u32 {sLC}, {sLC}, 1\ns_cmp_lg_u32 {sLC}, 0\ns_cbranch_scc1 L_vloop")
    stamp(5)
    a("v_and_b32 v12, 15, v0\nv_lshlrev_b32 v12, 5, v12\nv_bfe_u32 v13, v0, 4, 1\nv_lshl_add_u32 v12, v13, 4, v12")
    a("v_lshrrev_b32 v13, 5, v0\nv_lshl_add_u32 v12, v13, 9, v12\ns_lshl_b32 s4, s3, 10\nv_add_u32 v12, s4, v12")
    a(f"ds_write_b128 v12, {vr(ACC)} offset:{L_OP}")
    a("s_waitcnt vmcnt(0) lgkmcnt(0)\ns_barrier")
    a("s_cmp_ge_u32 s2, 224\ns_cbranch_scc1 L_down")
    a("s_cmp_eq_u32 s3, 1\ns_cbranch_scc1 L_ffn")
    a("s_cmp_lg_u32 s3, 0\ns_cbranch_scc1 L_fin_s")
    a("s_cmp_ge_u32 s2, 64\ns_cbranch_scc1 L_fin_s")
    a("v_and_b32 v12, 7, v0")
    a(f"s_lshl_b32 s4, s2, 6\nv_lshl_add_u32 v13, v12, 3, s4")
    a(f"global_load_dwordx2 v[20:21], v13, {pX}")
    a(f"s_lshl_b32 s4, s2, 7\ns_add_u32 s4, s4, {WS_MODN}\nv_lshl_add_u32 v14, v12, 4, s4")
    modn_sum(16, 1, "v14", 96)
    a(f"v_lshrrev_b32 v14, 3, v0\nv_lshl_add_u32 v13, v14, 12, v13\nv_add_u32 v13, {WS_X1}, v13")
    a(f"s_lshl_b32 s4, s2, 13\ns_add_u32 s4, s4, {WS_Y + 4096}\nv_lshl_add_u32 v14, v0, 4, s4")
    unpack(24, 20, 2)
    poll([f"global_load_dwordx4 {vr(64+4*i)}, v14, {pWS} offset:{i*1024-4096} sc1" for i in range(8)], [f"v{64+i}" for i in range(32)], "v15")
    stamp(6)
    for st in (16, 8, 4): pkadd(64, 64, 64 + st, st)
    R4 = [f"v{64+i}" for i in range(4)]; T4 = [f"v{68+i}" for i in range(4)]
    for r in R4: a(f"v_add_f32_dpp {r}, {r}, {r} row_ror:8 row_mask:0xf bank_mask:0xf")
    for pl in ("v_permlane16_swap_b32", "v_permlane32_swap_b32"):
        for r, t in zip(R4, T4): a(f"v_mov_b32 {t}, {r}")
        for r, t in zip(R4, T4): a(f"{pl} {r}, {t}")
        for r, t in zip(R4, T4): a(f"v_add_f32 {r}, {r}, {t}")
    for i in range(4): a(f"v_fma_f32 v{64+i}, v{16+i}, v{64+i}, v{24+i}")
    a("v_cvt_pk_bf16_f32 v68, v64, v65\nv_cvt_pk_bf16_f32 v69, v66, v67\nv_min_u32 v68, -2, v68\nv_min_u32 v69, -2, v69")
    if xrep < 8:
        m = (1 << (8 * xrep)) - 1
        exec_set(m & 0xffffffff, m >> 32)
    a(f"global_store_dwordx2 v13, v[68:69], {pWS} sc1")
    stamp(7)
    a("L_fin_s:")
    stamps_out(range(11))
    a("s_endpgm")

    a("L_ffn:")
    a("v_and_b32 v12, 15, v0\nv_lshrrev_b32 v13, 4, v0\nv_lshlrev_b32 v14, 8, v13\nv_lshl_add_u32 v14, v12, 3, v14")
    a(f"v_add_u32 v14, {L_SF}, v14")
    for kb in range(16):
        a(f"ds_read_b64_tr_b16 v[{64+4*kb}:{65+4*kb}], v14 offset:{kb*1024}\nds_read_b64_tr_b16 v[{66+4*kb}:{67+4*kb}], v14 offset:{kb*1024+128}")
        if kb % 4 == 3: a("s_waitcnt lgkmcnt(0)")
    a("v_and_b32 v15, 3, v0\nv_lshlrev_b32 v15, 10, v15\nv_bfe_u32 v16, v0, 2, 2\nv_lshl_add_u32 v15, v16, 6, v15\nv_lshl_add_u32 v15, v13, 4, v15")
    a(f"s_mul_i32 s4, {sXc}, 28\ns_add_u32 s4, s4, {sXr}\ns_lshl_b32 s4, s4, 6\ns_add_u32 s4, s4, {WS_ACT}")
    a("v_and_b32 v16, 3, v0\nv_lshl_add_u32 v16, v16, 4, s4\nv_lshl_add_u32 v16, v13, 3, v16")
    a("s_mov_b32 s5, 0x3d372713\ns_mov_b32 s6, 0xc0135761")
    a("s_barrier")
    for i in range(4): a(f"ds_read_b128 {vr(20+4*i)}, v15 offset:{L_H2+i*256}")
    for i in range(4):
        a(f"s_waitcnt lgkmcnt({3-i})")
        for k in range(4):
            d = vr(36 + 4 * k)
            a(f"v_mfma_f32_16x16x32_bf16 {d}, {vr(64+4*(4*i+k))}, {vr(20+4*i)}, {'0' if i == 0 else d}")
    for k in (1, 2, 3):
        for r in range(4): a(f"v_add_f32_dpp v{36+r}, v{36+4*k+r}, v{36+r} row_shl:{4*k} row_mask:0xf bank_mask:0xf")
    for r in range(4): a(f"v_mov_b32 v{40+r}, v{36+r}")
    for r in range(4): a(f"v_mul_f32 v{44+r}, v{36+r}, v{36+r}")
    for r in range(4): a(f"v_permlane32_swap_b32 v{36+r}, v{40+r}")
    for r in range(4): a(f"v_fma_f32 v{44+r}, v{44+r}, s5, 1.0")
    for r in range(4): a(f"v_mul_f32 v{44+r}, v{44+r}, v{36+r}")
    for r in range(4): a(f"v_mul_f32 v{44+r}, s6, v{44+r}")
    for r in range(4): a(f"v_exp_f32 v{44+r}, v{44+r}")
    for r in range(4): a(f"v_add_f32 v{44+r}, 1.0, v{44+r}")
    for r in range(4): a(f"v_rcp_f32 v{44+r}, v{44+r}")
    for r in range(4): a(f"v_mul_f32 v{36+r}, v{36+r}, v{44+r}")
    for r in range(4): a(f"v_mul_f32 v{36+r}, v{36+r}, v{40+r}")
    a("v_cvt_pk_bf16_f32 v52, v36, v37\nv_cvt_pk_bf16_f32 v53, v38, v39\nv_min_u32 v52, -2, v52\nv_min_u32 v53, -2, v53")
    exec_set(0x000f000f, 0)
    a(f"global_store_dwordx2 v16, v[52:53], {pWS} sc1")
    stamp(6)
    stamps_out(range(7))
    a("s_endpgm")

    a("L_down:")
    a("v_and_b32 v12, 15, v0\nv_lshrrev_b32 v13, 4, v0\nv_lshlrev_b32 v14, 8, v13\nv_lshl_add_u32 v14, v12, 3, v14")
    a(f"s_mul_i32 s4, s3, {7*1024}\ns_add_u32 s4, s4, {L_SF}\nv_add_u32 v14, s4, v14")
    for kb in range(7):
        a(f"ds_read_b64_tr_b16 v[{64+4*kb}:{65+4*kb}], v14 offset:{kb*1024}\nds_read_b64_tr_b16 v[{66+4*kb}:{67+4*kb}], v14 offset:{kb*1024+128}")
    a(f"s_mul_i32 s4, s3, 7\nv_bfe_u32 v15, v0, 2, 2\nv_add_u32 v15, s4, v15\nv_add_u32 v16, 4, v15\nv_min_u32 v16, 55, v16")
    a(f"v_and_b32 v17, 3, v0\nv_lshlrev_b32 v18, 4, v17\nv_lshl_add_u32 v18, v13, 6, v18\nv_add_u32 v18, {WS_ACT}, v18")
    a("v_lshl_add_u32 v15, v15, 8, v18\nv_lshl_add_u32 v16, v16, 8, v18")
    a(f"s_lshl_b32 s5, {sXc}, 2\ns_add_u32 s5, s5, {sXr}\ns_sub_u32 s5, s5, 28")
    a("s_lshl_b32 s6, s5, 5\nv_lshl_add_u32 v19, v17, 10, s6\nv_lshl_add_u32 v19, v13, 3, v19")
    a("s_cmp_lg_u32 s3, 0\ns_cbranch_scc1 L_down2")
    a(f"v_lshlrev_b32 v56, 1, v19\nv_add_u32 v56, {WS_MODN + 3*32768}, v56")
    modn_sum(60, 1, "v56", 96)
    a(f"s_and_b32 s6, {sXc}, {xrep-1}\ns_lshl_b32 s6, s6, 12\ns_add_u32 s6, s6, {WS_X1}\nv_add_u32 v56, s6, v19")
    poll([f"global_load_dwordx2 v[58:59], v56, {pWS} sc1"], ["v58", "v59"], "v57")
    unpack(28, 58, 2)
    a("L_down2:")
    poll([f"global_load_dwordx4 v[20:23], v15, {pWS} sc1", f"global_load_dwordx4 v[24:27], v16, {pWS} sc1"], [f"v{20+i}" for i in range(8)], "v57")
    stamp(6)
    a("s_waitcnt lgkmcnt(0)")
    for kb in range(7):
        d = vr(36 + 4 * (kb & 3))
        a(f"v_mfma_f32_16x16x32_bf16 {d}, {vr(64+4*kb)}, {vr(20+4*(kb>>2))}, {'0' if kb < 4 else d}")
    for k in (3, 1, 2):
        for r in range(4): a(f"v_add_f32_dpp v{36+r}, v{36+4*k+r}, v{36+r} row_shl:{4*k} row_mask:0xf bank_mask:0xf")
    a(f"s_lshl_b32 s4, s3, 10\nv_lshl_add_u32 v12, v0, 4, s4\nds_write_b128 v12, v[36:39] offset:{L_PM}")
    a("s_waitcnt lgkmcnt(0)\ns_barrier")
    a("s_cmp_eq_u32 s3, 4\ns_cbranch_scc1 L_epoch")
    a("s_cmp_lg_u32 s3, 0\ns_cbranch_scc1 L_fin_d")
    for w in range(1, 8): a(f"ds_read_b128 {vr(64+4*w)}, v12 offset:{L_PM+w*1024}")
    a("s_waitcnt lgkmcnt(0)")
    pkadd(64, 36, 68, 4)
    for w in (2, 4, 6): pkadd(64 + 4 * w, 64 + 4 * w, 68 + 4 * w, 4)
    for w in (0, 4): pkadd(64 + 4 * w, 64 + 4 * w, 72 + 4 * w, 4)
    pkadd(64, 64, 80, 4)
    for i in range(4): a(f"v_fma_f32 v{64+i}, v{60+i}, v{64+i}, v{28+i}")
    a("v_cvt_pk_bf16_f32 v68, v64, v65\nv_cvt_pk_bf16_f32 v69, v66, v67")
    exec_set(0x000f000f, 0x000f000f)
    a(f"global_store_dwordx2 v19, v[68:69], {pOUT}")
    stamp(7)
    a("L_fin_d:")
    stamps_out(range(8))
    a("s_endpgm")
    a("L_epoch:")
    a("s_cmp_lg_u32 s2, 224\ns_cbranch_scc1 L_fin_d")
    a(f"v_mov_b32 v12, {WS_EP}\nv_mov_b32 v13, {sT}\ns_mov_b64 exec, 1\nglobal_store_dword v12, v13, {pWS}")
    a("s_branch L_fin_d")

    a("L_helper:")
    vJ, vG, vY, vFF = "v1", "v2", "v7", "v3"
    a(f"v_and_b32 {vJ}, 15, v0\nv_lshrrev_b32 {vG}, 4, v0\nv_mov_b32 {vFF}, 0xff")
    a(f"s_lshl_b32 s10, {sW}, 12")
    a(f"s_lshr_b32 s11, s2, 2\ns_and_b32 s12, s2, 3\ns_lshl_b32 s13, s12, 7\ns_lshl_b32 s4, {sW}, 5\ns_add_u32 s13, s13, s4")
    a("v_lshrrev_b32 v14, 3, v0\nv_add_u32 v14, s13, v14\nv_mul_u32_u24 v14, 6144, v14\nv_and_b32 v15, 7, v0\nv_lshlrev_b32 v15, 4, v15")
    a("s_lshl_b32 s4, s11, 7\nv_add3_u32 v14, v14, v15, s4")
    a(f"v_and_b32 v15, 3, v0\nv_lshlrev_b32 v15, 10, v15\nv_lshl_add_u32 v15, {vG}, 4, v15\ns_lshl_b32 s4, s13, 1\nv_add_u32 v15, s4, v15")
    a(f"s_lshl_b32 s4, {sXc}, 6\ns_lshl_b32 s5, {sW}, 4\ns_add_u32 s4, s4, s5\ns_lshl_b32 s4, s4, 13\ns_lshl_b32 s5, {sXr}, 8\ns_add_u32 s4, s4, s5")
    a(f"v_lshl_add_u32 v16, {vG}, 13, s4\nv_lshl_add_u32 v16, {vJ}, 4, v16")
    a(f"s_lshl_b32 s4, {sW}, 10\nv_lshl_add_u32 v17, v0, 4, s4")
    a("s_waitcnt lgkmcnt(0)")
    stamp(0)
    a(f"s_load_dword {sT}, {pWS}, {WS_EP}")
    def dma(n, voff, ptr, stride, ldsbase_s, ldsoff, wait_every=0, addr64=False):
        for i in range(n):
            a(f"s_add_u32 m0, {ldsbase_s}, {ldsoff + i*1024}")
            if addr64:
                a(f"global_load_lds_dwordx4 v[{voff}:{voff+1}], off {wpol}")
                if i + 1 < n: a(f"v_add_co_u32 v{voff}, vcc, {stride}, v{voff}\nv_addc_co_u32 v{voff+1}, vcc, 0, v{voff+1}, vcc")
            else:
                a(f"global_load_lds_dwordx4 v{voff}, {ptr} {wpol}")
                if i + 1 < n: a(f"v_add_u32 v{voff}, {stride}, v{voff}")
            if wait_every and i % wait_every == wait_every - 1: a("s_waitcnt vmcnt(0)")
    a("s_cmp_ge_u32 s2, 192\ns_cbranch_scc1 L_nomod1")
    a(f"global_load_dwordx4 v[20:23], v15, {pC}")
    dma(4, 14, pWM, 8 * 6144, "s10", L_SA)
    a("L_nomod1:")
    a(f"global_load_dwordx4 v[24:27], v17, {pX}")
    dma(4, 16, pWQ, 4 * 8192, "s10", L_SB)
    a("s_barrier")
    for i in range(4): a(f"v_mov_b32 v{8+i}, -1")
    a("s_waitcnt lgkmcnt(0)")
    a(f"s_mul_i32 {sT}, {sT}, 0x41c64e6d\ns_add_u32 {sT}, {sT}, 0x9e3779b1")
    for k in range(4): a(f"s_bfe_u32 {sTag[k]}, {sT}, {hex(0x80000 + 8*k)}")
    a("s_cmp_ge_u32 s2, 192\ns_cbranch_scc1 L_nomod2")
    a("s_waitcnt vmcnt(9)")
    stamp(11)
    unpack(28, 20, 4)
    for i in range(8): a(f"v_mul_f32 v{36+i}, {hex(LOG2E | 0x80000000)}, v{28+i}")
    for i in range(8): a(f"v_exp_f32 v{36+i}, v{36+i}")
    for i in range(8): a(f"v_add_f32 v{36+i}, 1.0, v{36+i}")
    for i in range(8): a(f"v_rcp_f32 v{44+i}, v{36+i}")
    for i in range(8): a(f"v_mul_f32 v{52+i}, v{28+i}, v{44+i}")
    for i in range(8): a(f"v_fma_f32 v{28+i}, -v{52+i}, v{36+i}, v{28+i}")
    for i in range(8): a(f"v_fma_f32 v{28+i}, v{28+i}, v{44+i}, v{52+i}")
    for i in range(8): a(f"v_cmp_u_f32 vcc, v{28+i}, v{28+i}\nv_cndmask_b32 v{28+i}, v{28+i}, v{52+i}, vcc")
    for i in range(4): a(f"v_cvt_pk_bf16_f32 v{20+i}, v{28+2*i}, v{29+2*i}")
    a(f"v_lshlrev_b32 v14, 10, {vG}\nv_bfe_u32 v15, v0, 2, 2\nv_lshl_add_u32 v14, v15, 7, v14\nv_and_b32 v15, 3, v0\nv_lshl_add_u32 v14, v15, 3, v14\nv_add_u32 v14, s10, v14")
    a("s_waitcnt vmcnt(5)")
    stamp(1)
    for cs in range(4):
        a(f"ds_read_b64_tr_b16 v[{64+4*cs}:{65+4*cs}], v14 offset:{L_SA+cs*32}\nds_read_b64_tr_b16 v[{66+4*cs}:{67+4*cs}], v14 offset:{L_SA+cs*32+512}")
    for cs in range(4):
        a(f"s_waitcnt lgkmcnt({6-2*cs})")
        a(f"v_mfma_f32_16x16x32_bf16 {vr(36+4*cs)}, {vr(64+4*cs)}, v[20:23], 0")
    for cs in (1, 2, 3):
        for r in range(4): a(f"v_mov_b32_dpp v{36+r}, v{36+4*cs+r} quad_perm:[0,1,2,3] row_mask:0xf bank_mask:{hex(1<<cs)}")
    a(f"s_lshl_b32 s4, {sW}, 10\nv_lshl_add_u32 v12, v0, 4, s4\nds_write_b128 v12, v[36:39] offset:{L_PM}")
    a(f"v_mov_b32 v12, {L_CNT}\nv_mov_b32 v13, 1\ns_waitcnt lgkmcnt(0)\ns_mov_b64 exec, 1")
    a(f"ds_add_rtn_u32 v13, v12, v13 offset:0\ns_waitcnt lgkmcnt(0)\nv_readfirstlane_b32 s4, v13")
    exec_all()
    a(f"s_cmp_lg_u32 s4, 3\ns_cbranch_scc1 L_nomod2")
    a("v_lshlrev_b32 v12, 4, v0")
    for w in range(4): a(f"ds_read_b128 {vr(36+4*w)}, v12 offset:{L_PM+w*1024}")
    a("s_cmp_lt_u32 s2, 64\ns_cbranch_scc1 L_modp")
    a(f"s_sub_u32 s4, s11, 16\ns_lshr_b32 s5, s4, 3\ns_lshl_b32 s5, s5, 15\ns_and_b32 s4, s4, 7\ns_lshl_b32 s4, s4, 8\ns_add_u32 s4, s4, s5")
    a(f"s_lshl_b32 s5, s12, 13\ns_add_u32 s4, s4, s5\ns_add_u32 s4, s4, {WS_MODN}")
    a(f"v_and_b32 v12, 3, v0\nv_lshl_add_u32 v12, v12, 11, s4\nv_bfe_u32 v13, v0, 2, 2\nv_lshl_add_u32 v12, v13, 6, v12\nv_lshl_add_u32 v12, {vG}, 4, v12")
    a("s_branch L_modst")
    a("L_modp:")
    a(f"s_and_b32 s4, s11, 7\ns_lshl_b32 s4, s4, 13\ns_lshl_b32 s5, s12, 11\ns_add_u32 s4, s4, s5\ns_lshr_b32 s5, s11, 3\ns_lshl_b32 s5, s5, 7\ns_add_u32 s4, s4, s5\ns_add_u32 s4, s4, {WS_MODP}")
    a("v_and_b32 v12, 3, v0\nv_lshl_add_u32 v12, v12, 4, s4\nv_bfe_u32 v13, v0, 4, 1\nv_lshl_add_u32 v12, v13, 10, v12")
    a("v_bfe_u32 v13, v0, 2, 1\nv_lshl_add_u32 v12, v13, 9, v12\nv_lshrrev_b32 v13, 5, v0\nv_lshl_add_u32 v12, v13, 8, v12\nv_bfe_u32 v13, v0, 3, 1\nv_lshl_add_u32 v12, v13, 6, v12")
    a("L_modst:")
    a("s_waitcnt lgkmcnt(0)")
    pkadd(36, 36, 44, 8); pkadd(36, 36, 40, 4)
    for k in range(4): a(f"v_bfi_b32 v{36+k}, {vFF}, {sTag[k]}, v{36+k}")
    a(f"global_store_dwordx4 v12, v[36:39], {pWS} sc1")
    stamp(2)
    a("s_waitcnt vmcnt(1)\ns_branch L_ln")
    a("L_nomod2:")
    a("s_waitcnt vmcnt(0)")
    a("L_ln:")
    unpack(28, 24, 4)
    a("v_add_f32 v36, v28, v29\nv_add_f32 v37, v30, v31\nv_add_f32 v38, v32, v33\nv_add_f32 v39, v34, v35\nv_add_f32 v36, v36, v37\nv_add_f32 v38, v38, v39\nv_add_f32 v36, v36, v38")
    wave_reduce("v_add_f32", ["v36"], ["v37"])
    a("v_mul_f32 v36, 0x3b000000, v36")
    for i in range(8): a(f"v_sub_f32 v{40+i}, v{28+i}, v36")
    a("v_mul_f32 v37, v40, v40")
    for i in range(1, 8): a(f"v_fmac_f32 v37, v{40+i}, v{40+i}")
    wave_reduce("v_add_f32", ["v37"], ["v38"])
    a("v_mul_f32 v37, 0x3b000000, v37")
    rnd2("v36", "v37", "v38")
    a("v_add_f32 v37, 0x3727c5ac, v37\nv_cvt_pk_bf16_f32 v37, v37, v37\nv_and_b32 v37, 0xffff0000, v37\nv_sqrt_f32 v37, v37")
    a("v_cvt_pk_bf16_f32 v37, v37, v37\nv_and_b32 v37, 0xffff0000, v37\nv_rcp_f32 v38, v37")
    for i in range(8): a(f"v_sub_f32 v{28+i}, v{28+i}, v36")
    rndn(28, 8, 48)
    for i in range(8): a(f"v_mul_f32 v{40+i}, v{28+i}, v38")
    for i in range(8): a(f"v_fma_f32 v{28+i}, -v{40+i}, v37, v{28+i}")
    for i in range(8): a(f"v_fma_f32 v{40+i}, v{28+i}, v38, v{40+i}")
    rndn(40, 8, 48)
    a(f"s_lshl_b32 s4, {sW}, 8\nv_and_b32 v12, 7, v0\nv_lshl_add_u32 v12, v12, 5, s4\ns_lshl_b32 s4, {sXc}, 3\ns_lshl_b64 exec, 0xff, s4")
    a(f"ds_write_b128 v12, v[40:43] offset:{L_N}\nds_write_b128 v12, v[44:47] offset:{L_N+16}")
    a(f"s_mov_b64 exec, 1\nv_mov_b32 v12, {L_CNT}\nv_mov_b32 v13, 1\ns_waitcnt lgkmcnt(0)\nds_add_u32 v12, v13 offset:4")
    exec_all()
    a(f"s_cmp_lg_u32 {sW}, 0\ns_cbranch_scc1 L_noq")
    lds_wait(4, 4)
    a(f"v_lshlrev_b32 v14, 11, {vG}\nv_bfe_u32 v15, v0, 2, 2\nv_lshl_add_u32 v14, v15, 8, v14\nv_and_b32 v15, 3, v0\nv_lshl_add_u32 v14, v15, 3, v14\nv_add_u32 v14, {L_SB}, v14")
    for cb in range(8):
        for kb in range(2):
            r = 128 + 4 * (2 * cb + kb)
            a(f"ds_read_b64_tr_b16 v[{r}:{r+1}], v14 offset:{kb*8192+cb*32}\nds_read_b64_tr_b16 v[{r+2}:{r+3}], v14 offset:{kb*8192+cb*32+1024}")
        if cb & 1: a("s_waitcnt lgkmcnt(0)")
    a(f"v_lshlrev_b32 v15, 8, v15\nv_bfe_u32 v13, v0, 2, 1\nv_lshl_add_u32 v15, v13, 7, v15\nv_lshl_add_u32 v15, {vG}, 5, v15")
    a(f"ds_read_b128 v[28:31], v15 offset:{L_N}\nds_read_b128 v[32:35], v15 offset:{L_N+16}")
    a(f"s_lshl_b32 s4, {sXc}, 13\ns_add_u32 s4, s4, {WS_MODP + 4096}\nv_lshl_add_u32 v14, v0, 4, s4")
    a(f"s_lshl_b32 s4, {sXr}, 14\ns_lshl_b32 s5, {sXc}, 9\ns_add_u32 s4, s4, s5\ns_add_u32 s4, s4, {WS_QP}")
    a(f"v_and_b32 v16, 3, v0\nv_lshl_add_u32 v16, v16, 12, s4\nv_bfe_u32 v13, v0, 2, 2\nv_lshl_add_u32 v16, v13, 6, v16\nv_lshl_add_u32 v16, {vG}, 4, v16")
    a(f"s_lshl_b32 s4, {sH}, 14\ns_lshl_b32 s5, {sB}, 12\ns_add_u32 s4, s4, s5\ns_add_u32 s4, s4, {WS_QP}\nv_lshl_add_u32 v17, v0, 4, s4")
    stamp(3)
    poll([f"global_load_dwordx4 {vr(64+4*i)}, v14, {pWS} offset:{i*1024-4096} sc1" for i in range(8)], [f"v{64+i}" for i in range(32)], "v15", tagged=True, sleep=psleep)
    stamp(4)
    pkadd(64, 64, 80, 16); pkadd(64, 64, 72, 8)
    rndn(64, 8, 72)
    for i in range(8): a(f"v_add_f32_dpp v{76+i}, v{64+i}, {'v18'} row_ror:8 row_mask:0xf bank_mask:0xf" if i else f"v_mov_b32 v18, 1.0\nv_add_f32_dpp v76, v64, v18 row_ror:8 row_mask:0xf bank_mask:0xf")
    rndn(76, 8, 72)
    a("s_waitcnt lgkmcnt(0)")
    for i in range(8): a(f"v_mul_f32 v{76+i}, v{28+i}, v{76+i}")
    rndn(76, 8, 72)
    for i in range(8): a(f"v_add_f32 v{76+i}, v{76+i}, v{64+i}")
    for i in range(4): a(f"v_cvt_pk_bf16_f32 v{20+i}, v{76+2*i}, v{77+2*i}")
    for i in range(4): a(f"v_mov_b32_dpp v{20+i}, v{20+i} row_ror:8 row_mask:0xf bank_mask:0xc")
    for i in range(4): a(f"v_mov_b32 v{24+i}, v{20+i}")
    for i in range(4): a(f"v_mov_b32_dpp v{24+i}, v{20+i} row_ror:4 row_mask:0xf bank_mask:0x5")
    for i in range(4): a(f"v_mov_b32_dpp v{20+i}, v{20+i} row_ror:4 row_mask:0xf bank_mask:0xa")
    for kb in range(2):
        for cb in range(8):
            d = vr(64 + 4 * cb)
            a(f"v_mfma_f32_16x16x32_bf16 {d}, {vr(128+4*(2*cb+kb))}, {vr(20+4*kb)}, {'0' if kb == 0 else d}")
    for s_ in range(2):
        for u in (1, 2, 3):
            for r in range(4): a(f"v_mov_b32_dpp v{64+16*s_+r}, v{64+16*s_+4*u+r} quad_perm:[0,1,2,3] row_mask:0xf bank_mask:{hex(1<<u)}")
        for k in range(4): a(f"v_bfi_b32 v{64+16*s_+k}, {vFF}, {sTag[k]}, v{64+16*s_+k}")
        a(f"global_store_dwordx4 v16, {vr(64+16*s_)}, {pWS} offset:{256*s_} sc1")
    stamp(12)
    poll([f"global_load_dwordx4 {vr(96+4*i)}, v17, {pWS} offset:{i*1024} sc1" for i in range(4)], [f"v{96+i}" for i in range(16)], "v15", tagged=True, sleep=psleep)
    pkadd(96, 96, 104, 8); pkadd(96, 96, 100, 4)
    for r in range(4): a(f"v_mov_b32 v{100+r}, v{96+r}")
    for r in range(4): a(f"v_permlane32_swap_b32 v{96+r}, v{100+r}")
    pkadd(96, 96, 100, 4)
    a("v_cvt_pk_bf16_f32 v100, v96, v97\nv_cvt_pk_bf16_f32 v101, v98, v99")
    a(f"v_and_b32 v12, 31, v0\nv_lshlrev_b32 v12, 3, v12\nds_write_b64 v12, v[100:101] offset:{L_QB}\nv_mov_b32 v12, {L_CNT}\nv_mov_b32 v13, 1")
    a("ds_write_b32 v12, v13 offset:8")
    a("L_noq:")
    stamp(5)
    a(f"s_lshl_b32 s4, {sB}, 4\ns_lshl_b32 s5, {sW}, 2\ns_add_u32 s4, s4, s5\ns_lshl_b32 s4, s4, 13\ns_and_b32 s5, s2, 63\ns_lshl_b32 s5, s5, 7")
    a(f"s_add_u32 s4, s4, s5\ns_add_u32 s4, s4, {WS_Y}")
    a(f"v_bfe_u32 v12, v0, 2, 2\nv_lshl_add_u32 {vY}, v12, 13, s4\nv_and_b32 v12, 3, v0\nv_lshl_add_u32 {vY}, v12, 5, {vY}")
    a(f"v_bfe_u32 v12, v0, 4, 1\nv_lshl_add_u32 {vY}, v12, 4, {vY}")
    exec_set(0xffffffff, 0)
    a(f"global_store_dwordx4 {vY}, v[8:11], {pWS} sc1")
    a(f"s_cmp_lg_u32 {sW}, 1\ns_cbranch_scc1 L_clr_done")
    a(f"s_lshl_b32 s4, {sPair}, 7\ns_lshl_b32 s5, {sSide}, 5\ns_add_u32 s4, s4, s5\ns_add_u32 s4, s4, {WS_ML}\nv_lshl_add_u32 v12, v0, 4, s4")
    a(f"s_mov_b64 exec, 3\nglobal_store_dwordx4 v12, v[8:11], {pWS} sc1")
    a("s_cmp_ge_u32 s2, 224\ns_cbranch_scc1 L_clr_done")
    a(f"s_mul_i32 s4, {sXc}, 28\ns_add_u32 s4, s4, {sXr}\ns_lshl_b32 s4, s4, 6\ns_add_u32 s4, s4, {WS_ACT}")
    a(f"s_mov_b64 exec, 15\nv_lshl_add_u32 v12, v0, 4, s4\nglobal_store_dwordx4 v12, v[8:11], {pWS} sc1")
    a("s_cmp_ge_u32 s2, 64\ns_cbranch_scc1 L_clr_done")
    exec_set(0xffffffff, 0)
    a(f"s_lshl_b32 s4, s2, 6\ns_add_u32 s4, s4, {WS_X1}\nv_and_b32 v12, 3, v0\nv_lshl_add_u32 v12, v12, 4, s4\nv_lshrrev_b32 v13, 2, v0\nv_lshl_add_u32 v12, v13, 12, v12")
    a(f"global_store_dwordx4 v12, v[8:11], {pWS} sc1")
    a("L_clr_done:")
    a(f"s_mov_b64 exec, 1\nv_mov_b32 v12, {L_CNT}\nv_mov_b32 v13, 1\ns_waitcnt vmcnt(0)")
    a(f"ds_add_rtn_u32 v14, v12, v13 offset:12\ns_waitcnt lgkmcnt(0)\nv_readfirstlane_b32 s4, v14")
    a("s_cmp_lg_u32 s4, 3\ns_cbranch_scc1 L_noc1")
    a(f"v_mov_b32 v12, 128\nglobal_atomic_add v12, v13, {pDBG} sc1")
    a("L_noc1:")
    exec_all()
    lds_wait(8, 1)
    a("v_lshrrev_b32 v18, 1, v0\nv_and_b32 v19, 1, v0")
    a("s_cmp_ge_u32 s2, 224\ns_cbranch_scc1 L_bgdown")
    a(f"s_mul_i32 s4, {sXc}, 28\ns_add_u32 s4, s4, {sXr}\ns_lshl_b32 s4, s4, 4\ns_lshl_b32 s5, {sW}, 7\nv_add_u32 v18, s5, v18")
    a(f"v_mul_u32_u24 v14, 3584, v18\nv_add_u32 v14, s4, v14\nv_cmp_eq_u32 vcc, 1, v19")
    a(f"v_mov_b32 v12, {lo(pWG)}\nv_mov_b32 v13, {hi(pWG)}\nv_mov_b32 v16, {lo(pWU)}\nv_mov_b32 v17, {hi(pWU)}")
    a("v_cndmask_b32 v12, v12, v16, vcc\nv_cndmask_b32 v13, v13, v17, vcc")
    a("v_add_co_u32 v12, vcc, v12, v14\nv_addc_co_u32 v13, vcc, 0, v13, vcc")
    dma(4, 12, None, 32 * 3584, "s10", L_SF, wait_every=1, addr64=True)
    a("s_branch L_bgwo")
    a("L_bgdown:")
    a(f"s_lshl_b32 s5, {sXc}, 2\ns_add_u32 s5, s5, {sXr}\ns_sub_u32 s5, s5, 28\ns_lshl_b32 s5, s5, 5")
    a(f"s_mul_i32 s4, {sW}, {14*32*1024}\ns_add_u32 s4, s4, s5\ns_mul_i32 s6, {sW}, {14*1024}")
    a(f"v_lshlrev_b32 v12, 10, v18\nv_lshlrev_b32 v13, 4, v19\nv_add3_u32 v12, v12, v13, s4")
    dma(14, 12, pWD, 32 * 1024, "s6", L_SF, wait_every=1)
    a("L_bgwo:")
    a(f"s_lshl_b32 s4, {sH}, 17\ns_lshl_b32 s5, {sW}, 8\ns_add_u32 s4, s4, s5")
    a(f"v_lshl_add_u32 v12, {vG}, 15, s4\nv_lshl_add_u32 v12, {vJ}, 4, v12")
    for t in range(32):
        a(f"global_load_dwordx4 {vr(128+4*t)}, v12, {pWO} offset:{(t&3)*1024} {wpol}")
        if t & 3 == 3: a("v_add_u32 v12, 4096, v12")
        a("s_waitcnt vmcnt(0)")
    a("v_and_b32 v12, 1, v0\nv_cmp_eq_u32 vcc, 1, v12\nv_bfe_u32 v13, v0, 1, 2\nv_mov_b32 v16, 0x0c0c0c0c")
    for par, Bs in enumerate((0x0100, 0x0302)):
        a(f"v_mov_b32 v14, {hex(0x0c0c0000 | Bs)}\nv_mov_b32 v15, {hex((Bs << 16) | 0x0c0c)}\nv_cndmask_b32 v{17+par}, v14, v15, vcc")
    for r in range(4):
        a(f"v_cmp_eq_u32 vcc, {r}, v13\nv_cndmask_b32 v{96+r}, v16, v17, vcc\nv_cndmask_b32 v{100+r}, v16, v18, vcc")
    L, Dn = a.label("Lc1"), a.label("Lc1d")
    a(f"s_mov_b32 {sTO}, {TO}\nv_mov_b32 v12, 128")
    a(f"{L}:\nglobal_load_dword v13, v12, {pDBG} sc1\ns_waitcnt vmcnt(0)\nv_readfirstlane_b32 s4, v13")
    a(f"s_cmp_ge_u32 s4, 256\ns_cbranch_scc1 {Dn}\ns_sub_u32 {sTO}, {sTO}, 1\ns_cbranch_scc1 {Dn}\ns_sleep 16\ns_branch {L}\n{Dn}:")
    a(f"s_lshl_b32 s4, {sW}, 11\ns_add_u32 s4, s4, {WS_MODN + 32768}\nv_lshl_add_u32 v12, v0, 5, s4\nv_add_u32 v13, 32768, v12")
    modn_sum(104, 2, "v12", 28)
    modn_sum(112, 2, "v13", 28)
    for i in range(8): a(f"v_add_f32 v{112+i}, 1.0, v{112+i}")
    rndn(112, 8, 28)
    a(f"s_lshl_b32 s4, {sPair}, 7\ns_add_u32 s4, s4, {WS_ML}\nv_and_b32 v14, 7, v0\nv_lshl_add_u32 v14, v14, 3, s4")
    poll([f"global_load_dwordx2 v[20:21], v14, {pWS} sc1"], ["v20", "v21"], "v15", sleep=32)
    a("v_mov_b32 v22, v20")
    for sh in (4, 2, 1): a(f"v_max_f32_dpp v22, v22, v22 row_ror:{sh} row_mask:0xf bank_mask:0xf")
    a(f"v_sub_f32 v20, v20, v22\nv_mul_f32 v20, {hex(LOG2E)}, v20\nv_exp_f32 v20, v20\nv_mul_f32 v21, v21, v20")
    for sh in (4, 2, 1): a(f"v_add_f32_dpp v21, v21, v21 row_ror:{sh} row_mask:0xf bank_mask:0xf")
    a("v_rcp_f32 v21, v21\nv_mul_f32 v20, v20, v21")
    a(f"s_lshl_b32 s4, {sSide}, 2")
    for w in range(4):
        a(f"v_readlane_b32 s{12+w}, v20, s4\ns_add_u32 s4, s4, 1")
    a(f"v_lshlrev_b32 v20, 3, v0")
    a(f"s_lshl_b32 s4, {sW}, 9\ns_add_u32 s4, s4, {L_OB}\nv_lshl_add_u32 v21, v0, 2, s4")
    a(f"v_bfe_u32 v22, v0, 3, 1\nv_lshl_add_u32 v22, v22, 8, s4\nv_lshl_add_u32 v22, {vG}, 6, v22")
    a(f"s_and_b32 s4, {sXc}, {xrep-1}\ns_lshl_b32 s4, s4, 12\ns_lshl_b32 s5, {sW}, 10\ns_add_u32 s4, s4, s5\ns_add_u32 s4, s4, {WS_X1}\nv_lshl_add_u32 v23, v0, 4, s4")
    a(f"v_lshl_add_u32 v24, v0, 4, s5")
    stamp(6)
    a("s_waitcnt vmcnt(0) lgkmcnt(0)\ns_barrier")
    stamp(7)
    for w in range(4): a(f"ds_read_b64 v[{28+2*w}:{29+2*w}], v20 offset:{L_OP+w*1024}")
    a("s_waitcnt lgkmcnt(0)")
    a("v_mul_f32 v36, s12, v28\nv_mul_f32 v37, s12, v29")
    for w in range(1, 4): a(f"v_fmac_f32 v36, s{12+w}, v{28+2*w}\nv_fmac_f32 v37, s{12+w}, v{29+2*w}")
    a("v_cvt_pk_bf16_f32 v38, v36, v37\nv_lshlrev_b32 v39, 16, v38\nv_and_b32 v40, 0xffff0000, v38\nds_write_b32 v21, v38")
    a("v_sub_f32 v36, v36, v39\nv_sub_f32 v37, v37, v40\nv_cvt_pk_bf16_f32 v39, v36, v37\nds_write_b32 v21, v39 offset:256")
    for i in range(4): a(f"ds_read_b128 {vr(64+4*i)}, v22 offset:{16*i}")
    for t in range(32):
        if t % 8 == 0: a(f"s_waitcnt lgkmcnt({3 - t//8})")
        A = 80 + 4 * (t % 3)
        for r in range(4): a(f"v_perm_b32 v{A+r}, v{64+(t>>1)}, v{64+(t>>1)}, v{96+4*(t&1)+r}")
        if t > 0:
            Ap = 80 + 4 * ((t - 1) % 3)
            a(f"v_mfma_f32_16x16x32_bf16 v[36:39], {vr(Ap)}, {vr(128+4*(t-1))}, {'0' if t == 1 else 'v[36:39]'}")
    a(f"v_mfma_f32_16x16x32_bf16 v[36:39], {vr(80+4*(31%3))}, {vr(128+4*31)}, v[36:39]")
    for r in range(4): a(f"v_mov_b32 v{40+r}, v{36+r}")
    for r in range(4): a(f"v_permlane32_swap_b32 v{36+r}, v{40+r}")
    for r in range(4): a(f"v_add_f32 v{36+r}, v{36+r}, v{40+r}")
    for r in range(4): a(f"v_min_u32 v{36+r}, -2, v{36+r}")
    exec_set(0xffffffff, 0)
    a(f"global_store_dwordx4 {vY}, v[36:39], {pWS} sc1")
    exec_all()
    stamp(8)
    a("s_cmp_ge_u32 s2, 224\ns_cbranch_scc1 L_down")
    poll([f"global_load_dwordx4 v[28:31], v23, {pWS} sc1"], ["v28", "v29", "v30", "v31"], "v15")
    stamp(9)
    unpack(40, 28, 4)
    a("v_add_f32 v36, v40, v41\nv_add_f32 v38, v42, v43\nv_add_f32 v39, v44, v45\nv_add_f32 v48, v46, v47")
    a("v_add_f32 v36, v36, v38\nv_add_f32 v39, v39, v48\nv_add_f32 v36, v36, v39")
    wave_reduce("v_add_f32", ["v36"], ["v38"])
    a("v_mul_f32 v36, 0x3b000000, v36")
    for i in range(8): a(f"v_sub_f32 v{40+i}, v{40+i}, v36")
    a("v_mul_f32 v37, v40, v40\nv_mul_f32 v38, v41, v41")
    for i in range(2, 8): a(f"v_fmac_f32 v{37+(i&1)}, v{40+i}, v{40+i}")
    a("v_add_f32 v37, v37, v38")
    for i in range(8): a(f"v_mul_f32 v{40+i}, v{40+i}, v{112+i}")
    wave_reduce("v_add_f32", ["v37"], ["v38"])
    a("v_mov_b32 v38, 0x3727c5ac\nv_fmac_f32 v38, 0x3b000000, v37\nv_rsq_f32 v38, v38")
    for i in range(8): a(f"v_fma_f32 v{40+i}, v{40+i}, v38, v{104+i}")
    for i in range(4): a(f"v_cvt_pk_bf16_f32 v{28+i}, v{40+2*i}, v{41+2*i}")
    a(f"ds_write_b128 v24, v[28:31] offset:{L_H2}\ns_waitcnt lgkmcnt(0)\ns_barrier")
    stamp(10)
    stamps_out(range(13))
    a("L_end:\ns_endpgm")
    body, nops = a.finalize()
    tail = f""".section .rodata,"a"
.p2align 6
.amdhsa_kernel {KN}
  .amdhsa_next_free_vgpr 256
  .amdhsa_next_free_sgpr 102
  .amdhsa_accum_offset 256
  .amdhsa_group_segment_fixed_size 0
  .amdhsa_kernarg_size 112
  .amdhsa_user_sgpr_count 2
  .amdhsa_user_sgpr_kernarg_segment_ptr 1
  .amdhsa_system_sgpr_workgroup_id_x 1
  .amdhsa_float_denorm_mode_32 3
.end_amdhsa_kernel
"""
    body = body.replace("    ; @launch", "; @launch", 1)
    return body + tail

if __name__ == "__main__":
    kw = eval("dict(" + (sys.argv[2] if len(sys.argv) > 2 else "") + ")")
    open(sys.argv[1], "w").write(gen(**kw))
```

```python
import sys
from asmlib import Asm

KN = "adaLN_cond__mha_block_cached__geglu_ffn__decode_kernel"

WS_EP   = 0x0000
WS_W    = 0x4000
WS_MODF = 0x8000
WS_ACT  = 0x10000
WS_MODP = 0x20000
WS_MODN = 0x30000
WS_XM   = 0x50000
WS_X1   = 0x60000
WS_Y    = 0x80000
WS_QP   = 0x100000
WS_XS   = 0x200000
WS_WDF  = 0xC000
WS_WD2  = 0x600000
WS_ST   = 0x800000
L_CNT  = 0x0000
L_QB   = 0x0100
L_G    = 0x0200
L_N    = 0x0400
L_PM   = 0x0800
L_OP   = 0x2800
L_OB   = 0x3000
L_H2   = 0x3800
L_SA   = 0x5000
L_SB   = 0x9000
L_SC   = 0xD000
L_SF   = 0x15000
LDS_SIZE = 0x15000 + 64 * 1024
C_MOD, C_N, C_Q, C_KD, C_LIM, C_XT, C_REF = 0, 4, 8, 12, 16, 20, 28
C_PROG, C_ML = 32, 64
C_END, C_F = 48, 52

LOG2E = 0x3fb8aa3b
SCALE = 0x3db504f3

pX, pK, pV, pWQ, pWO, pBX, pWG, pWU, pWD, pC, pWM, pOUT, pDBG, pWS = [f"s[{16+2*i}:{17+2*i}]" for i in range(14)]
def lo(p): return "s" + p[2:p.index(":")]
def hi(p): return "s" + p[p.index(":")+1:-1]
SRDC, SRDN = "s[44:47]", "s[48:51]"
sTC, sTN, sOF, sLC = "s52", "s53", "s54", "s55"
sB, sH, sSide, sPair, sTO, sW = "s56", "s57", "s58", "s59", "s60", "s61"
sM1, sM2, sM3 = "s[62:63]", "s[64:65]", "s[66:67]"
sXc, sXr = "s68", "s69"
sTag = ["s98", "s99", "s100", "s101"]
sCh = "s15"
sT = "s14"

def vr(b, n=4): return f"v[{b}:{b+n-1}]"
def vl(b, n): return [f"v{b+i}" for i in range(n)]

def gen(D=6, Df=8, bits=(10,11,15,12,13,14,16,17,18,19), S=12, TH=6, KMAX=4, KSH=2, pairx=3, stamps=False, wpol="", xrep=8,
        TO=1 << 17, kvpol="nt", PR=1, PGAP=5, NRED=1, RGAP=8, BGD=1, xsleep=0, ysleep=0, asleep=0, x2stage=1, wdpol='sc1', xspol='sc1', nowo=0, noffn=0, fpol=None, klin=0, now7=0, nokwork=0, trace=0, latemf=0, nowdf=1, wox=1, dpat=0, remap=0, PRE=10, dshift=0, pref=1, EX=1, lateout=0, afull=1, a2stage=1, touch=0):
    a = Asm()
    def stamp(k):
        if stamps: a(f"s_memrealtime s[{70+2*k}:{71+2*k}]")
    def stamps_out(ks, late=True):
        if not stamps: return
        a("s_waitcnt lgkmcnt(0)")
        if lateout and late: a("s_sleep 127\ns_sleep 127\ns_sleep 127")
        a("s_mov_b64 exec, 1")
        a("s_lshl_b32 s4, s2, 3\ns_add_u32 s4, s4, s3\ns_lshl_b32 s4, s4, 6")
        a(f"s_add_u32 s4, s4, {WS_ST}\nv_mov_b32 v1, s4")
        for k in ks:
            a(f"v_mov_b32 v2, s{70+2*k}\nglobal_store_dword v1, v2, {pWS} offset:{4*k}")
    def tr():
        if trace:
            a("s_memrealtime s[96:97]\ns_waitcnt lgkmcnt(0)\ns_mov_b32 m0, s27\nv_writelane_b32 v63, s96, m0\ns_add_u32 s27, s27, 1")
    def exec_set(lo_, hi_):
        a(f"s_mov_b32 exec_lo, {hex(lo_)}\ns_mov_b32 exec_hi, {hex(hi_)}")
    def exec_all(): a("s_mov_b64 exec, -1")
    def tree(op2, op3, t, r):
        r = list(r)
        if len(r) % 2 == 0:
            a(f"{op2} {t}, {r[0]}, {r[1]}"); r = r[2:]
        else:
            a(f"{op3} {t}, {r[0]}, {r[1]}, {r[2]}"); r = r[3:]
        while r:
            a(f"{op3} {t}, {t}, {r[0]}, {r[1]}"); r = r[2:]
    def check(n, src, dst, tmp, tagged, younger):
        if tagged:
            for i in range(n):
                a(f"s_waitcnt vmcnt({younger+n-1-i})")
                for k in range(4): a(f"v_xor_b32 v{dst+4*i+k}, {sTag[k]}, v{src+4*i+k}")
            tree("v_or_b32", "v_or3_b32", tmp, vl(dst, 4 * n))
            a(f"v_and_b32 {tmp}, 0xff, {tmp}\nv_cmp_ne_u32 vcc, 0, {tmp}")
        else:
            a(f"s_waitcnt vmcnt({younger})")
            tree("v_max_u32", "v_max3_u32", tmp, vl(src, 4 * n))
            a(f"v_cmp_eq_u32 vcc, -1, {tmp}")
            if dst != src:
                for i in range(4 * n): a(f"v_mov_b32 v{dst+i}, v{src+i}")
        a("s_cmp_eq_u64 vcc, 0")
    def poll(addrs, dst, tmp, sleep=0, tagged=True, first_plain=False):
        L, Dn = a.label("Lpoll"), a.label("Lpdone")
        n = len(addrs)
        a(f"s_mov_b32 {sTO}, {TO}")
        if first_plain:
            Lc = a.label("Lpchk")
            for i, (va, off) in enumerate(addrs): a(f"global_load_dwordx4 {vr(dst+4*i)}, {va}, {pWS} offset:{off}")
            a(f"s_branch {Lc}")
        a(f"{L}:")
        for i, (va, off) in enumerate(addrs): a(f"global_load_dwordx4 {vr(dst+4*i)}, {va}, {pWS} offset:{off} sc1")
        if first_plain: a(f"{Lc}:")
        check(n, dst, dst, tmp, tagged, 0)
        a(f"s_cbranch_scc1 {Dn}\ns_sub_u32 {sTO}, {sTO}, 1\ns_cbranch_scc1 {Dn}")
        if sleep: a(f"s_sleep {sleep}")
        a(f"s_branch {L}\n{Dn}:")
    def ppoll(addrs, dst, buf, tmp, tagged=True, sleep=0):
        if PR == 1: return poll(addrs, dst, tmp, tagged=tagged, sleep=sleep)
        L, Dn = a.label("Lpp"), a.label("Lppd")
        n = len(addrs)
        def iss(r):
            for i, (va, off) in enumerate(addrs): a(f"global_load_dwordx4 {vr(buf+4*(n*r+i))}, {va}, {pWS} offset:{off} sc1")
        a(f"s_mov_b32 {sTO}, {TO}")
        for r in range(PR - 1):
            iss(r); a(f"s_sleep {PGAP}")
        a(f"{L}:")
        for r in range(PR):
            iss((r + PR - 1) % PR)
            check(n, buf + 4 * n * r, dst, tmp, tagged, n * (PR - 1))
            a(f"s_cbranch_scc1 {Dn}")
        a(f"s_sub_u32 {sTO}, {sTO}, 1\ns_cbranch_scc0 {L}\n{Dn}:")
    def tag(base, n4, vff):
        for i in range(n4):
            for k in range(4): a(f"v_bfi_b32 v{base+4*i+k}, {vff}, {sTag[k]}, v{base+4*i+k}")
    def lds_wait(off, val, va="v12", vt="v13", sleep=1):
        L, Dn = a.label("Llw"), a.label("Llwd")
        a(f"v_mov_b32 {va}, {L_CNT}")
        a(f"{L}:\nds_read_b32 {vt}, {va} offset:{off}\ns_waitcnt lgkmcnt(0)\nv_readfirstlane_b32 s4, {vt}")
        a(f"s_cmp_ge_u32 s4, {val}\ns_cbranch_scc1 {Dn}\ns_sleep {sleep}\ns_branch {L}\n{Dn}:")
    def lds_inc(off, va="v12", vt="v13"):
        a(f"s_mov_b64 exec, 1\nv_mov_b32 {va}, {L_CNT}\nv_mov_b32 {vt}, 1\ns_waitcnt lgkmcnt(0)\nds_add_u32 {va}, {vt} offset:{off}")
        exec_all()
    def swap_add(pl, op, regs, tmps):
        for r, t in zip(regs, tmps): a(f"v_mov_b32 {t}, {r}")
        for r, t in zip(regs, tmps): a(f"{pl} {r}, {t}")
        for r, t in zip(regs, tmps): a(f"{op} {r}, {r}, {t}")
    def ror(op, regs, sh):
        for r in regs: a(f"{op}_dpp {r}, {r}, {r} row_ror:{sh} row_mask:0xf bank_mask:0xf")
    def wave_reduce(op, regs, tmps):
        for sh in (8, 4, 2, 1): ror(op, regs, sh)
        for pl in ("v_permlane16_swap_b32", "v_permlane32_swap_b32"): swap_add(pl, op, regs, tmps)
    def rnd2(x0, x1, t):
        a(f"v_cvt_pk_bf16_f32 {t}, {x0}, {x1}\nv_lshlrev_b32 {x0}, 16, {t}\nv_and_b32 {x1}, 0xffff0000, {t}")
    def rndn(base, n, tb):
        for i in range(n // 2): a(f"v_cvt_pk_bf16_f32 v{tb+i}, v{base+2*i}, v{base+2*i+1}")
        unpack(base, tb, n // 2)
    def unpack(dst, src, n):
        for i in range(n):
            a(f"v_lshlrev_b32 v{dst+2*i}, 16, v{src+i}\nv_and_b32 v{dst+2*i+1}, 0xffff0000, v{src+i}")
    def pkadd(d, x, y, n):
        for i in range(0, n, 2): a(f"v_pk_add_f32 v[{d+i}:{d+i+1}], v[{x+i}:{x+i+1}], v[{y+i}:{y+i+1}]")
    def make_tags():
        a(f"s_mul_i32 {sT}, {sT}, 0x41c64e6d\ns_add_u32 {sT}, {sT}, 0x9e3779b1")
        for k in range(4): a(f"s_bfe_u32 {sTag[k]}, {sT}, {hex(0x80000 + 8*k)}")

    a(f"; @launch grid=(256,1,1) block=(512,1,1) lds={LDS_SIZE}")
    a('.amdgcn_target "amdgcn-amd-amdhsa--gfx950"')
    a(f".text\n.globl {KN}\n.p2align 8\n.type {KN},@function\n{KN}:")
    a("s_cmp_ge_u32 s2, 256\ns_cbranch_scc1 L_end")
    a("s_load_dwordx16 s[16:31], s[0:1], 0\ns_load_dwordx8 s[32:39], s[0:1], 64\ns_load_dwordx4 s[40:43], s[0:1], 96")
    a("v_lshrrev_b32 v1, 6, v0\nv_and_b32 v0, 63, v0\nv_readfirstlane_b32 s3, v1")
    a(f"v_lshlrev_b32 v12, 2, v0\nv_mov_b32 v13, 0\nds_write_b32 v12, v13 offset:{L_CNT}")
    if pairx == 3:
        a(f"s_lshr_b32 s4, s2, 1\ns_and_b32 {sSide}, s4, 1\ns_xor_b32 s4, s4, s2\ns_and_b32 s4, s4, 1\ns_lshr_b32 {sPair}, s2, 2\ns_lshl_b32 {sPair}, {sPair}, 1\ns_or_b32 {sPair}, {sPair}, s4")
    else:
        a(f"s_and_b32 {sSide}, s2, 1\ns_lshr_b32 {sPair}, s2, 1")
    a(f"s_lshr_b32 {sB}, s2, 6\ns_and_b32 {sH}, {sPair}, 31\ns_lshl_b32 {sCh}, {sPair}, 1\ns_or_b32 {sCh}, {sCh}, {sSide}")
    if remap:
        a(f"s_xor_b32 s4, {sSide}, 1\ns_lshl_b32 s4, s4, 5\ns_cmp_ge_u32 s2, 192\ns_cselect_b32 s4, s4, 0\ns_xor_b32 s2, s2, s4")
    a(f"s_and_b32 {sXc}, s2, 7\ns_lshr_b32 {sXr}, s2, 3\ns_and_b32 {sW}, s3, 3")
    a("s_cmp_ge_u32 s3, 4\ns_cbranch_scc1 L_helper")

    vK, vV, vNxt, vSp, vM, vL, vS, vP, vNM = "v1", "v2", "v4", "v5", "v6", "v7", "v8", "v9", "v10"
    T0 = 12; BQ = 20; DD = 36
    RING = 64; X0 = 128; X1 = 192
    a(f"v_and_b32 v12, 15, v0\nv_lshrrev_b32 v13, 4, v0")
    a(f"v_lshlrev_b32 {vK}, 6, v12\nv_lshl_add_u32 {vK}, v13, 4, {vK}")
    a(f"v_lshlrev_b32 {vV}, 4, v0")
    if klin: a(f"v_mov_b32 {vK}, {vV}")
    a(f"s_and_b32 s4, s3, 1\ns_lshl_b32 s4, s4, {bits[0]}\ns_lshr_b32 s5, s3, 1\ns_lshl_b32 s5, s5, {bits[1]}\ns_add_u32 s4, s4, s5")
    a(f"v_add_u32 {vK}, s4, {vK}\nv_add_u32 {vV}, s4, {vV}")
    a(f"s_lshl_b32 s5, {sCh}, 20")
    a("s_waitcnt lgkmcnt(0)")
    stamp(0)
    a(f"s_add_u32 s44, {lo(pK)}, s5\ns_addc_u32 s45, {hi(pK)}, 0\ns_mov_b32 s46, 0x100000\ns_mov_b32 s47, 0x20000")
    assert 5 <= D <= 8
    ubits = list(bits[4:10]) + [20]
    def uoff(U): return sum(((U >> k) & 1) << ubits[k] for k in range(7))
    def uoff_s(dst, src):
        k = 0; first = True
        while k < 7:
            e = k
            while e + 1 < 7 and ubits[e + 1] == ubits[e] + 1: e += 1
            t = dst if first else "s4"
            a(f"s_bfe_u32 {t}, {src}, {hex(((e - k + 1) << 16) + k)}\ns_lshl_b32 {t}, {t}, {ubits[k]}")
            if not first: a(f"s_or_b32 {dst}, {dst}, s4")
            first = False; k = e + 1
    def issue(p, slot, va, srd, st):
        o_ = sum(((p >> k) & 1) << bits[2 + k] for k in range(4))
        so, imm = o_ & ~4095, o_ & 4095
        if isinstance(st, int): a(f"s_mov_b32 {sOF}, {st+so}"); o = sOF
        elif so: a(f"s_add_u32 {sOF}, {st}, {so}"); o = sOF
        else: o = st
        if slot is None:
            a(f"s_add_u32 m0, s10, {p*1024 - imm}")
            a(f"buffer_load_dwordx4 {va}, {srd}, {o} offen offset:{imm} {kvpol} lds")
        else:
            a(f"buffer_load_dwordx4 {vr(slot)}, {va}, {srd}, {o} offen offset:{imm} {kvpol}")
    NB = 4
    order = [(0, X0), (1, None), (2, X1), (3, RING)]
    fill = [(t, p, None if base is None else base + 4 * p) for t, base in order for p in range(16)]
    for idx, (t, p, slot) in enumerate(fill):
        if idx == Df:
            a("s_barrier")
            a(f"s_load_dword {sT}, {pWS}, {WS_EP}")
            a(f"s_mov_b32 s48, s44\ns_mov_b32 s49, s45\ns_mov_b32 s50, 0x100000\ns_mov_b32 s51, 0x20000")
            a(f"s_mov_b32 s62, 0x22222222\ns_mov_b32 s63, 0x22222222\ns_mov_b32 s64, 0x44444444\ns_mov_b32 s65, 0x44444444")
            a(f"s_mov_b32 s66, 0x88888888\ns_mov_b32 s67, 0x88888888")
            a(f"s_lshl_b32 s4, s3, 13\ns_lshl_b32 s5, {sSide}, 12\ns_add_u32 s4, s4, s5\ns_add_u32 s4, s4, {L_SC}")
            a(f"v_and_b32 v12, 3, v0\nv_lshl_add_u32 {vSp}, v12, 6, s4\nv_and_b32 v12, 60, v0\nv_add_u32 {vSp}, v12, {vSp}")
            a(f"v_mov_b32 {vM}, 0xff7fffff\nv_mov_b32 {vL}, 0")
            a(f"v_mov_b32 {vNxt}, {vK}")
            a(f"s_lshl_b32 s10, s3, 14\ns_add_u32 s10, s10, {L_SF}")
        if idx >= Df: a(f"s_waitcnt vmcnt({Df-1})")
        if idx == Df: stamp(8)
        if idx == 16 + Df - 1: stamp(9)
        if idx == 32 + Df - 1: stamp(10)
        issue(p, slot, vK, SRDC, uoff(4 * t))
    stamp(1)
    lds_wait(C_Q, 1)
    stamp(2)
    a(f"v_and_b32 v12, 3, v0\nv_lshlrev_b32 v12, 6, v12\nv_lshrrev_b32 v13, 4, v0\nv_lshl_add_u32 v12, v13, 4, v12\nds_read_b128 v[16:19], v12 offset:{L_QB}")
    a("v_bfe_u32 v13, v0, 2, 2")
    make_tags()
    a("s_waitcnt lgkmcnt(0)")
    for t in range(4):
        a(f"v_cmp_eq_u32 vcc, {t}, v13")
        for r in range(4): a(f"v_cndmask_b32 v{BQ+4*t+r}, 0, v{16+r}, vcc")
    def k_step(n, slot):
        u, t = n >> 2, n & 3
        d = vr(DD + 4 * u)
        a(f"v_mfma_f32_16x16x32_bf16 {d}, {vr(slot)}, {vr(BQ+4*t)}, {'0' if t == 0 else d}")
    def k_group(u):
        T = T0 + u
        o = [(u + i) & 3 for i in (1, 2, 3)]
        a(f"v_add_f32_dpp v{T}, v{DD+4*u+o[0]}, v{DD+4*u+u} quad_perm:[{o[0]},{o[0]},{o[0]},{o[0]}] row_mask:0xf bank_mask:0xf")
        for x in o[1:]:
            a(f"v_add_f32_dpp v{T}, v{DD+4*u+x}, v{T} quad_perm:[{x},{x},{x},{x}] row_mask:0xf bank_mask:0xf")
    def k_finish(off):
        a(f"v_cndmask_b32 v12, v12, v13, {sM1}\nv_cndmask_b32 v12, v12, v14, {sM2}\nv_cndmask_b32 v12, v12, v15, {sM3}")
        a(f"v_cvt_pk_bf16_f32 v12, v12, v12\nv_and_b32 v12, 0xffff0000, v12\nv_mul_f32 v12, {hex(SCALE)}, v12")
        a(f"v_cvt_pk_bf16_f32 v12, v12, v12\nv_and_b32 v12, 0xffff0000, v12")
        a(f"ds_write_b32 {vSp}, v12 offset:{off}")
        a(f"v_max_f32 v13, {vM}, v12\nv_sub_f32 v14, {vM}, v13\nv_sub_f32 v15, v12, v13")
        a(f"v_mul_f32 v14, {hex(LOG2E)}, v14\nv_mul_f32 v15, {hex(LOG2E)}, v15\nv_exp_f32 v14, v14\nv_exp_f32 v15, v15")
        a(f"v_mov_b32 {vM}, v13\nv_fma_f32 {vL}, {vL}, v14, v15")
    def k_tile(base, off, pre=None, post=None):
        for n in range(16):
            if pre: pre(n)
            k_step(n, base + 4 * n)
            if post: post(n)
            if n & 3 == 0 and n and not nokwork: k_group((n >> 2) - 1)
        if not nokwork: k_group(3)
        k_finish(off)
    k_tile(RING, (NB - 1) * 256, pre=lambda n: a("s_waitcnt vmcnt(15)"), post=lambda n: issue(n, RING + 4 * n, vK, SRDC, uoff(4 * NB)))
    k_tile(X0, 0)
    a(f"v_lshl_add_u32 v16, v0, 4, s10")
    for p in range(16):
        a(f"ds_read_b128 {vr(X0+4*p)}, v16 offset:{p*1024}")
        if p == 7: a("s_waitcnt lgkmcnt(0)")
    k_tile(X1, 2 * 256)
    lds_inc(C_XT, "v16", "v17")
    k_tile(X0, 256)
    def preB(n):
        if n + D >= 16:
            issue(n + D - 16, RING + 4 * (n + D - 16), vK, SRDC, uoff(4 * NB + 4)); a(f"s_waitcnt vmcnt({D})")
        else: a(f"s_waitcnt vmcnt({15-n})")
    k_tile(RING, NB * 256, pre=preB)
    stamp(3)
    if trace: a("s_mov_b32 s27, 0\nv_mov_b32 v63, 0")
    tr()
    sN0, sN1, sStep, sN, sEnd, sU0 = sTN, "s11", "s12", sLC, "s13", "s8"
    a(f"s_mov_b32 {sN0}, {uoff(4*NB+4)}\ns_mov_b32 {sN}, {4*NB+4}\nv_add_u32 {vSp}, {(NB+1)*256}, {vSp}")
    a(f"s_lshl_b32 s5, {sPair}, 21\ns_add_u32 s6, {lo(pV)}, s5\ns_addc_u32 s7, {hi(pV)}, 0")
    a(f"s_mul_i32 {sU0}, {sSide}, 127\ns_lshl_b32 s4, {sSide}, 1\ns_sub_u32 {sStep}, 1, s4")
    def pre_steady(n):
        p = n + D
        if p < 16: issue(p, RING + 4 * p, vK, SRDC, sTC)
        else: issue((p - 16) & 3, RING + 4 * (p - 16), vNxt, SRDN, sN0 if p < 20 else sN1)
    a("L_kloop:")
    a(f"s_mov_b32 {sTC}, {sN0}\ns_add_u32 {sN}, {sN}, 4")
    uoff_s(sN0, sN)
    a(f"s_add_u32 {sN1}, {sN0}, {uoff(1)}")
    a(f"s_cmp_lg_u32 {sN}, 64\ns_cbranch_scc1 L_knosw")
    a(f"s_mov_b32 s48, s6\ns_mov_b32 s49, s7\ns_mov_b32 s50, 0x200000\nv_mov_b32 {vNxt}, {vV}")
    uoff_s(sN0, sU0)
    a(f"s_add_u32 s5, {sU0}, {sStep}")
    uoff_s(sN1, "s5")
    a("L_knosw:")
    k_tile(RING, 0, pre=lambda n: (pre_steady(n), a(f"s_waitcnt vmcnt({D})")))
    a(f"v_add_u32 {vSp}, 256, {vSp}")
    tr()
    a(f"s_cmp_lg_u32 {sN}, 64\ns_cbranch_scc1 L_kloop")
    stamp(4)
    sUa, sUb, sNx = sN1, sN0, sTC
    vCn, vLim, vPg, vSt = "v3", "v4", "v11", "v1"
    a(f"s_add_u32 {sNx}, {sU0}, {sStep}\ns_add_u32 {sNx}, {sNx}, {sStep}")
    a(f"s_lshl_b32 s4, s3, 13\ns_lshl_b32 s5, {sU0}, 6\ns_add_u32 s4, s4, s5\ns_add_u32 s4, s4, {L_SC}")
    a(f"v_and_b32 v12, 3, v0\nv_lshl_add_u32 {vSp}, v12, 2, s4\nv_and_b32 v12, 48, v0\nv_add_u32 {vSp}, v12, {vSp}")
    a(f"ds_read_b32 {vS}, {vSp}")
    a(f"s_lshl_b32 s4, {sStep}, 6\nv_mov_b32 {vSt}, s4\nv_mov_b32 {vCn}, {L_CNT}\nv_mov_b32 {vLim}, 0")
    a(f"v_mov_b32 v12, {vM}")
    wave_reduce("v_max_f32", ["v12"], ["v13"])
    a(f"v_sub_f32 v14, {vM}, v12\nv_mul_f32 v14, {hex(LOG2E)}, v14\nv_exp_f32 v14, v14\nv_mul_f32 v13, {vL}, v14")
    wave_reduce("v_add_f32", ["v13"], ["v14"])
    a(f"v_mul_f32 {vNM}, {hex(LOG2E | 0x80000000)}, v12")
    a(f"s_lshl_b32 s4, s3, 3\nv_mov_b32 v14, s4\ns_lshl_b32 s4, s3, 2\nv_mov_b32 {vPg}, s4\nv_mov_b32 v15, 1")
    a(f"s_mov_b64 exec, 1\nds_write_b64 v14, v[12:13] offset:{L_CNT+C_ML}\nds_add_u32 {vCn}, v15 offset:{C_KD}")
    exec_all()
    ACC, AS, MK = DD, DD + 4, DD + 12
    a("v_and_b32 v12, 1, v0\nv_lshlrev_b32 v12, 4, v12\nv_mov_b32 v13, 0xffff\nv_lshlrev_b32 v12, v12, v13\nv_bfe_u32 v13, v0, 1, 3")
    for r in range(4):
        a(f"v_cmp_eq_u32 vcc, {r}, v13\nv_cndmask_b32 v{MK+r}, 0, v12, vcc\nv_mov_b32 v{ACC+r}, 0")
    a(f"s_mov_b32 s9, {hex(LOG2E)}\ns_mov_b32 {sN}, 0\ns_mov_b32 {sEnd}, 0xffff")
    a("v_and_b32 v16, 15, v0\nv_lshlrev_b32 v16, 5, v16\nv_bfe_u32 v13, v0, 4, 1\nv_lshl_add_u32 v16, v13, 4, v16\ns_lshl_b32 s4, s3, 9\nv_add_u32 v16, s4, v16")
    a("L_vloop:")
    a(f"s_cmp_lg_u32 {sN}, {4*S}\ns_cbranch_scc1 L_vnosw")
    a(f"ds_read_b32 v12, {vCn} offset:{C_REF}\ns_waitcnt lgkmcnt(0)")
    a(f"v_add_f32 v13, {vNM}, v12\nv_sub_f32 {vNM}, 0, v12\nv_exp_f32 v13, -v13")
    for r in range(4): a(f"v_mul_f32 v{ACC+r}, v{ACC+r}, v13")
    a(f"s_cmp_eq_u32 {sN}, {sEnd}\ns_cbranch_scc1 L_vdone")
    a("L_vnosw:")
    for c in range(4):
        Lchk, Lok, Lgo = a.label("Lchk"), a.label("Lok"), a.label("Lgo")
        a("s_waitcnt lgkmcnt(0)")
        a(f"v_fma_f32 {vP}, {vS}, s9, {vNM}\nv_add_u32 {vSp}, {vSt}, {vSp}\nv_exp_f32 {vP}, {vP}\nv_mov_b32 v12, {sN}")
        a(f"ds_write_b32 {vPg}, v12 offset:{L_CNT+C_PROG}")
        a(f"{Lchk}:")
        a(f"v_readfirstlane_b32 s4, {vLim}")
        a(f"s_and_b32 s5, s4, 0xffff\ns_add_u32 s5, s5, {4*S-2}\ns_cmp_lt_u32 {sN}, s5\ns_cbranch_scc1 {Lok}")
        a(f"s_mov_b32 {sUb}, 0x40000000\ns_add_u32 {sEnd}, s5, 2\ns_bitcmp1_b32 s4, 16\ns_cbranch_scc1 {Lgo}")
        a(f"s_mov_b32 {sEnd}, 0xffff\nds_read_b32 {vLim}, {vCn} offset:{C_LIM}\ns_waitcnt lgkmcnt(0)\ns_branch {Lchk}")
        a(f"{Lok}:")
        uoff_s(sUb, sNx)
        a(f"s_add_u32 {sNx}, {sNx}, {sStep}")
        a(f"{Lgo}:")
        a(f"v_cvt_pk_bf16_f32 {vP}, {vP}, {vP}")
        a(f"ds_read_b32 {vS}, {vSp}\nds_read_b32 {vLim}, {vCn} offset:{C_LIM}")
        for t in range(4):
            n = 4 * c + t
            idx = t + D
            issue(idx & 3, RING + 4 * ((n + D) & 15), vV, SRDN, sUa if idx < 8 else sUb)
            A = AS + 4 * (n & 1)
            for r in range(4):
                a(f"v_and_b32_dpp v{A+r}, {vP}, v{MK+r} row_newbcast:{t} row_mask:0xf bank_mask:0xf")
            a(f"s_waitcnt vmcnt({D})")
            a(f"v_mfma_f32_16x16x32_bf16 {vr(ACC)}, {vr(A)}, {vr(RING+4*n)}, {vr(ACC)}")
        a(f"s_mov_b32 {sUa}, {sUb}\ns_add_u32 {sN}, {sN}, 1")
        if c < 3: a(f"s_cmp_eq_u32 {sN}, {sEnd}\ns_cbranch_scc1 L_vdone")
    tr()
    a(f"s_cmp_eq_u32 {sN}, {4*S}\ns_cbranch_scc1 L_vloop")
    a(f"s_cmp_lg_u32 {sN}, {sEnd}\ns_cbranch_scc1 L_vloop")
    a("L_vdone:")
    exec_set(0xffffffff, 0)
    a(f"ds_write_b128 v16, {vr(ACC)} offset:{L_OP}")
    exec_all()
    stamp(5)
    if stamps: a(f"s_mov_b32 s92, {sN}")
    a("s_waitcnt lgkmcnt(0)\ns_barrier\ns_waitcnt vmcnt(0)")
    if trace:
        a(f"s_lshl_b32 s4, s2, 2\ns_add_u32 s4, s4, s3\ns_lshl_b32 s4, s4, 8\ns_add_u32 s4, s4, {WS_ST+0x100000}\nv_lshl_add_u32 v12, v0, 2, s4\nglobal_store_dword v12, v63, {pWS}")
    a("s_cmp_ge_u32 s2, 224\ns_cbranch_scc1 L_down_s")
    a("s_cmp_ge_u32 s2, 176\ns_cbranch_scc1 L_fin_s")
    a("s_cmp_ge_u32 s2, 64\ns_cbranch_scc1 L_ffn")
    a(f"s_cmp_ge_u32 s3, {NRED}\ns_cbranch_scc1 L_fin_s")
    a(f"v_and_b32 v12, 7, v0\nv_lshlrev_b32 v12, 4, v12\nds_read_b128 v[16:19], v12 offset:{L_G}\nds_read_b128 v[24:27], v12 offset:{L_G+128}")
    a(f"s_lshl_b32 s4, s2, 7\ns_add_u32 s4, s4, {WS_X1}\nv_lshrrev_b32 v14, 3, v0\nv_lshl_add_u32 v13, v14, 13, s4\nv_add_u32 v13, v12, v13")
    a(f"s_lshl_b32 s4, s2, 13\ns_add_u32 s4, s4, {WS_Y + 4096}\nv_lshl_add_u32 v14, v0, 4, s4\nv_mov_b32 v20, 0xff")
    for w in range(1, NRED):
        Ls = a.label("Lrs")
        a(f"s_cmp_lt_u32 s3, {w}\ns_cbranch_scc1 {Ls}\ns_sleep {RGAP}\n{Ls}:")
    poll([("v14", i * 1024 - 4096) for i in range(8)], 64, "v15", sleep=ysleep)
    stamp(6)
    for st in (16, 8, 4): pkadd(64, 64, 64 + st, st)
    ror("v_add_f32", vl(64, 4), 8)
    for pl in ("v_permlane16_swap_b32", "v_permlane32_swap_b32"): swap_add(pl, "v_add_f32", vl(64, 4), vl(68, 4))
    a("s_waitcnt lgkmcnt(0)")
    for i in range(4): a(f"v_fma_f32 v{64+i}, v{16+i}, v{64+i}, v{24+i}")
    rndn(64, 4, 68)
    for k in range(4): a(f"v_or_b32 v{64+k}, {sTag[k]}, v{64+k}")
    if xrep < 8:
        m = (1 << (8 * xrep)) - 1
        exec_set(m & 0xffffffff, m >> 32)
    a(f"global_store_dwordx4 v13, v[64:67], {pWS} sc1")
    stamp(7)
    a("L_fin_s:")
    stamps_out(range(12), late=False)
    a("s_endpgm")

    a("L_ffn:")
    a("s_cmp_lt_u32 s3, 2\ns_cbranch_scc1 L_fin_s")
    lds_wait(C_F, 4)
    a("v_lshrrev_b32 v13, 4, v0\nv_lshlrev_b32 v14, 9, v13\nv_bfe_u32 v12, v0, 1, 3\nv_lshl_add_u32 v14, v12, 5, v14\nv_and_b32 v12, 1, v0\nv_lshl_add_u32 v14, v12, 3, v14")
    a(f"s_and_b32 s7, s3, 1\ns_lshl_b32 s4, s7, 4\ns_add_u32 s4, s4, {L_SF}\nv_add_u32 v14, s4, v14")
    for kb in range(16):
        a(f"ds_read_b64_tr_b16 v[{64+4*kb}:{65+4*kb}], v14 offset:{kb*2048}\nds_read_b64_tr_b16 v[{66+4*kb}:{67+4*kb}], v14 offset:{kb*2048+256}")
        if kb % 4 == 3: a("s_waitcnt lgkmcnt(0)")
    a("v_and_b32 v15, 3, v0\nv_lshlrev_b32 v15, 10, v15\nv_bfe_u32 v16, v0, 2, 2\nv_lshl_add_u32 v15, v16, 6, v15\nv_lshl_add_u32 v15, v13, 4, v15")
    a(f"s_mul_i32 s4, {sXc}, 14\ns_add_u32 s4, s4, {sXr}\ns_sub_u32 s4, s4, 8\ns_lshl_b32 s4, s4, 1\ns_add_u32 s4, s4, s7\ns_lshl_b32 s4, s4, {6+afull}\ns_add_u32 s4, s4, {WS_ACT}")
    a("v_and_b32 v16, 3, v0\nv_lshl_add_u32 v16, v16, 4, s4\nv_bfe_u32 v17, v0, 4, 1\nv_lshl_add_u32 v16, v17, 3, v16\nv_lshrrev_b32 v17, 5, v0\nv_lshl_add_u32 v16, v17, 6, v16")
    stamp(7)
    a("s_mov_b32 s5, 0x3d372713\ns_mov_b32 s6, 0xc0135761\ns_waitcnt lgkmcnt(0)")
    a("s_barrier")
    for i in range(4): a(f"ds_read_b128 {vr(20+4*i)}, v15 offset:{L_H2+i*256}")
    for i in range(4):
        a(f"s_waitcnt lgkmcnt({3-i})")
        for k in range(4):
            d = vr(36 + 4 * k)
            a(f"v_mfma_f32_16x16x32_bf16 {d}, {vr(64+4*(4*i+k))}, {vr(20+4*i)}, {'0' if i == 0 else d}")
    for k in (1, 2, 3):
        for r in range(4): a(f"v_add_f32_dpp v{36+r}, v{36+4*k+r}, v{36+r} row_shl:{4*k} row_mask:0xf bank_mask:0xf")
    for r in range(4): a(f"v_mov_b32 v{40+r}, v{36+r}")
    for r in range(4): a(f"v_permlane32_swap_b32 v{36+r}, v{40+r}")
    for r in range(4): a(f"v_mul_f32 v{44+r}, v{36+r}, v{36+r}")
    for r in range(4): a(f"v_fma_f32 v{44+r}, v{44+r}, s5, 1.0")
    for r in range(4): a(f"v_mul_f32 v{44+r}, v{44+r}, v{36+r}")
    for r in range(4): a(f"v_mul_f32 v{44+r}, s6, v{44+r}")
    for r in range(4): a(f"v_exp_f32 v{44+r}, v{44+r}")
    for r in range(4): a(f"v_add_f32 v{44+r}, 1.0, v{44+r}")
    for r in range(4): a(f"v_rcp_f32 v{44+r}, v{44+r}")
    for r in range(4): a(f"v_mul_f32 v{36+r}, v{36+r}, v{44+r}")
    for r in range(4): a(f"v_mul_f32 v{36+r}, v{36+r}, v{40+r}")
    a("v_cvt_pk_bf16_f32 v52, v36, v37\nv_cvt_pk_bf16_f32 v53, v38, v39\nv_min_u32 v52, -2, v52\nv_min_u32 v53, -2, v53")
    exec_set(0x000f000f, 0x000f000f if afull else 0)
    a(f"global_store_dwordx2 v16, v[52:53], {pWS} sc1")
    stamp(6)
    stamps_out(range(8))
    a("s_endpgm")

    def down_dma():
        a(f"s_lshl_b32 s4, {sXc}, 2\ns_add_u32 s4, s4, {sXr}\ns_sub_u32 s4, s4, 28\ns_lshl_b32 s4, s4, 5\ns_mul_i32 s5, s3, {7*32*1024}\ns_add_u32 s4, s4, s5")
        a(f"v_lshrrev_b32 v14, 1, v0\nv_lshlrev_b32 v14, 10, v14\nv_and_b32 v13, 1, v0\nv_lshlrev_b32 v13, 4, v13\nv_add3_u32 v14, v14, v13, s4\ns_mul_i32 s6, s3, {7*1024}")
        for kb in range(7):
            a(f"s_add_u32 m0, s6, {L_SF + kb*1024}\nglobal_load_lds_dwordx4 v14, {pWD}")
            if kb < 6: a(f"v_add_u32 v14, {32*1024}, v14")
    a("L_down_s:")
    lds_wait(C_F, 4)
    a("L_down_h:")
    down_dma()
    a("s_waitcnt vmcnt(0)")
    a("v_and_b32 v12, 15, v0\nv_lshrrev_b32 v13, 4, v0\nv_lshlrev_b32 v14, 8, v13\nv_lshl_add_u32 v14, v12, 3, v14")
    a(f"s_mul_i32 s4, s3, {7*1024}\ns_add_u32 s4, s4, {L_SF}\nv_add_u32 v14, s4, v14")
    for kb in range(7):
        a(f"ds_read_b64_tr_b16 v[{64+4*kb}:{65+4*kb}], v14 offset:{kb*1024}\nds_read_b64_tr_b16 v[{66+4*kb}:{67+4*kb}], v14 offset:{kb*1024+128}")
    a(f"s_mul_i32 s4, s3, 7\nv_bfe_u32 v15, v0, 2, 2\nv_add_u32 v15, s4, v15\nv_add_u32 v16, 4, v15\nv_min_u32 v16, 55, v16")
    a(f"v_and_b32 v17, 3, v0\nv_lshlrev_b32 v18, 4, v17\nv_lshl_add_u32 v18, v13, 6, v18")
    a(f"ds_read_b128 v[60:63], v18 offset:{L_G}\nv_add_u32 v18, {WS_ACT}, v18")
    if afull: a(f"v_lshl_add_u32 v18, v13, 6, v18\ns_and_b32 s4, {sXr}, 1\ns_lshl_b32 s4, s4, 6\nv_add_u32 v18, s4, v18")
    a(f"v_lshl_add_u32 v15, v15, {8+afull}, v18\nv_lshl_add_u32 v16, v16, {8+afull}, v18")
    a(f"s_lshl_b32 s5, {sXc}, 2\ns_add_u32 s5, s5, {sXr}\ns_sub_u32 s5, s5, 28")
    a("s_lshl_b32 s6, s5, 5\nv_lshl_add_u32 v19, v17, 10, s6\nv_lshl_add_u32 v19, v13, 3, v19")
    a(f"s_and_b32 s6, {sXc}, {xrep-1}\ns_lshl_b32 s6, s6, 13\ns_add_u32 s6, s6, {WS_X1}\nv_lshl_add_u32 v56, v19, 1, s6")
    stamp(9)
    poll([("v56", 0)], 28, "v57")
    if a2stage:
        a(f"s_and_b32 s4, s2, 15\ns_lshl_b32 s4, s4, 2\ns_lshl_b64 exec, 1, s4")
        poll([("v15", 0)], 20, "v57", tagged=False)
        exec_all()
    ppoll([("v15", 0), ("v16", 0)], 20, 128, "v57", tagged=False, sleep=asleep)
    stamp(6)
    a("s_waitcnt lgkmcnt(0)")
    for kb in range(7):
        d = vr(36 + 4 * (kb & 3))
        a(f"v_mfma_f32_16x16x32_bf16 {d}, {vr(64+4*kb)}, {vr(20+4*(kb>>2))}, {'0' if kb < 4 else d}")
    a(f"s_lshl_b32 s4, s3, 10\nv_lshl_add_u32 v12, v0, 4, s4")
    for k in (3, 1, 2):
        for r in range(4): a(f"v_add_f32_dpp v{36+r}, v{36+4*k+r}, v{36+r} row_shl:{4*k} row_mask:0xf bank_mask:0xf")
    a(f"ds_write_b128 v12, v[36:39] offset:{L_PM}")
    a("s_waitcnt lgkmcnt(0)\ns_barrier")
    a("s_cmp_eq_u32 s3, 4\ns_cbranch_scc1 L_epoch")
    a("s_cmp_lg_u32 s3, 0\ns_cbranch_scc1 L_fin_d")
    for w in range(1, 8): a(f"ds_read_b128 {vr(64+4*w)}, v12 offset:{L_PM+w*1024}")
    a("s_waitcnt lgkmcnt(0)")
    pkadd(64, 36, 68, 4)
    for w in (2, 4, 6): pkadd(64 + 4 * w, 64 + 4 * w, 68 + 4 * w, 4)
    for w in (0, 4): pkadd(64 + 4 * w, 64 + 4 * w, 72 + 4 * w, 4)
    pkadd(64, 64, 80, 4)
    for i in range(4): a(f"v_fma_f32 v{64+i}, v{60+i}, v{64+i}, v{28+i}")
    a("v_cvt_pk_bf16_f32 v68, v64, v65\nv_cvt_pk_bf16_f32 v69, v66, v67")
    exec_set(0x000f000f, 0x000f000f)
    a(f"global_store_dwordx2 v19, v[68:69], {pOUT}")
    stamp(7)
    a("L_fin_d:")
    stamps_out(range(10))
    a("s_endpgm")
    a("L_epoch:")
    a("s_cmp_lg_u32 s2, 224\ns_cbranch_scc1 L_fin_d")
    a(f"v_mov_b32 v12, {WS_EP}\nv_mov_b32 v13, {sT}\ns_mov_b64 exec, 1\nglobal_store_dword v12, v13, {pWS}")
    a("s_branch L_fin_d")

    a("L_helper:")
    vJ, vG, vY, vFF = "v1", "v2", "v7", "v3"
    a(f"v_and_b32 {vJ}, 15, v0\nv_lshrrev_b32 {vG}, 4, v0\nv_mov_b32 {vFF}, 0xff")
    a(f"s_lshl_b32 s10, {sW}, 12")
    a(f"s_lshr_b32 s11, s2, 2\ns_and_b32 s12, s2, 3\ns_lshl_b32 s13, s12, 7\ns_lshl_b32 s4, {sW}, 5\ns_add_u32 s13, s13, s4")
    a("v_lshrrev_b32 v14, 3, v0\nv_add_u32 v14, s13, v14\nv_mul_u32_u24 v14, 6144, v14\nv_and_b32 v15, 7, v0\nv_lshlrev_b32 v15, 4, v15")
    a("s_lshl_b32 s4, s11, 7\nv_add3_u32 v14, v14, v15, s4")
    a(f"v_and_b32 v15, 3, v0\nv_lshlrev_b32 v15, 10, v15\nv_lshl_add_u32 v15, {vG}, 4, v15\ns_lshl_b32 s4, s13, 1\nv_add_u32 v15, s4, v15")
    a(f"s_lshl_b32 s4, {sXc}, 6\ns_lshl_b32 s5, {sW}, 4\ns_add_u32 s4, s4, s5\ns_lshl_b32 s4, s4, 13\ns_lshl_b32 s5, {sXr}, 8\ns_add_u32 s4, s4, s5")
    a(f"v_lshl_add_u32 v16, {vG}, 13, s4\nv_lshl_add_u32 v16, {vJ}, 4, v16")
    a(f"s_lshl_b32 s4, {sW}, 10\nv_lshl_add_u32 v17, v0, 4, s4")
    a("s_waitcnt lgkmcnt(0)")
    stamp(0)
    a(f"s_load_dword {sT}, {pWS}, {WS_EP}")
    def dma(n, voff, ptr, stride, ldsbase_s, ldsoff):
        for i in range(n):
            a(f"s_add_u32 m0, {ldsbase_s}, {ldsoff + i*1024}")
            a(f"global_load_lds_dwordx4 v{voff}, {ptr} nt")
            if i + 1 < n: a(f"v_add_u32 v{voff}, {stride}, v{voff}")
    a("s_cmp_ge_u32 s2, 192\ns_cbranch_scc1 L_nomod1")
    a(f"global_load_dwordx4 v[20:23], v15, {pC}")
    dma(4, 14, pWM, 8 * 6144, "s10", L_SA)
    a("L_nomod1:")
    a(f"global_load_dwordx4 v[24:27], v17, {pX}")
    dma(4, 16, pWQ, 4 * 8192, "s10", L_SB)
    a("s_barrier")
    a("s_waitcnt lgkmcnt(0)")
    make_tags()
    a("s_cmp_ge_u32 s2, 192\ns_cbranch_scc1 L_nomod2")
    a("s_waitcnt vmcnt(9)")
    stamp(11)
    unpack(28, 20, 4)
    for i in range(8): a(f"v_mul_f32 v{36+i}, {hex(LOG2E | 0x80000000)}, v{28+i}")
    for i in range(8): a(f"v_exp_f32 v{36+i}, v{36+i}")
    for i in range(8): a(f"v_add_f32 v{36+i}, 1.0, v{36+i}")
    for i in range(8): a(f"v_rcp_f32 v{44+i}, v{36+i}")
    for i in range(8): a(f"v_mul_f32 v{52+i}, v{28+i}, v{44+i}")
    for i in range(8): a(f"v_fma_f32 v{28+i}, -v{52+i}, v{36+i}, v{28+i}")
    for i in range(8): a(f"v_fma_f32 v{28+i}, v{28+i}, v{44+i}, v{52+i}")
    for i in range(8): a(f"v_cmp_u_f32 vcc, v{28+i}, v{28+i}\nv_cndmask_b32 v{28+i}, v{28+i}, v{52+i}, vcc")
    for i in range(4): a(f"v_cvt_pk_bf16_f32 v{20+i}, v{28+2*i}, v{29+2*i}")
    a(f"v_lshlrev_b32 v14, 10, {vG}\nv_bfe_u32 v15, v0, 2, 2\nv_lshl_add_u32 v14, v15, 7, v14\nv_and_b32 v15, 3, v0\nv_lshl_add_u32 v14, v15, 3, v14\nv_add_u32 v14, s10, v14")
    a("s_waitcnt vmcnt(5)")
    stamp(1)
    for cs in range(4):
        a(f"ds_read_b64_tr_b16 v[{64+4*cs}:{65+4*cs}], v14 offset:{L_SA+cs*32}\nds_read_b64_tr_b16 v[{66+4*cs}:{67+4*cs}], v14 offset:{L_SA+cs*32+512}")
    for cs in range(4):
        a(f"s_waitcnt lgkmcnt({6-2*cs})")
        a(f"v_mfma_f32_16x16x32_bf16 {vr(36+4*cs)}, {vr(64+4*cs)}, v[20:23], 0")
    for cs in (1, 2, 3):
        for r in range(4): a(f"v_mov_b32_dpp v{36+r}, v{36+4*cs+r} quad_perm:[0,1,2,3] row_mask:0xf bank_mask:{hex(1<<cs)}")
    a(f"s_lshl_b32 s4, {sW}, 10\nv_lshl_add_u32 v12, v0, 4, s4\nds_write_b128 v12, v[36:39] offset:{L_PM}")
    a(f"v_mov_b32 v12, {L_CNT}\nv_mov_b32 v13, 1\ns_waitcnt lgkmcnt(0)\ns_mov_b64 exec, 1")
    a(f"ds_add_rtn_u32 v13, v12, v13 offset:{C_MOD}\ns_waitcnt lgkmcnt(0)\nv_readfirstlane_b32 s4, v13")
    exec_all()
    a(f"s_cmp_lg_u32 s4, 3\ns_cbranch_scc1 L_nomod2")
    a("v_lshlrev_b32 v12, 4, v0")
    for w in range(4): a(f"ds_read_b128 {vr(36+4*w)}, v12 offset:{L_PM+w*1024}")
    a("s_cmp_lt_u32 s2, 64\ns_cbranch_scc1 L_modp")
    a(f"s_sub_u32 s4, s11, 16\ns_lshr_b32 s5, s4, 3\ns_lshl_b32 s5, s5, 15\ns_and_b32 s4, s4, 7\ns_lshl_b32 s4, s4, 8\ns_add_u32 s4, s4, s5")
    a(f"s_lshl_b32 s5, s12, 13\ns_add_u32 s4, s4, s5\ns_add_u32 s4, s4, {WS_MODN}")
    a(f"v_and_b32 v12, 3, v0\nv_lshl_add_u32 v12, v12, 11, s4\nv_bfe_u32 v13, v0, 2, 2\nv_lshl_add_u32 v12, v13, 6, v12\nv_lshl_add_u32 v12, {vG}, 4, v12")
    a("s_branch L_modst")
    a("L_modp:")
    a(f"s_and_b32 s4, s11, 7\ns_lshl_b32 s4, s4, 13\ns_lshl_b32 s5, s12, 11\ns_add_u32 s4, s4, s5\ns_lshr_b32 s5, s11, 3\ns_lshl_b32 s5, s5, 7\ns_add_u32 s4, s4, s5\ns_add_u32 s4, s4, {WS_MODP}")
    a("v_and_b32 v12, 3, v0\nv_lshl_add_u32 v12, v12, 4, s4\nv_bfe_u32 v13, v0, 4, 1\nv_lshl_add_u32 v12, v13, 10, v12")
    a("v_bfe_u32 v13, v0, 2, 1\nv_lshl_add_u32 v12, v13, 9, v12\nv_lshrrev_b32 v13, 5, v0\nv_lshl_add_u32 v12, v13, 8, v12\nv_bfe_u32 v13, v0, 3, 1\nv_lshl_add_u32 v12, v13, 6, v12")
    a("L_modst:")
    a("s_waitcnt lgkmcnt(0)")
    pkadd(36, 36, 44, 8); pkadd(36, 36, 40, 4)
    tag(36, 1, vFF)
    a(f"global_store_dwordx4 v12, v[36:39], {pWS} sc1")
    stamp(2)
    a("s_waitcnt vmcnt(1)\ns_branch L_ln")
    a("L_nomod2:")
    a("s_waitcnt vmcnt(0)")
    a("L_ln:")
    unpack(28, 24, 4)
    a("v_add_f32 v36, v28, v29\nv_add_f32 v37, v30, v31\nv_add_f32 v38, v32, v33\nv_add_f32 v39, v34, v35\nv_add_f32 v36, v36, v37\nv_add_f32 v38, v38, v39\nv_add_f32 v36, v36, v38")
    wave_reduce("v_add_f32", ["v36"], ["v37"])
    a("v_mul_f32 v36, 0x3b000000, v36")
    for i in range(8): a(f"v_sub_f32 v{40+i}, v{28+i}, v36")
    a("v_mul_f32 v37, v40, v40")
    for i in range(1, 8): a(f"v_fmac_f32 v37, v{40+i}, v{40+i}")
    wave_reduce("v_add_f32", ["v37"], ["v38"])
    a("v_mul_f32 v37, 0x3b000000, v37")
    rnd2("v36", "v37", "v38")
    a("v_add_f32 v37, 0x3727c5ac, v37\nv_cvt_pk_bf16_f32 v37, v37, v37\nv_and_b32 v37, 0xffff0000, v37\nv_sqrt_f32 v37, v37")
    a("v_cvt_pk_bf16_f32 v37, v37, v37\nv_and_b32 v37, 0xffff0000, v37\nv_rcp_f32 v38, v37")
    for i in range(8): a(f"v_sub_f32 v{28+i}, v{28+i}, v36")
    rndn(28, 8, 48)
    for i in range(8): a(f"v_mul_f32 v{40+i}, v{28+i}, v38")
    for i in range(8): a(f"v_fma_f32 v{28+i}, -v{40+i}, v37, v{28+i}")
    for i in range(8): a(f"v_fma_f32 v{40+i}, v{28+i}, v38, v{40+i}")
    rndn(40, 8, 48)
    a(f"s_lshl_b32 s4, {sW}, 8\nv_and_b32 v12, 7, v0\nv_lshl_add_u32 v12, v12, 5, s4\ns_lshl_b32 s4, {sXc}, 3\ns_lshl_b64 exec, 0xff, s4")
    a(f"ds_write_b128 v12, v[40:43] offset:{L_N}\nds_write_b128 v12, v[44:47] offset:{L_N+16}")
    lds_inc(C_N)
    a(f"s_cmp_lg_u32 {sW}, 0\ns_cbranch_scc1 L_noq")
    lds_wait(C_N, 4)
    a(f"v_lshlrev_b32 v14, 11, {vG}\nv_bfe_u32 v15, v0, 2, 2\nv_lshl_add_u32 v14, v15, 8, v14\nv_and_b32 v15, 3, v0\nv_lshl_add_u32 v14, v15, 3, v14\nv_add_u32 v14, {L_SB}, v14")
    for cb in range(8):
        for kb in range(2):
            r = 128 + 4 * (2 * cb + kb)
            a(f"ds_read_b64_tr_b16 v[{r}:{r+1}], v14 offset:{kb*8192+cb*32}\nds_read_b64_tr_b16 v[{r+2}:{r+3}], v14 offset:{kb*8192+cb*32+1024}")
        if cb & 1: a("s_waitcnt lgkmcnt(0)")
    a(f"v_lshlrev_b32 v15, 8, v15\nv_bfe_u32 v13, v0, 2, 1\nv_lshl_add_u32 v15, v13, 7, v15\nv_lshl_add_u32 v15, {vG}, 5, v15")
    a(f"ds_read_b128 v[28:31], v15 offset:{L_N}\nds_read_b128 v[32:35], v15 offset:{L_N+16}")
    a(f"s_lshl_b32 s4, {sXc}, 13\ns_add_u32 s4, s4, {WS_MODP + 4096}\nv_lshl_add_u32 v14, v0, 4, s4")
    a(f"s_lshl_b32 s4, {sXr}, 14\ns_lshl_b32 s5, {sXc}, 9\ns_add_u32 s4, s4, s5\ns_add_u32 s4, s4, {WS_QP}")
    a(f"v_and_b32 v16, 3, v0\nv_lshl_add_u32 v16, v16, 12, s4\nv_bfe_u32 v13, v0, 2, 2\nv_lshl_add_u32 v16, v13, 6, v16\nv_lshl_add_u32 v16, {vG}, 4, v16")
    a(f"s_lshl_b32 s4, {sH}, 14\ns_lshl_b32 s5, {sB}, 12\ns_add_u32 s4, s4, s5\ns_add_u32 s4, s4, {WS_QP}\nv_lshl_add_u32 v17, v0, 4, s4")
    a("v_mov_b32 v18, 1.0")
    stamp(3)
    poll([("v14", i * 1024 - 4096) for i in range(8)], 64, "v15")
    stamp(4)
    pkadd(64, 64, 80, 16); pkadd(64, 64, 72, 8)
    rndn(64, 8, 72)
    for i in range(8): a(f"v_add_f32_dpp v{76+i}, v{64+i}, v18 row_ror:8 row_mask:0xf bank_mask:0xf")
    rndn(76, 8, 72)
    a("s_waitcnt lgkmcnt(0)")
    for i in range(8): a(f"v_mul_f32 v{76+i}, v{28+i}, v{76+i}")
    rndn(76, 8, 72)
    for i in range(8): a(f"v_add_f32 v{76+i}, v{76+i}, v{64+i}")
    for i in range(4): a(f"v_cvt_pk_bf16_f32 v{20+i}, v{76+2*i}, v{77+2*i}")
    for i in range(4): a(f"v_mov_b32_dpp v{20+i}, v{20+i} row_ror:8 row_mask:0xf bank_mask:0xc")
    for i in range(4): a(f"v_mov_b32 v{24+i}, v{20+i}")
    for i in range(4): a(f"v_mov_b32_dpp v{24+i}, v{20+i} row_ror:4 row_mask:0xf bank_mask:0x5")
    for i in range(4): a(f"v_mov_b32_dpp v{20+i}, v{20+i} row_ror:4 row_mask:0xf bank_mask:0xa")
    for kb in range(2):
        for cb in range(8):
            d = vr(64 + 4 * cb)
            a(f"v_mfma_f32_16x16x32_bf16 {d}, {vr(128+4*(2*cb+kb))}, {vr(20+4*kb)}, {'0' if kb == 0 else d}")
    for s_ in range(2):
        for u in (1, 2, 3):
            for r in range(4): a(f"v_mov_b32_dpp v{64+16*s_+r}, v{64+16*s_+4*u+r} quad_perm:[0,1,2,3] row_mask:0xf bank_mask:{hex(1<<u)}")
        tag(64 + 16 * s_, 1, vFF)
        a(f"global_store_dwordx4 v16, {vr(64+16*s_)}, {pWS} offset:{256*s_} sc1")
    stamp(12)
    poll([("v17", i * 1024) for i in range(4)], 96, "v15")
    pkadd(96, 96, 104, 8); pkadd(96, 96, 100, 4)
    for r in range(4): a(f"v_mov_b32 v{100+r}, v{96+r}")
    for r in range(4): a(f"v_permlane32_swap_b32 v{96+r}, v{100+r}")
    pkadd(96, 96, 100, 4)
    a("v_cvt_pk_bf16_f32 v100, v96, v97\nv_cvt_pk_bf16_f32 v101, v98, v99")
    a(f"v_and_b32 v12, 31, v0\nv_lshlrev_b32 v12, 3, v12\nds_write_b64 v12, v[100:101] offset:{L_QB}\nv_mov_b32 v12, {L_CNT}\nv_mov_b32 v13, 1")
    a(f"ds_write_b32 v12, v13 offset:{C_Q}")
    a("L_noq:")
    stamp(5)
    lds_wait(C_XT, 4, sleep=4)
    a(f"s_cmp_eq_u32 {sW}, 2\ns_cbranch_scc1 L_w6")
    a(f"s_cmp_lg_u32 {sW}, 1\ns_cbranch_scc1 L_bg")
    a(f"s_cmp_lg_u32 {sSide}, 0\ns_cbranch_scc1 L_now")
    a(f"s_lshl_b32 s4, {sPair}, 7\ns_add_u32 s4, s4, {WS_W}\nv_mov_b32 v12, s4\nv_mov_b32 v13, 0")
    a(f"s_mov_b64 exec, 1\nglobal_store_dword v12, v13, {pWS} sc1")
    a("L_now:")
    a("s_cmp_ge_u32 s2, 176\ns_cbranch_scc1 L_bg\ns_cmp_lt_u32 s2, 64\ns_cbranch_scc1 L_bg")
    a(f"s_mul_i32 s4, {sXc}, 14\ns_add_u32 s4, s4, {sXr}\ns_sub_u32 s4, s4, 8\ns_lshl_b32 s4, s4, {7+afull}\ns_add_u32 s4, s4, {WS_ACT}")
    a(f"s_mov_b32 exec_hi, {'-1' if afull else '0'}\ns_mov_b32 exec_lo, -1\nv_lshl_add_u32 v12, v0, 2, s4\nv_mov_b32 v13, -1\nglobal_store_dword v12, v13, {pWS} sc1")
    a("s_branch L_bg")
    a("L_w6:")
    a("s_cmp_ge_u32 s2, 224\ns_cbranch_scc1 L_w6d")
    a("s_cmp_ge_u32 s2, 64\ns_cbranch_scc1 L_bg")
    a(f"v_and_b32 v12, 7, v0\nv_lshlrev_b32 v12, 4, v12\ns_lshl_b32 s4, s2, 7\nv_add_u32 v13, s4, v12")
    a(f"v_lshrrev_b32 v16, 1, v13\nglobal_load_dwordx2 v[36:37], v16, {pX}")
    a(f"v_bfe_u32 v14, v0, 3, 2\nv_lshl_add_u32 v14, v14, 13, v13\nv_add_u32 v14, {WS_MODN}, v14")
    a(f"v_lshrrev_b32 v17, 5, v0\nv_lshl_add_u32 v16, v17, 15, v14\nv_add_u32 v16, 32768, v16")
    poll([("v16", 0), ("v14", 0)], 20, "v15", sleep=8)
    ror("v_add_f32", vl(20, 8), 8)
    swap_add("v_permlane16_swap_b32", "v_add_f32", vl(20, 8), vl(28, 8))
    rndn(20, 8, 28)
    a("v_cvt_f32_u32 v18, v17")
    for i in range(4): a(f"v_add_f32 v{20+i}, v18, v{20+i}")
    rndn(20, 4, 28)
    unpack(32, 36, 2)
    a(f"ds_write_b128 v12, v[24:27] offset:{L_G}\nds_write_b128 v12, v[32:35] offset:{L_G+128}")
    for k in range(4): a(f"v_or_b32 v{20+k}, {sTag[k]}, v{20+k}")
    a(f"v_lshl_add_u32 v13, v17, 13, v13\nv_add_u32 v13, {WS_MODF}, v13")
    exec_set(0xff, 0xff)
    a(f"global_store_dwordx4 v13, v[20:23], {pWS} sc1")
    a("s_branch L_bg")
    a("L_w6d:")
    a(f"s_lshl_b32 s5, {sXc}, 2\ns_add_u32 s5, s5, {sXr}\ns_sub_u32 s5, s5, 28\ns_lshl_b32 s5, s5, 6\ns_add_u32 s5, s5, {WS_MODN + 3*32768}")
    a(f"v_lshl_add_u32 v14, {vJ}, 11, s5\nv_lshl_add_u32 v14, {vG}, 4, v14")
    poll([("v14", 0)], 20, "v15", sleep=8)
    ror("v_add_f32", vl(20, 4), 8); ror("v_add_f32", vl(20, 4), 4)
    rndn(20, 4, 28)
    a(f"v_and_b32 v12, 3, v0\nv_lshlrev_b32 v12, 4, v12\nv_lshl_add_u32 v12, {vG}, 6, v12\nds_write_b128 v12, v[20:23] offset:{L_G}")
    a("L_bg:")
    exec_all()
    a(f"s_lshl_b32 s4, {sH}, 17\ns_lshl_b32 s5, {sW}, 8\ns_add_u32 s4, s4, s5")
    a(f"v_lshl_add_u32 v12, {vG}, 15, s4\nv_lshl_add_u32 v12, {vJ}, 4, v12")
    if wox:
        a(f"v_lshl_add_u32 v13, {vG}, 2, {sH}\nv_and_b32 v13, 15, v13\nv_lshl_add_u32 v12, v13, 11, v12")
    a(f"s_mul_i32 s4, s2, 7168\ns_mul_i32 s5, {sW}, 1792\ns_add_u32 s4, s4, s5\nv_min_u32 v14, 13, v0\nv_lshl_add_u32 v14, v14, 7, s4")
    for t in range(32):
        Lw = a.label("Lnw")
        if not nowo: a(f"global_load_dwordx4 {vr(128+4*t)}, v12, {pWO} offset:{(t&1)*1024} {wpol}")
        if t & 1 and t < 31: a(f"v_xor_b32 v12, {((t>>1) ^ ((t>>1)+1)) << 11}, v12")
        for k, p in enumerate((pWD, pWG, pWU)):
            if t == 9 + 8 * k and (pref >> k) & 1: a(f"global_load_dword v15, v14, {p}")
        if t % 2 == 0 and BGD == 1:
            a(f"s_cmp_eq_u32 {sW}, 1\ns_cbranch_scc1 {Lw}\ns_waitcnt vmcnt(0)\n{Lw}:")
        elif t % BGD == BGD - 1: a("s_waitcnt vmcnt(0)")
    a("v_and_b32 v12, 1, v0\nv_cmp_eq_u32 vcc, 1, v12\nv_bfe_u32 v13, v0, 1, 2\nv_mov_b32 v16, 0x0c0c0c0c")
    for par, Bs in enumerate((0x0100, 0x0302)):
        a(f"v_mov_b32 v14, {hex(0x0c0c0000 | Bs)}\nv_mov_b32 v15, {hex((Bs << 16) | 0x0c0c)}\nv_cndmask_b32 v{17+par}, v14, v15, vcc")
    for r in range(4):
        a(f"v_cmp_eq_u32 vcc, {r}, v13\nv_cndmask_b32 v{96+r}, v16, v17, vcc\nv_cndmask_b32 v{100+r}, v16, v18, vcc")
    if latemf: lds_wait(C_KD, 4, sleep=8)
    a("s_cmp_ge_u32 s2, 176\ns_cbranch_scc1 L_nomf\ns_cmp_lt_u32 s2, 64\ns_cbranch_scc1 L_nomf")
    a(f"s_lshl_b32 s4, {sW}, 11\ns_add_u32 s4, s4, {WS_MODF}\nv_lshl_add_u32 v12, v0, 4, s4\nv_add_u32 v13, 8192, v12")
    poll([("v12", 0), ("v12", 1024), ("v13", 0), ("v13", 1024)], 104, "v15", sleep=8, first_plain=True)
    a("L_nomf:")
    stamp(13)
    a(f"s_cmp_lg_u32 {sW}, 1\ns_cbranch_scc1 L_noclaim")
    NS = (64 - 4 * S) // 16
    lds_wait(C_KD, 4, sleep=8)
    a(f"s_mov_b32 s6, {4*S*64}\ns_cmp_eq_u32 {sSide}, 0\ns_cselect_b32 s4, s6, 4096\ns_cselect_b32 s5, 4096, s6")
    a(f"s_add_u32 s4, s4, {L_SC}\ns_add_u32 s5, s5, {L_SC}")
    a("v_lshl_add_u32 v13, v0, 4, s4\nv_lshl_add_u32 v14, v0, 4, s5\nv_and_b32 v20, 3, v0\nv_lshlrev_b32 v21, 3, v20")
    XB = 28; XM = XB + 16 * NS; XP = XM + 4
    assert XP + 8 * NS <= 96
    for w in range(4):
        for i in range(NS): a(f"ds_read_b128 {vr(XB+4*(w*NS+i))}, v13 offset:{w*8192+i*1024}")
    a(f"ds_read_b64 v[{XM}:{XM+1}], v21 offset:{L_CNT+C_ML}\nds_read_b64 v[{XM+2}:{XM+3}], v21 offset:{L_CNT+C_ML}")
    a(f"s_lshl_b32 s4, {sCh}, 12\ns_add_u32 s4, s4, {WS_XS}\nv_lshl_add_u32 v16, v0, 4, s4\nv_xor_b32 v17, 0x1000, v16")
    a(f"s_lshl_b32 s4, {sCh}, 7\ns_add_u32 s4, s4, {WS_XM}\nv_and_b32 v18, 7, v0\nv_lshl_add_u32 v18, v18, 4, s4\nv_xor_b32 v19, 0x80, v18")
    a("s_mov_b32 s4, 0x07060302\ns_waitcnt lgkmcnt(0)")
    for i in range(8 * NS): a(f"v_perm_b32 v{XP+i}, v{XB+2*i+1}, v{XB+2*i}, s4")
    for i in range(2 * NS): a(f"global_store_dwordx4 v16, {vr(XP+4*i)}, {pWS} offset:{i*1024} {xspol}")
    tag(XM, 1, vFF)
    a(f"s_waitcnt vmcnt(0)\ns_mov_b64 exec, 0xff\nglobal_store_dwordx4 v18, {vr(XM)}, {pWS} sc1")
    exec_all()
    a(f"v_and_b32 v24, 0xffffff00, v{XM}\nv_and_b32 v25, 0xffffff00, v{XM+1}")
    lds_wait(C_PROG, 4 * S - TH - PRE, sleep=8)
    poll([("v19", 0)], XM, "v15", sleep=16)
    for i in range(2 * NS): a(f"global_load_dwordx4 {vr(XP+4*i)}, v17, {pWS} offset:{i*1024} sc1")
    a("s_waitcnt vmcnt(0)")
    unpack(XB, XP, 8 * NS)
    for w in range(4):
        for i in range(NS): a(f"ds_write_b128 v14, {vr(XB+4*(w*NS+i))} offset:{w*8192+i*1024}")
    a(f"v_mov_b32_dpp v24, v{XM} quad_perm:[0,1,2,3] row_mask:0xf bank_mask:0xa\nv_mov_b32_dpp v25, v{XM+1} quad_perm:[0,1,2,3] row_mask:0xf bank_mask:0xa")
    a("v_mov_b32 v22, v24")
    for sh in (4, 2, 1): ror("v_max_f32", ["v22"], sh)
    a(f"v_sub_f32 v24, v24, v22\nv_mul_f32 v24, {hex(LOG2E)}, v24\nv_exp_f32 v24, v24\nv_mul_f32 v25, v25, v24")
    for sh in (4, 2, 1): ror("v_add_f32", ["v25"], sh)
    a(f"v_log_f32 v25, v25\nv_fmac_f32 v25, {hex(LOG2E)}, v22")
    a(f"s_mov_b64 exec, 1\nds_write_b32 v12, v25 offset:{C_REF}")
    NDYN = 128 - 8 * S
    a(f"s_lshl_b32 s4, {sPair}, 7\ns_add_u32 s4, s4, {WS_W}\nv_mov_b32 v18, s4\ns_mov_b32 s12, 0\ns_mov_b32 s13, {KMAX}")
    a(f"L_claim:\nds_read_b128 v[20:23], v12 offset:{C_PROG}\ns_waitcnt lgkmcnt(0)")
    a("v_max3_u32 v20, v20, v21, v22\nv_max_u32 v20, v20, v23\nv_readfirstlane_b32 s4, v20")
    a(f"s_add_u32 s4, s4, {TH}\ns_add_u32 s5, s12, {4*S}\ns_cmp_ge_u32 s4, s5\ns_cbranch_scc1 L_doclaim\ns_sleep 2\ns_branch L_claim")
    a(f"L_doclaim:\nv_mov_b32 v19, s13\nglobal_atomic_add v19, v18, v19, {pWS} sc0 sc1\ns_waitcnt vmcnt(0)\nv_readfirstlane_b32 s4, v19")
    a(f"s_sub_i32 s4, {NDYN}, s4\ns_max_i32 s5, s4, 0\ns_min_i32 s5, s5, s13\ns_add_u32 s12, s12, s5\ns_sub_i32 s4, s4, s13")
    a(f"s_cmp_gt_i32 s4, 0\ns_cselect_b32 s5, 0, 0x10000\ns_or_b32 s5, s5, s12\nv_mov_b32 v19, s5\nds_write_b32 v12, v19 offset:{C_LIM}")
    a(f"s_lshr_b32 s13, s4, {KSH}\ns_min_u32 s13, s13, {KMAX}\ns_max_u32 s13, s13, 1")
    a("s_cmp_gt_i32 s4, 0\ns_cbranch_scc1 L_claim")
    a(f"s_add_u32 s12, s12, {4*S-EX}")
    a(f"L_near:\nds_read_b128 v[20:23], v12 offset:{C_PROG}\ns_waitcnt lgkmcnt(0)")
    a("v_min3_u32 v20, v20, v21, v22\nv_min_u32 v20, v20, v23\nv_readfirstlane_b32 s4, v20")
    a(f"s_cmp_ge_u32 s4, s12\ns_cbranch_scc1 L_near2\ns_sleep 1\ns_branch L_near")
    a(f"L_near2:\nv_mov_b32 v19, 1\nds_write_b32 v12, v19 offset:{C_END}")
    exec_all()
    a("L_noclaim:")
    a(f"s_lshl_b32 s4, {sB}, 4\ns_lshl_b32 s5, {sW}, 2\ns_add_u32 s4, s4, s5\ns_lshl_b32 s4, s4, 13\ns_and_b32 s5, s2, 63\ns_lshl_b32 s5, s5, 7")
    a(f"s_add_u32 s4, s4, s5\ns_add_u32 s4, s4, {WS_Y}")
    a(f"v_bfe_u32 v12, v0, 2, 2\nv_lshl_add_u32 {vY}, v12, 13, s4\nv_and_b32 v12, 3, v0\nv_lshl_add_u32 {vY}, v12, 5, {vY}")
    a(f"v_bfe_u32 v12, v0, 4, 1\nv_lshl_add_u32 {vY}, v12, 4, {vY}")
    a(f"v_lshlrev_b32 v20, 3, v0")
    a(f"s_lshl_b32 s4, {sW}, 9\ns_add_u32 s4, s4, {L_OB}")
    if wox: a(f"v_lshl_add_u32 v21, {vG}, 2, {sH}\nv_and_b32 v21, 15, v21\nv_xor_b32 v21, v21, v0\nv_lshl_add_u32 v21, v21, 2, s4")
    else: a("v_lshl_add_u32 v21, v0, 2, s4")
    a(f"v_bfe_u32 v22, v0, 3, 1\nv_lshl_add_u32 v22, v22, 8, s4\nv_lshl_add_u32 v22, {vG}, 6, v22")
    a(f"s_and_b32 s4, {sXc}, {xrep-1}\ns_lshl_b32 s4, s4, 13\ns_lshl_b32 s5, {sW}, 11\ns_add_u32 s4, s4, s5\ns_add_u32 s4, s4, {WS_X1}\nv_lshl_add_u32 v23, v0, 4, s4")
    a(f"s_lshl_b32 s5, {sW}, 10\nv_lshl_add_u32 v24, v0, 3, s5")
    stamp(6)
    a(f"s_mul_i32 s4, {sXc}, 14\ns_add_u32 s4, s4, {sXr}\ns_sub_u32 s4, s4, 8\ns_lshl_b32 s4, s4, 5\ns_mul_i32 s5, {sW}, {128*3584}\ns_add_u32 s4, s4, s5")
    a(f"v_lshrrev_b32 v18, 2, v0\nv_mul_u32_u24 v14, 3584, v18\nv_and_b32 v19, 1, v0\nv_lshl_add_u32 v14, v19, 4, v14\nv_add_u32 v14, s4, v14")
    a(f"v_mov_b32 v16, {lo(pWG)}\nv_mov_b32 v17, {hi(pWG)}\nv_mov_b32 v12, {lo(pWU)}\nv_mov_b32 v13, {hi(pWU)}\nv_and_b32 v19, 2, v0\nv_cmp_eq_u32 vcc, 2, v19")
    a("v_cndmask_b32 v16, v16, v12, vcc\nv_cndmask_b32 v17, v17, v13, vcc\nv_add_co_u32 v16, vcc, v16, v14\nv_addc_co_u32 v17, vcc, 0, v17, vcc")
    a("s_waitcnt vmcnt(0)")
    if touch:
        a(f"s_mul_i32 s4, s2, 7168\ns_mul_i32 s5, {sW}, 1792\ns_add_u32 s4, s4, s5\nv_min_u32 v14, 13, v0\nv_lshl_add_u32 v14, v14, 7, s4")
        lds_wait(C_END, 1, sleep=2)
        a(f"global_load_dword v18, v14, {pWG}\nglobal_load_dword v19, v14, {pWU}")
    a("s_waitcnt lgkmcnt(0)\ns_barrier")
    stamp(7)
    for w in range(4): a(f"ds_read_b64 v[{28+2*w}:{29+2*w}], v20 offset:{L_OP+w*512}")
    a("s_waitcnt lgkmcnt(0)")
    pkadd(28, 28, 32, 4); pkadd(36, 28, 30, 2)
    a("v_cvt_pk_bf16_f32 v38, v36, v37\nv_lshlrev_b32 v39, 16, v38\nv_and_b32 v40, 0xffff0000, v38\nds_write_b32 v21, v38")
    a("v_sub_f32 v36, v36, v39\nv_sub_f32 v37, v37, v40\nv_cvt_pk_bf16_f32 v39, v36, v37\nds_write_b32 v21, v39 offset:256")
    for i in range(4): a(f"ds_read_b128 {vr(64+4*i)}, v22 offset:{16*i}")
    for t in range(32):
        if t % 8 == 0: a(f"s_waitcnt lgkmcnt({3 - t//8})")
        A = 80 + 4 * (t % 3)
        for r in range(4): a(f"v_perm_b32 v{A+r}, v{64+(t>>1)}, v{64+(t>>1)}, v{96+4*(t&1)+r}")
        if t > 0:
            Ap = 80 + 4 * ((t - 1) % 3)
            a(f"v_mfma_f32_16x16x32_bf16 v[36:39], {vr(Ap)}, {vr(128+4*(t-1))}, {'0' if t == 1 else 'v[36:39]'}")
    a(f"v_mfma_f32_16x16x32_bf16 v[36:39], {vr(80+4*(31%3))}, {vr(128+4*31)}, v[36:39]")
    swap_add("v_permlane32_swap_b32", "v_add_f32", vl(36, 4), vl(40, 4))
    tag(36, 1, vFF)
    exec_set(0xffffffff, 0)
    a(f"global_store_dwordx4 {vY}, v[36:39], {pWS} sc1")
    exec_all()
    stamp(8)
    a("s_cmp_lt_u32 s2, 224\ns_cbranch_scc1 L_yd")
    lds_inc(C_F)
    a("s_branch L_down_h\nL_yd:")
    a("s_cmp_ge_u32 s2, 176\ns_cbranch_scc1 L_fin_h\ns_cmp_lt_u32 s2, 64\ns_cbranch_scc1 L_fin_h")
    a(f"s_lshl_b32 s4, {sW}, 13")
    for i in range(8):
        a(f"s_add_u32 m0, s4, {L_SF + i*1024}\nglobal_load_lds_dwordx4 v[16:17], off")
        if i < 7: a(f"v_add_co_u32 v16, vcc, {16*3584}, v16\nv_addc_co_u32 v17, vcc, 0, v17, vcc")
    a("s_waitcnt vmcnt(0)")
    lds_inc(C_F)
    if x2stage:
        a(f"s_and_b32 s4, {sXr}, 7\ns_lshl_b32 s4, s4, 3\ns_lshl_b64 exec, 1, s4")
        poll([("v23", 0)], 40, "v15", sleep=xsleep)
        exec_all()
        poll([("v23", 0), ("v23", 1024)], 40, "v15")
    else:
        ppoll([("v23", 0), ("v23", 1024)], 40, 128, "v15", sleep=xsleep)
    stamp(9)
    a("v_add_f32 v36, v40, v41\nv_add_f32 v38, v42, v43\nv_add_f32 v39, v44, v45\nv_add_f32 v48, v46, v47")
    a("v_add_f32 v36, v36, v38\nv_add_f32 v39, v39, v48\nv_add_f32 v36, v36, v39")
    wave_reduce("v_add_f32", ["v36"], ["v38"])
    a("v_mul_f32 v36, 0x3b000000, v36")
    for i in range(8): a(f"v_sub_f32 v{40+i}, v{40+i}, v36")
    a("v_mul_f32 v37, v40, v40\nv_mul_f32 v38, v41, v41")
    for i in range(2, 8): a(f"v_fmac_f32 v{37+(i&1)}, v{40+i}, v{40+i}")
    a("v_add_f32 v37, v37, v38")
    for i in range(8): a(f"v_mul_f32 v{40+i}, v{40+i}, v{112+i}")
    wave_reduce("v_add_f32", ["v37"], ["v38"])
    a("v_mov_b32 v38, 0x3727c5ac\nv_fmac_f32 v38, 0x3b000000, v37\nv_rsq_f32 v38, v38")
    for i in range(8): a(f"v_fma_f32 v{40+i}, v{40+i}, v38, v{104+i}")
    for i in range(4): a(f"v_cvt_pk_bf16_f32 v{28+i}, v{40+2*i}, v{41+2*i}")
    a(f"ds_write_b64 v24, v[28:29] offset:{L_H2}\nds_write_b64 v24, v[30:31] offset:{L_H2+512}\ns_waitcnt lgkmcnt(0)\ns_barrier")
    stamp(10)
    a("L_fin_h:")
    stamps_out(range(14))
    a("L_end:\ns_endpgm")
    body, nops = a.finalize()
    tail = f""".section .rodata,"a"
.p2align 6
.amdhsa_kernel {KN}
  .amdhsa_next_free_vgpr 256
  .amdhsa_next_free_sgpr 102
  .amdhsa_accum_offset 256
  .amdhsa_group_segment_fixed_size 0
  .amdhsa_kernarg_size 112
  .amdhsa_user_sgpr_count 2
  .amdhsa_user_sgpr_kernarg_segment_ptr 1
  .amdhsa_system_sgpr_workgroup_id_x 1
  .amdhsa_float_denorm_mode_32 3
.end_amdhsa_kernel
"""
    body = body.replace("    ; @launch", "; @launch", 1)
    return body + tail

if __name__ == "__main__":
    kw = eval("dict(" + (sys.argv[2] if len(sys.argv) > 2 else "") + ")")
    open(sys.argv[1], "w").write(gen(**kw))
```

```python
import sys
from asmlib import Asm

KN = "adaLN_cond__mha_block_cached__geglu_ffn__decode_kernel"

WS_EP   = 0x0000
WS_W    = 0x4000
WS_MODF = 0x8000
WS_ACT  = 0x10000
WS_MODP = 0x20000
WS_MODN = 0x30000
WS_XM   = 0x50000
WS_X1   = 0x60000
WS_Y    = 0x80000
WS_QP   = 0x100000
WS_XS   = 0x200000
WS_WDF  = 0xC000
WS_WD2  = 0x600000
WS_ST   = 0x800000
L_CNT  = 0x0000
L_QB   = 0x0100
L_G    = 0x0200
L_N    = 0x0400
L_PM   = 0x0800
L_OP   = 0x2800
L_OB   = 0x3000
L_H2   = 0x3800
L_SA   = 0x5000
L_SB   = 0x9000
L_SC   = 0xD000
L_SF   = 0x15000
LDS_SIZE = 0x15000 + 64 * 1024
C_MOD, C_N, C_Q, C_KD, C_LIM, C_XT, C_REF = 0, 4, 8, 12, 16, 20, 28
C_PROG, C_ML = 32, 64
C_END, C_F, C_BG = 48, 52, 56

LOG2E = 0x3fb8aa3b
SCALE = 0x3db504f3

pX, pK, pV, pWQ, pWO, pBX, pWG, pWU, pWD, pC, pWM, pOUT, pDBG, pWS = [f"s[{16+2*i}:{17+2*i}]" for i in range(14)]
def lo(p): return "s" + p[2:p.index(":")]
def hi(p): return "s" + p[p.index(":")+1:-1]
SRDC, SRDN = "s[44:47]", "s[48:51]"
sTC, sTN, sOF, sLC = "s52", "s53", "s54", "s55"
sB, sH, sSide, sPair, sTO, sW = "s56", "s57", "s58", "s59", "s60", "s61"
sM1, sM2, sM3 = "s[62:63]", "s[64:65]", "s[66:67]"
sXc, sXr = "s68", "s69"
sTag = ["s98", "s99", "s100", "s101"]
sCh = "s15"
sT = "s14"

def vr(b, n=4): return f"v[{b}:{b+n-1}]"
def vl(b, n): return [f"v{b+i}" for i in range(n)]

def gen(D=6, Df=8, bits=(10,11,15,12,13,14,16,17,18,19), S=12, TH=6, KMAX=4, KSH=2, pairx=3, stamps=False, wpol="", xrep=8,
        TO=1 << 17, kvpol="nt", PR=1, PGAP=5, NRED=1, RGAP=8, BGD=2, xsleep=0, ysleep=0, asleep=0, x2stage=1, wdpol='sc1', xspol='sc1', nowo=0, noffn=0, fpol=None, klin=0, now7=0, nokwork=0, trace=0, latemf=0, nowdf=1, wox=1, dpat=0, remap=0, PRE=10, dshift=0, pref=0, EX=1, lateout=0, afull=1, a2stage=1, touch=0, post=7, wside=1, adelay=0, ln1=1, ax4=1, opol=''):
    a = Asm()
    def stamp(k):
        if stamps: a(f"s_memrealtime s[{70+2*k}:{71+2*k}]")
    def stamps_out(ks, late=True):
        if not stamps: return
        a("s_waitcnt lgkmcnt(0)")
        if lateout and late: a("s_sleep 127\ns_sleep 127\ns_sleep 127")
        a("s_mov_b64 exec, 1")
        a("s_lshl_b32 s4, s2, 3\ns_add_u32 s4, s4, s3\ns_lshl_b32 s4, s4, 6")
        a(f"s_add_u32 s4, s4, {WS_ST}\nv_mov_b32 v1, s4")
        for k in ks:
            a(f"v_mov_b32 v2, s{70+2*k}\nglobal_store_dword v1, v2, {pWS} offset:{4*k}")
    def tr():
        if trace:
            a("s_memrealtime s[96:97]\ns_waitcnt lgkmcnt(0)\ns_mov_b32 m0, s27\nv_writelane_b32 v63, s96, m0\ns_add_u32 s27, s27, 1")
    def exec_set(lo_, hi_):
        a(f"s_mov_b32 exec_lo, {hex(lo_)}\ns_mov_b32 exec_hi, {hex(hi_)}")
    def exec_all(): a("s_mov_b64 exec, -1")
    def tree(op2, op3, t, r):
        r = list(r)
        if len(r) % 2 == 0:
            a(f"{op2} {t}, {r[0]}, {r[1]}"); r = r[2:]
        else:
            a(f"{op3} {t}, {r[0]}, {r[1]}, {r[2]}"); r = r[3:]
        while r:
            a(f"{op3} {t}, {t}, {r[0]}, {r[1]}"); r = r[2:]
    def check(n, src, dst, tmp, tagged, younger):
        if tagged:
            for i in range(n):
                a(f"s_waitcnt vmcnt({younger+n-1-i})")
                for k in range(4): a(f"v_xor_b32 v{dst+4*i+k}, {sTag[k]}, v{src+4*i+k}")
            tree("v_or_b32", "v_or3_b32", tmp, vl(dst, 4 * n))
            a(f"v_and_b32 {tmp}, 0xff, {tmp}\nv_cmp_ne_u32 vcc, 0, {tmp}")
        else:
            a(f"s_waitcnt vmcnt({younger})")
            tree("v_max_u32", "v_max3_u32", tmp, vl(src, 4 * n))
            a(f"v_cmp_eq_u32 vcc, -1, {tmp}")
            if dst != src:
                for i in range(4 * n): a(f"v_mov_b32 v{dst+i}, v{src+i}")
        a("s_cmp_eq_u64 vcc, 0")
    def poll(addrs, dst, tmp, sleep=0, tagged=True, first_plain=False):
        L, Dn = a.label("Lpoll"), a.label("Lpdone")
        n = len(addrs)
        a(f"s_mov_b32 {sTO}, {TO}")
        if first_plain:
            Lc = a.label("Lpchk")
            for i, (va, off) in enumerate(addrs): a(f"global_load_dwordx4 {vr(dst+4*i)}, {va}, {pWS} offset:{off}")
            a(f"s_branch {Lc}")
        a(f"{L}:")
        for i, (va, off) in enumerate(addrs): a(f"global_load_dwordx4 {vr(dst+4*i)}, {va}, {pWS} offset:{off} sc1")
        if first_plain: a(f"{Lc}:")
        check(n, dst, dst, tmp, tagged, 0)
        a(f"s_cbranch_scc1 {Dn}\ns_sub_u32 {sTO}, {sTO}, 1\ns_cbranch_scc1 {Dn}")
        if sleep: a(f"s_sleep {sleep}")
        a(f"s_branch {L}\n{Dn}:")
    def ppoll(addrs, dst, buf, tmp, tagged=True, sleep=0):
        if PR == 1: return poll(addrs, dst, tmp, tagged=tagged, sleep=sleep)
        L, Dn = a.label("Lpp"), a.label("Lppd")
        n = len(addrs)
        def iss(r):
            for i, (va, off) in enumerate(addrs): a(f"global_load_dwordx4 {vr(buf+4*(n*r+i))}, {va}, {pWS} offset:{off} sc1")
        a(f"s_mov_b32 {sTO}, {TO}")
        for r in range(PR - 1):
            iss(r); a(f"s_sleep {PGAP}")
        a(f"{L}:")
        for r in range(PR):
            iss((r + PR - 1) % PR)
            check(n, buf + 4 * n * r, dst, tmp, tagged, n * (PR - 1))
            a(f"s_cbranch_scc1 {Dn}")
        a(f"s_sub_u32 {sTO}, {sTO}, 1\ns_cbranch_scc0 {L}\n{Dn}:")
    def tag(base, n4, vff):
        for i in range(n4):
            for k in range(4): a(f"v_bfi_b32 v{base+4*i+k}, {vff}, {sTag[k]}, v{base+4*i+k}")
    def lds_wait(off, val, va="v12", vt="v13", sleep=1):
        L, Dn = a.label("Llw"), a.label("Llwd")
        a(f"v_mov_b32 {va}, {L_CNT}")
        a(f"{L}:\nds_read_b32 {vt}, {va} offset:{off}\ns_waitcnt lgkmcnt(0)\nv_readfirstlane_b32 s4, {vt}")
        a(f"s_cmp_ge_u32 s4, {val}\ns_cbranch_scc1 {Dn}\ns_sleep {sleep}\ns_branch {L}\n{Dn}:")
    def lds_inc(off, va="v12", vt="v13"):
        a(f"s_mov_b64 exec, 1\nv_mov_b32 {va}, {L_CNT}\nv_mov_b32 {vt}, 1\ns_waitcnt lgkmcnt(0)\nds_add_u32 {va}, {vt} offset:{off}")
        exec_all()
    def swap_add(pl, op, regs, tmps):
        for r, t in zip(regs, tmps): a(f"v_mov_b32 {t}, {r}")
        for r, t in zip(regs, tmps): a(f"{pl} {r}, {t}")
        for r, t in zip(regs, tmps): a(f"{op} {r}, {r}, {t}")
    def ror(op, regs, sh):
        for r in regs: a(f"{op}_dpp {r}, {r}, {r} row_ror:{sh} row_mask:0xf bank_mask:0xf")
    def wave_reduce(op, regs, tmps):
        for sh in (8, 4, 2, 1): ror(op, regs, sh)
        for pl in ("v_permlane16_swap_b32", "v_permlane32_swap_b32"): swap_add(pl, op, regs, tmps)
    def rnd2(x0, x1, t):
        a(f"v_cvt_pk_bf16_f32 {t}, {x0}, {x1}\nv_lshlrev_b32 {x0}, 16, {t}\nv_and_b32 {x1}, 0xffff0000, {t}")
    def rndn(base, n, tb):
        for i in range(n // 2): a(f"v_cvt_pk_bf16_f32 v{tb+i}, v{base+2*i}, v{base+2*i+1}")
        unpack(base, tb, n // 2)
    def unpack(dst, src, n):
        for i in range(n):
            a(f"v_lshlrev_b32 v{dst+2*i}, 16, v{src+i}\nv_and_b32 v{dst+2*i+1}, 0xffff0000, v{src+i}")
    def pkadd(d, x, y, n):
        for i in range(0, n, 2): a(f"v_pk_add_f32 v[{d+i}:{d+i+1}], v[{x+i}:{x+i+1}], v[{y+i}:{y+i+1}]")
    def make_tags():
        a(f"s_mul_i32 {sT}, {sT}, 0x41c64e6d\ns_add_u32 {sT}, {sT}, 0x9e3779b1")
        for k in range(4): a(f"s_bfe_u32 {sTag[k]}, {sT}, {hex(0x80000 + 8*k)}")

    def touch_addr(dst, sidx):
        a(f"s_lshr_b32 s4, {sidx}, 4\ns_lshl_b32 s4, s4, 17\ns_and_b32 s5, {sidx}, 15\ns_lshl_b32 s5, s5, 11\ns_add_u32 s4, s4, s5")
        a(f"v_and_b32 {dst}, 15, v0\nv_lshl_add_u32 {dst}, {dst}, 7, s4\nv_lshrrev_b32 v13, 4, v0\nv_lshl_add_u32 {dst}, v13, 15, {dst}")
    def post_touch():
        mats = [p for k, p in enumerate((pWD, pWG, pWU)) if (post >> k) & 1]
        L = a.label("Lpt")
        a(f"s_sub_u32 s6, s2, 176\ns_mul_i32 s7, s3, 48\ns_add_u32 s6, s6, s7\ns_cmp_ge_u32 s6, 224\ns_cbranch_scc1 {L}")
        touch_addr("v14", "s6")
        for i, p in enumerate(mats): a(f"global_load_dword v{16+i}, v14, {p}")
        a(f"s_waitcnt vmcnt(0)\n{L}:")
    def wo_frags():
        a(f"v_lshrrev_b32 v56, 4, v0\nv_bfe_u32 v57, v0, 2, 2\nv_lshlrev_b32 v58, 14, v56\nv_lshl_add_u32 v58, v57, 11, v58\nv_and_b32 v59, 3, v0\nv_lshl_add_u32 v58, v59, 3, v58")
        a(f"v_bfe_u32 v57, v0, 2, 3\ns_and_b32 s4, {sW}, 1\ns_lshl_b32 s4, s4, 2\nv_xor_b32 v57, s4, v57\ns_lshr_b32 s4, {sW}, 1\ns_lshl_b32 s4, s4, 10\ns_add_u32 s4, s4, {L_SF}\nv_add_u32 v58, s4, v58")
        for t in range(4):
            a(f"v_xor_b32 v60, {t}, v57\nv_lshl_add_u32 v60, v60, 5, v58")
            for kb in range(4):
                r = 128 + 4 * (4 * t + kb)
                a(f"ds_read_b64_tr_b16 v[{r}:{r+1}], v60 offset:{kb*256}\nds_read_b64_tr_b16 v[{r+2}:{r+3}], v60 offset:{kb*256+8192}")
            a("s_waitcnt lgkmcnt(0)")
        a(f"v_lshlrev_b32 v226, 8, v59\nv_lshl_add_u32 v226, v56, 4, v226")
        a(f"s_xor_b32 s4, {sH}, {sSide if wside else 0}\ns_and_b32 s4, s4, 1\ns_lshl_b32 s4, s4, 2\ns_xor_b32 s4, s4, s3\ns_xor_b32 s4, s4, 4\ns_lshl_b32 s4, s4, 1\ns_lshl_b32 s5, {sB}, 4\ns_add_u32 s4, s4, s5\ns_lshl_b32 s4, s4, 13\ns_and_b32 s5, s2, 63\ns_lshl_b32 s5, s5, 7")
        a(f"s_add_u32 s4, s4, s5\ns_add_u32 s4, s4, {WS_Y}\nv_lshrrev_b32 v227, 5, v0\nv_lshl_add_u32 v227, v227, 13, s4\nv_and_b32 v228, 31, v0\nv_lshl_add_u32 v227, v228, 2, v227")
        a(f"v_lshlrev_b32 v228, 3, v59\nv_lshrrev_b32 v228, v228, {sT}\nv_mov_b32 v229, 0xff")
    def y_product():
        for kb in range(4): a(f"ds_read_b128 {vr(192+4*kb)}, v226 offset:{L_OP+kb*64}")
        for kb in range(4):
            a(f"s_waitcnt lgkmcnt({3-kb})")
            for t in range(4):
                d = vr(208 + 4 * t)
                a(f"v_mfma_f32_16x16x32_bf16 {d}, {vr(192+4*kb)}, {vr(128+4*(4*t+kb))}, {'0' if kb == 0 else d}")
        for t in range(4): pkadd(208 + 4 * t, 208 + 4 * t, 210 + 4 * t, 2)
        a("v_add_f32 v224, v208, v209")
        for t in (1, 2, 3): a(f"v_add_f32_dpp v224, v{208+4*t}, v{209+4*t} quad_perm:[0,1,2,3] row_mask:{hex(1<<t)} bank_mask:0xf")
        a(f"v_bfi_b32 v224, v229, v228, v224\nglobal_store_dword v227, v224, {pWS} sc1")

    a(f"; @launch grid=(256,1,1) block=(512,1,1) lds={LDS_SIZE}")
    a('.amdgcn_target "amdgcn-amd-amdhsa--gfx950"')
    a(f".text\n.globl {KN}\n.p2align 8\n.type {KN},@function\n{KN}:")
    a("s_cmp_ge_u32 s2, 256\ns_cbranch_scc1 L_end")
    a("s_load_dwordx16 s[16:31], s[0:1], 0\ns_load_dwordx8 s[32:39], s[0:1], 64\ns_load_dwordx4 s[40:43], s[0:1], 96")
    a("v_lshrrev_b32 v1, 6, v0\nv_and_b32 v0, 63, v0\nv_readfirstlane_b32 s3, v1")
    a(f"v_lshlrev_b32 v12, 2, v0\nv_mov_b32 v13, 0\nds_write_b32 v12, v13 offset:{L_CNT}")
    if pairx == 3:
        a(f"s_lshr_b32 s4, s2, 1\ns_and_b32 {sSide}, s4, 1\ns_xor_b32 s4, s4, s2\ns_and_b32 s4, s4, 1\ns_lshr_b32 {sPair}, s2, 2\ns_lshl_b32 {sPair}, {sPair}, 1\ns_or_b32 {sPair}, {sPair}, s4")
    else:
        a(f"s_and_b32 {sSide}, s2, 1\ns_lshr_b32 {sPair}, s2, 1")
    a(f"s_lshr_b32 {sB}, s2, 6\ns_and_b32 {sH}, {sPair}, 31\ns_lshl_b32 {sCh}, {sPair}, 1\ns_or_b32 {sCh}, {sCh}, {sSide}")
    if remap:
        a(f"s_xor_b32 s4, {sSide}, 1\ns_lshl_b32 s4, s4, 5\ns_cmp_ge_u32 s2, 192\ns_cselect_b32 s4, s4, 0\ns_xor_b32 s2, s2, s4")
    a(f"s_and_b32 {sXc}, s2, 7\ns_lshr_b32 {sXr}, s2, 3\ns_and_b32 {sW}, s3, 3")
    a("s_cmp_ge_u32 s3, 4\ns_cbranch_scc1 L_helper")

    vK, vV, vNxt, vSp, vM, vL, vS, vP, vNM = "v1", "v2", "v4", "v5", "v6", "v7", "v8", "v9", "v10"
    T0 = 12; BQ = 20; DD = 36
    RING = 64; X0 = 128; X1 = 192
    a(f"v_and_b32 v12, 15, v0\nv_lshrrev_b32 v13, 4, v0")
    a(f"v_lshlrev_b32 {vK}, 6, v12\nv_lshl_add_u32 {vK}, v13, 4, {vK}")
    a(f"v_lshlrev_b32 {vV}, 4, v0")
    if klin: a(f"v_mov_b32 {vK}, {vV}")
    a(f"s_and_b32 s4, s3, 1\ns_lshl_b32 s4, s4, {bits[0]}\ns_lshr_b32 s5, s3, 1\ns_lshl_b32 s5, s5, {bits[1]}\ns_add_u32 s4, s4, s5")
    a(f"v_add_u32 {vK}, s4, {vK}\nv_add_u32 {vV}, s4, {vV}")
    a(f"s_lshl_b32 s5, {sCh}, 20")
    a("s_waitcnt lgkmcnt(0)")
    stamp(0)
    a(f"s_add_u32 s44, {lo(pK)}, s5\ns_addc_u32 s45, {hi(pK)}, 0\ns_mov_b32 s46, 0x100000\ns_mov_b32 s47, 0x20000")
    assert 5 <= D <= 8
    ubits = list(bits[4:10]) + [20]
    def uoff(U): return sum(((U >> k) & 1) << ubits[k] for k in range(7))
    def uoff_s(dst, src):
        k = 0; first = True
        while k < 7:
            e = k
            while e + 1 < 7 and ubits[e + 1] == ubits[e] + 1: e += 1
            t = dst if first else "s4"
            a(f"s_bfe_u32 {t}, {src}, {hex(((e - k + 1) << 16) + k)}\ns_lshl_b32 {t}, {t}, {ubits[k]}")
            if not first: a(f"s_or_b32 {dst}, {dst}, s4")
            first = False; k = e + 1
    def issue(p, slot, va, srd, st):
        o_ = sum(((p >> k) & 1) << bits[2 + k] for k in range(4))
        so, imm = o_ & ~4095, o_ & 4095
        if isinstance(st, int): a(f"s_mov_b32 {sOF}, {st+so}"); o = sOF
        elif so: a(f"s_add_u32 {sOF}, {st}, {so}"); o = sOF
        else: o = st
        if slot is None:
            a(f"s_add_u32 m0, s10, {p*1024 - imm}")
            a(f"buffer_load_dwordx4 {va}, {srd}, {o} offen offset:{imm} {kvpol} lds")
        else:
            a(f"buffer_load_dwordx4 {vr(slot)}, {va}, {srd}, {o} offen offset:{imm} {kvpol}")
    NB = 4
    order = [(0, X0), (1, None), (2, X1), (3, RING)]
    fill = [(t, p, None if base is None else base + 4 * p) for t, base in order for p in range(16)]
    for idx, (t, p, slot) in enumerate(fill):
        if idx == Df:
            a("s_barrier")
            a(f"s_load_dword {sT}, {pWS}, {WS_EP}")
            a(f"s_mov_b32 s48, s44\ns_mov_b32 s49, s45\ns_mov_b32 s50, 0x100000\ns_mov_b32 s51, 0x20000")
            a(f"s_mov_b32 s62, 0x22222222\ns_mov_b32 s63, 0x22222222\ns_mov_b32 s64, 0x44444444\ns_mov_b32 s65, 0x44444444")
            a(f"s_mov_b32 s66, 0x88888888\ns_mov_b32 s67, 0x88888888")
            a(f"s_lshl_b32 s4, s3, 13\ns_lshl_b32 s5, {sSide}, 12\ns_add_u32 s4, s4, s5\ns_add_u32 s4, s4, {L_SC}")
            a(f"v_and_b32 v12, 3, v0\nv_lshl_add_u32 {vSp}, v12, 6, s4\nv_and_b32 v12, 60, v0\nv_add_u32 {vSp}, v12, {vSp}")
            a(f"v_mov_b32 {vM}, 0xff7fffff\nv_mov_b32 {vL}, 0")
            a(f"v_mov_b32 {vNxt}, {vK}")
            a(f"s_lshl_b32 s10, s3, 14\ns_add_u32 s10, s10, {L_SF}")
        if idx >= Df: a(f"s_waitcnt vmcnt({Df-1})")
        if idx == Df: stamp(8)
        if idx == 16 + Df - 1: stamp(9)
        if idx == 32 + Df - 1: stamp(10)
        issue(p, slot, vK, SRDC, uoff(4 * t))
    stamp(1)
    lds_wait(C_Q, 1)
    stamp(2)
    a(f"v_and_b32 v12, 3, v0\nv_lshlrev_b32 v12, 6, v12\nv_lshrrev_b32 v13, 4, v0\nv_lshl_add_u32 v12, v13, 4, v12\nds_read_b128 v[16:19], v12 offset:{L_QB}")
    a("v_bfe_u32 v13, v0, 2, 2")
    make_tags()
    a("s_waitcnt lgkmcnt(0)")
    for t in range(4):
        a(f"v_cmp_eq_u32 vcc, {t}, v13")
        for r in range(4): a(f"v_cndmask_b32 v{BQ+4*t+r}, 0, v{16+r}, vcc")
    def k_step(n, slot):
        u, t = n >> 2, n & 3
        d = vr(DD + 4 * u)
        a(f"v_mfma_f32_16x16x32_bf16 {d}, {vr(slot)}, {vr(BQ+4*t)}, {'0' if t == 0 else d}")
    def k_group(u):
        T = T0 + u
        o = [(u + i) & 3 for i in (1, 2, 3)]
        a(f"v_add_f32_dpp v{T}, v{DD+4*u+o[0]}, v{DD+4*u+u} quad_perm:[{o[0]},{o[0]},{o[0]},{o[0]}] row_mask:0xf bank_mask:0xf")
        for x in o[1:]:
            a(f"v_add_f32_dpp v{T}, v{DD+4*u+x}, v{T} quad_perm:[{x},{x},{x},{x}] row_mask:0xf bank_mask:0xf")
    def k_finish(off):
        a(f"v_cndmask_b32 v12, v12, v13, {sM1}\nv_cndmask_b32 v12, v12, v14, {sM2}\nv_cndmask_b32 v12, v12, v15, {sM3}")
        a(f"v_cvt_pk_bf16_f32 v12, v12, v12\nv_and_b32 v12, 0xffff0000, v12\nv_mul_f32 v12, {hex(SCALE)}, v12")
        a(f"v_cvt_pk_bf16_f32 v12, v12, v12\nv_and_b32 v12, 0xffff0000, v12")
        a(f"ds_write_b32 {vSp}, v12 offset:{off}")
        a(f"v_max_f32 v13, {vM}, v12\nv_sub_f32 v14, {vM}, v13\nv_sub_f32 v15, v12, v13")
        a(f"v_mul_f32 v14, {hex(LOG2E)}, v14\nv_mul_f32 v15, {hex(LOG2E)}, v15\nv_exp_f32 v14, v14\nv_exp_f32 v15, v15")
        a(f"v_mov_b32 {vM}, v13\nv_fma_f32 {vL}, {vL}, v14, v15")
    def k_tile(base, off, pre=None, post=None):
        for n in range(16):
            if pre: pre(n)
            k_step(n, base + 4 * n)
            if post: post(n)
            if n & 3 == 0 and n and not nokwork: k_group((n >> 2) - 1)
        if not nokwork: k_group(3)
        k_finish(off)
    k_tile(RING, (NB - 1) * 256, pre=lambda n: a("s_waitcnt vmcnt(15)"), post=lambda n: issue(n, RING + 4 * n, vK, SRDC, uoff(4 * NB)))
    k_tile(X0, 0)
    a(f"v_lshl_add_u32 v16, v0, 4, s10")
    for p in range(16):
        a(f"ds_read_b128 {vr(X0+4*p)}, v16 offset:{p*1024}")
        if p == 7: a("s_waitcnt lgkmcnt(0)")
    k_tile(X1, 2 * 256)
    lds_inc(C_XT, "v16", "v17")
    k_tile(X0, 256)
    def preB(n):
        if n + D >= 16:
            issue(n + D - 16, RING + 4 * (n + D - 16), vK, SRDC, uoff(4 * NB + 4)); a(f"s_waitcnt vmcnt({D})")
        else: a(f"s_waitcnt vmcnt({15-n})")
    k_tile(RING, NB * 256, pre=preB)
    stamp(3)
    if trace: a("s_mov_b32 s27, 0\nv_mov_b32 v63, 0")
    tr()
    sN0, sN1, sStep, sN, sEnd, sU0 = sTN, "s11", "s12", sLC, "s13", "s8"
    a(f"s_mov_b32 {sN0}, {uoff(4*NB+4)}\ns_mov_b32 {sN}, {4*NB+4}\nv_add_u32 {vSp}, {(NB+1)*256}, {vSp}")
    a(f"s_lshl_b32 s5, {sPair}, 21\ns_add_u32 s6, {lo(pV)}, s5\ns_addc_u32 s7, {hi(pV)}, 0")
    a(f"s_mul_i32 {sU0}, {sSide}, 127\ns_lshl_b32 s4, {sSide}, 1\ns_sub_u32 {sStep}, 1, s4")
    def pre_steady(n):
        p = n + D
        if p < 16: issue(p, RING + 4 * p, vK, SRDC, sTC)
        else: issue((p - 16) & 3, RING + 4 * (p - 16), vNxt, SRDN, sN0 if p < 20 else sN1)
    a("L_kloop:")
    a(f"s_mov_b32 {sTC}, {sN0}\ns_add_u32 {sN}, {sN}, 4")
    uoff_s(sN0, sN)
    a(f"s_add_u32 {sN1}, {sN0}, {uoff(1)}")
    a(f"s_cmp_lg_u32 {sN}, 64\ns_cbranch_scc1 L_knosw")
    a(f"s_mov_b32 s48, s6\ns_mov_b32 s49, s7\ns_mov_b32 s50, 0x200000\nv_mov_b32 {vNxt}, {vV}")
    uoff_s(sN0, sU0)
    a(f"s_add_u32 s5, {sU0}, {sStep}")
    uoff_s(sN1, "s5")
    a("L_knosw:")
    k_tile(RING, 0, pre=lambda n: (pre_steady(n), a(f"s_waitcnt vmcnt({D})")))
    a(f"v_add_u32 {vSp}, 256, {vSp}")
    tr()
    a(f"s_cmp_lg_u32 {sN}, 64\ns_cbranch_scc1 L_kloop")
    stamp(4)
    sUa, sUb, sNx = sN1, sN0, sTC
    vCn, vLim, vPg, vSt = "v3", "v4", "v11", "v1"
    a(f"s_add_u32 {sNx}, {sU0}, {sStep}\ns_add_u32 {sNx}, {sNx}, {sStep}")
    a(f"s_lshl_b32 s4, s3, 13\ns_lshl_b32 s5, {sU0}, 6\ns_add_u32 s4, s4, s5\ns_add_u32 s4, s4, {L_SC}")
    a(f"v_and_b32 v12, 3, v0\nv_lshl_add_u32 {vSp}, v12, 2, s4\nv_and_b32 v12, 48, v0\nv_add_u32 {vSp}, v12, {vSp}")
    a(f"ds_read_b32 {vS}, {vSp}")
    a(f"s_lshl_b32 s4, {sStep}, 6\nv_mov_b32 {vSt}, s4\nv_mov_b32 {vCn}, {L_CNT}\nv_mov_b32 {vLim}, 0")
    a(f"v_mov_b32 v12, {vM}")
    wave_reduce("v_max_f32", ["v12"], ["v13"])
    a(f"v_sub_f32 v14, {vM}, v12\nv_mul_f32 v14, {hex(LOG2E)}, v14\nv_exp_f32 v14, v14\nv_mul_f32 v13, {vL}, v14")
    wave_reduce("v_add_f32", ["v13"], ["v14"])
    a(f"v_mul_f32 {vNM}, {hex(LOG2E | 0x80000000)}, v12")
    a(f"s_lshl_b32 s4, s3, 3\nv_mov_b32 v14, s4\ns_lshl_b32 s4, s3, 2\nv_mov_b32 {vPg}, s4\nv_mov_b32 v15, 1")
    a(f"s_mov_b64 exec, 1\nds_write_b64 v14, v[12:13] offset:{L_CNT+C_ML}\nds_add_u32 {vCn}, v15 offset:{C_KD}")
    exec_all()
    ACC, AS, MK = DD, DD + 4, DD + 12
    a("v_and_b32 v12, 1, v0\nv_lshlrev_b32 v12, 4, v12\nv_mov_b32 v13, 0xffff\nv_lshlrev_b32 v12, v12, v13\nv_bfe_u32 v13, v0, 1, 3")
    for r in range(4):
        a(f"v_cmp_eq_u32 vcc, {r}, v13\nv_cndmask_b32 v{MK+r}, 0, v12, vcc\nv_mov_b32 v{ACC+r}, 0")
    a(f"s_mov_b32 s9, {hex(LOG2E)}\ns_mov_b32 {sN}, 0\ns_mov_b32 {sEnd}, 0xffff")
    a("v_and_b32 v16, 15, v0\nv_lshlrev_b32 v16, 4, v16\nv_bfe_u32 v13, v0, 4, 1\nv_lshl_add_u32 v16, v13, 3, v16\ns_lshl_b32 s4, s3, 8\nv_add_u32 v16, s4, v16")
    a(f"v_mov_b32 v227, {WS_Y}")
    a("L_vloop:")
    a(f"s_cmp_lg_u32 {sN}, {4*S}\ns_cbranch_scc1 L_vnosw")
    a(f"ds_read_b32 v12, {vCn} offset:{C_REF}\ns_waitcnt lgkmcnt(0)")
    a(f"v_add_f32 v13, {vNM}, v12\nv_sub_f32 {vNM}, 0, v12\nv_exp_f32 v13, -v13")
    for r in range(4): a(f"v_mul_f32 v{ACC+r}, v{ACC+r}, v13")
    wo_frags()
    a(f"s_cmp_eq_u32 {sN}, {sEnd}\ns_cbranch_scc1 L_vdone")
    a("L_vnosw:")
    for c in range(4):
        Lchk, Lok, Lgo = a.label("Lchk"), a.label("Lok"), a.label("Lgo")
        a("s_waitcnt lgkmcnt(0)")
        a(f"v_fma_f32 {vP}, {vS}, s9, {vNM}\nv_add_u32 {vSp}, {vSt}, {vSp}\nv_exp_f32 {vP}, {vP}\nv_mov_b32 v12, {sN}")
        a(f"ds_write_b32 {vPg}, v12 offset:{L_CNT+C_PROG}")
        a(f"{Lchk}:")
        a(f"v_readfirstlane_b32 s4, {vLim}")
        a(f"s_and_b32 s5, s4, 0xffff\ns_add_u32 s5, s5, {4*S-2}\ns_cmp_lt_u32 {sN}, s5\ns_cbranch_scc1 {Lok}")
        a(f"s_mov_b32 {sUb}, 0x40000000\ns_add_u32 {sEnd}, s5, 2\ns_bitcmp1_b32 s4, 16\ns_cbranch_scc1 {Lgo}")
        a(f"s_mov_b32 {sEnd}, 0xffff\nds_read_b32 {vLim}, {vCn} offset:{C_LIM}\ns_waitcnt lgkmcnt(0)\ns_branch {Lchk}")
        a(f"{Lok}:")
        uoff_s(sUb, sNx)
        a(f"s_add_u32 {sNx}, {sNx}, {sStep}")
        a(f"{Lgo}:")
        a(f"v_cvt_pk_bf16_f32 {vP}, {vP}, {vP}")
        a(f"ds_read_b32 {vS}, {vSp}\nds_read_b32 {vLim}, {vCn} offset:{C_LIM}")
        for t in range(4):
            n = 4 * c + t
            idx = t + D
            issue(idx & 3, RING + 4 * ((n + D) & 15), vV, SRDN, sUa if idx < 8 else sUb)
            A = AS + 4 * (n & 1)
            for r in range(4):
                a(f"v_and_b32_dpp v{A+r}, {vP}, v{MK+r} row_newbcast:{t} row_mask:0xf bank_mask:0xf")
            a(f"s_waitcnt vmcnt({D})")
            a(f"v_mfma_f32_16x16x32_bf16 {vr(ACC)}, {vr(A)}, {vr(RING+4*n)}, {vr(ACC)}")
        a(f"s_mov_b32 {sUa}, {sUb}\ns_add_u32 {sN}, {sN}, 1")
        if c < 3: a(f"s_cmp_eq_u32 {sN}, {sEnd}\ns_cbranch_scc1 L_vdone")
    tr()
    a(f"s_cmp_eq_u32 {sN}, {4*S}\ns_cbranch_scc1 L_vloop")
    a(f"s_cmp_lg_u32 {sN}, {sEnd}\ns_cbranch_scc1 L_vloop")
    a("L_vdone:")
    exec_set(0xffffffff, 0)
    a(f"v_cvt_pk_bf16_f32 v12, v{ACC}, v{ACC+1}\nv_cvt_pk_bf16_f32 v13, v{ACC+2}, v{ACC+3}\nds_write_b64 v16, v[12:13] offset:{L_OP}")
    exec_all()
    stamp(5)
    if stamps: a(f"s_mov_b32 s92, {sN}")
    a("s_waitcnt lgkmcnt(0)\ns_barrier")
    y_product()
    a("s_waitcnt vmcnt(1)")
    if trace:
        a(f"s_lshl_b32 s4, s2, 2\ns_add_u32 s4, s4, s3\ns_lshl_b32 s4, s4, 8\ns_add_u32 s4, s4, {WS_ST+0x100000}\nv_lshl_add_u32 v12, v0, 2, s4\nglobal_store_dword v12, v63, {pWS}")
    a("s_cmp_ge_u32 s2, 224\ns_cbranch_scc1 L_down_s")
    a("s_cmp_ge_u32 s2, 176\ns_cbranch_scc1 L_idle_s")
    a("s_cmp_ge_u32 s2, 64\ns_cbranch_scc1 L_ffn")
    a(f"s_cmp_ge_u32 s3, {NRED}\ns_cbranch_scc1 L_fin_s")
    a(f"v_and_b32 v12, 7, v0\nv_lshlrev_b32 v12, 4, v12\nds_read_b128 v[16:19], v12 offset:{L_G}\nds_read_b128 v[24:27], v12 offset:{L_G+128}")
    a(f"s_lshl_b32 s4, s2, 7\ns_add_u32 s4, s4, {WS_X1}\nv_lshrrev_b32 v14, 3, v0\nv_lshl_add_u32 v13, v14, 13, s4\nv_add_u32 v13, v12, v13")
    a(f"s_lshl_b32 s4, s2, 13\ns_add_u32 s4, s4, {WS_Y + 4096}\nv_lshl_add_u32 v14, v0, 4, s4\nv_mov_b32 v20, 0xff")
    for w in range(1, NRED):
        Ls = a.label("Lrs")
        a(f"s_cmp_lt_u32 s3, {w}\ns_cbranch_scc1 {Ls}\ns_sleep {RGAP}\n{Ls}:")
    poll([("v14", i * 1024 - 4096) for i in range(8)], 64, "v15", sleep=ysleep)
    stamp(6)
    for st in (16, 8, 4): pkadd(64, 64, 64 + st, st)
    ror("v_add_f32", vl(64, 4), 8)
    for pl in ("v_permlane16_swap_b32", "v_permlane32_swap_b32"): swap_add(pl, "v_add_f32", vl(64, 4), vl(68, 4))
    a("s_waitcnt lgkmcnt(0)")
    for i in range(4): a(f"v_fma_f32 v{64+i}, v{16+i}, v{64+i}, v{24+i}")
    rndn(64, 4, 68)
    for k in range(4): a(f"v_or_b32 v{64+k}, {sTag[k]}, v{64+k}")
    if xrep < 8:
        m = (1 << (8 * xrep)) - 1
        exec_set(m & 0xffffffff, m >> 32)
    a(f"global_store_dwordx4 v13, v[64:67], {pWS} sc1")
    stamp(7)
    a("L_fin_s:")
    stamps_out(range(12), late=False)
    a("s_endpgm")

    a("L_idle_s:")
    if post: post_touch()
    a("s_cmp_lt_u32 s3, 4\ns_cbranch_scc1 L_fin_s\ns_branch L_fin_h")
    a("L_ffn:")
    a("s_cmp_lt_u32 s3, 2\ns_cbranch_scc1 L_fin_s")
    lds_wait(C_F, 4)
    a("v_lshrrev_b32 v13, 4, v0\nv_lshlrev_b32 v14, 9, v13\nv_bfe_u32 v12, v0, 1, 3\nv_lshl_add_u32 v14, v12, 5, v14\nv_and_b32 v12, 1, v0\nv_lshl_add_u32 v14, v12, 3, v14")
    a(f"s_and_b32 s7, s3, 1\ns_lshl_b32 s4, s7, 4\ns_add_u32 s4, s4, {L_SF}\nv_add_u32 v14, s4, v14")
    for kb in range(16):
        a(f"ds_read_b64_tr_b16 v[{64+4*kb}:{65+4*kb}], v14 offset:{kb*2048}\nds_read_b64_tr_b16 v[{66+4*kb}:{67+4*kb}], v14 offset:{kb*2048+256}")
        if kb % 4 == 3: a("s_waitcnt lgkmcnt(0)")
    a("v_and_b32 v15, 3, v0\nv_lshlrev_b32 v15, 10, v15\nv_bfe_u32 v16, v0, 2, 2\nv_lshl_add_u32 v15, v16, 6, v15\nv_lshl_add_u32 v15, v13, 4, v15")
    a(f"s_mul_i32 s4, {sXc}, 14\ns_add_u32 s4, s4, {sXr}\ns_sub_u32 s4, s4, 8\ns_lshl_b32 s4, s4, 1\ns_add_u32 s4, s4, s7\ns_lshl_b32 s4, s4, {6+afull}\ns_add_u32 s4, s4, {WS_ACT}")
    if ax4: a("v_and_b32 v16, 3, v0\nv_lshl_add_u32 v16, v16, 4, s4\nv_bfe_u32 v17, v0, 4, 1\nv_lshl_add_u32 v16, v17, 6, v16")
    else: a("v_and_b32 v16, 3, v0\nv_lshl_add_u32 v16, v16, 4, s4\nv_bfe_u32 v17, v0, 4, 1\nv_lshl_add_u32 v16, v17, 3, v16\nv_lshrrev_b32 v17, 5, v0\nv_lshl_add_u32 v16, v17, 6, v16")
    stamp(7)
    a("s_mov_b32 s5, 0x3d372713\ns_mov_b32 s6, 0xc0135761\ns_waitcnt lgkmcnt(0)")
    a("s_barrier")
    for i in range(4): a(f"ds_read_b128 {vr(20+4*i)}, v15 offset:{L_H2+i*256}")
    for i in range(4):
        a(f"s_waitcnt lgkmcnt({3-i})")
        for k in range(4):
            d = vr(36 + 4 * k)
            a(f"v_mfma_f32_16x16x32_bf16 {d}, {vr(64+4*(4*i+k))}, {vr(20+4*i)}, {'0' if i == 0 else d}")
    for k in (1, 2, 3):
        for r in range(4): a(f"v_add_f32_dpp v{36+r}, v{36+4*k+r}, v{36+r} row_shl:{4*k} row_mask:0xf bank_mask:0xf")
    for r in range(4): a(f"v_mov_b32 v{40+r}, v{36+r}")
    for r in range(4): a(f"v_permlane32_swap_b32 v{36+r}, v{40+r}")
    for r in range(4): a(f"v_mul_f32 v{44+r}, v{36+r}, v{36+r}")
    for r in range(4): a(f"v_fma_f32 v{44+r}, v{44+r}, s5, 1.0")
    for r in range(4): a(f"v_mul_f32 v{44+r}, v{44+r}, v{36+r}")
    for r in range(4): a(f"v_mul_f32 v{44+r}, s6, v{44+r}")
    for r in range(4): a(f"v_exp_f32 v{44+r}, v{44+r}")
    for r in range(4): a(f"v_add_f32 v{44+r}, 1.0, v{44+r}")
    for r in range(4): a(f"v_rcp_f32 v{44+r}, v{44+r}")
    for r in range(4): a(f"v_mul_f32 v{36+r}, v{36+r}, v{44+r}")
    for r in range(4): a(f"v_mul_f32 v{36+r}, v{36+r}, v{40+r}")
    a("v_cvt_pk_bf16_f32 v52, v36, v37\nv_cvt_pk_bf16_f32 v53, v38, v39\nv_min_u32 v52, -2, v52\nv_min_u32 v53, -2, v53")
    if ax4:
        a("v_mov_b32 v54, v52\nv_mov_b32 v55, v53\nv_permlane16_swap_b32 v52, v54\nv_permlane16_swap_b32 v53, v55")
        exec_set(0x000f000f if afull else 0xf, 0)
        a(f"global_store_dwordx4 v16, v[52:55], {pWS} sc1")
    else:
        exec_set(0x000f000f, 0x000f000f if afull else 0)
        a(f"global_store_dwordx2 v16, v[52:53], {pWS} sc1")
    stamp(6)
    stamps_out(range(8))
    a("s_endpgm")

    def down_dma():
        a(f"s_lshl_b32 s4, {sXc}, 2\ns_add_u32 s4, s4, {sXr}\ns_sub_u32 s4, s4, 28\ns_lshl_b32 s4, s4, 5\ns_mul_i32 s5, s3, {7*32*1024}\ns_add_u32 s4, s4, s5")
        a(f"v_lshrrev_b32 v14, 1, v0\nv_lshlrev_b32 v14, 10, v14\nv_and_b32 v13, 1, v0\nv_lshlrev_b32 v13, 4, v13\nv_add3_u32 v14, v14, v13, s4\ns_mul_i32 s6, s3, {7*1024}")
        for kb in range(7):
            a(f"s_add_u32 m0, s6, {L_SF + kb*1024}\nglobal_load_lds_dwordx4 v14, {pWD}")
            if kb < 6: a(f"v_add_u32 v14, {32*1024}, v14")
    a("L_down_s:")
    down_dma()
    a("v_and_b32 v12, 15, v0\nv_lshrrev_b32 v13, 4, v0\nv_lshlrev_b32 v14, 8, v13\nv_lshl_add_u32 v14, v12, 3, v14")
    a(f"s_mul_i32 s4, s3, {7*1024}\ns_add_u32 s4, s4, {L_SF}\nv_add_u32 v14, s4, v14")
    a(f"s_mul_i32 s4, s3, 7\nv_bfe_u32 v15, v0, 2, 2\nv_add_u32 v15, s4, v15\nv_add_u32 v16, 4, v15\nv_min_u32 v16, 55, v16")
    a(f"v_and_b32 v17, 3, v0\nv_lshlrev_b32 v18, 4, v17\nv_lshl_add_u32 v18, v13, 6, v18")
    a(f"ds_read_b128 v[60:63], v18 offset:{L_G}\nv_add_u32 v18, {WS_ACT}, v18")
    if afull: a(f"v_lshl_add_u32 v18, v13, 6, v18\ns_and_b32 s4, {sXr}, 1\ns_lshl_b32 s4, s4, 6\nv_add_u32 v18, s4, v18")
    a(f"v_lshl_add_u32 v15, v15, {8+afull}, v18\nv_lshl_add_u32 v16, v16, {8+afull}, v18")
    a(f"s_lshl_b32 s5, {sXc}, 2\ns_add_u32 s5, s5, {sXr}\ns_sub_u32 s5, s5, 28")
    a("s_lshl_b32 s6, s5, 5\nv_lshl_add_u32 v19, v17, 10, s6\nv_lshl_add_u32 v19, v13, 3, v19")
    a(f"s_and_b32 s6, {sXc}, {xrep-1}\ns_lshl_b32 s6, s6, 13\ns_add_u32 s6, s6, {WS_X1}\nv_lshl_add_u32 v56, v19, 1, s6")
    for k in range(4): a(f"v_mov_b32 v{32+k}, {sTag[k]}")
    def act_loads():
        L = a.label("Lal")
        a(f"s_cmp_lg_u32 s3, 0\ns_cbranch_scc1 {L}\nglobal_load_dwordx4 v[32:35], v56, {pWS} sc1\n{L}:")
        a(f"global_load_dwordx4 v[20:23], v15, {pWS} sc1\nglobal_load_dwordx4 v[24:27], v16, {pWS} sc1")
    def act_check():
        a("s_waitcnt vmcnt(0)")
        tree("v_max_u32", "v_max3_u32", "v57", vl(20, 8))
        for k in range(4): a(f"v_xor_b32 v{28+k}, {sTag[k]}, v{32+k}")
        a("v_cmp_eq_u32 s[6:7], -1, v57\nv_or3_b32 v58, v28, v29, v30\nv_or_b32 v58, v58, v31\nv_and_b32 v58, 0xff, v58\nv_cmp_ne_u32 vcc, 0, v58\ns_or_b64 vcc, vcc, s[6:7]")
    act_loads()
    a("s_waitcnt vmcnt(3)")
    a("s_cmp_eq_u32 s3, 0\ns_cbranch_scc1 L_dw0\ns_waitcnt vmcnt(2)\nL_dw0:")
    for kb in range(7):
        a(f"ds_read_b64_tr_b16 v[{64+4*kb}:{65+4*kb}], v14 offset:{kb*1024}\nds_read_b64_tr_b16 v[{66+4*kb}:{67+4*kb}], v14 offset:{kb*1024+128}")
    stamp(9)
    act_check()
    a("s_cbranch_scc0 L_gotact")
    if a2stage:
        a(f"s_and_b32 s4, s2, 15\ns_lshl_b32 s4, s4, 2\ns_lshl_b64 exec, 1, s4")
        poll([("v15", 0)], 20, "v57", tagged=False, sleep=asleep)
        exec_all()
    a(f"s_mov_b32 {sTO}, {TO}\nL_actp:")
    act_loads()
    act_check()
    a(f"s_cbranch_scc0 L_gotact\ns_sub_u32 {sTO}, {sTO}, 1\ns_cbranch_scc0 L_actp\nL_gotact:")
    stamp(6)
    a("s_waitcnt lgkmcnt(0)")
    for kb in range(7):
        d = vr(36 + 4 * (kb & 3))
        a(f"v_mfma_f32_16x16x32_bf16 {d}, {vr(64+4*kb)}, {vr(20+4*(kb>>2))}, {'0' if kb < 4 else d}")
    a(f"s_lshl_b32 s4, s3, 10\nv_lshl_add_u32 v12, v0, 4, s4")
    for k in (3, 1, 2):
        for r in range(4): a(f"v_add_f32_dpp v{36+r}, v{36+4*k+r}, v{36+r} row_shl:{4*k} row_mask:0xf bank_mask:0xf")
    a(f"ds_write_b128 v12, v[36:39] offset:{L_PM}")
    a("s_waitcnt lgkmcnt(0)\ns_barrier")
    a("s_cmp_eq_u32 s3, 4\ns_cbranch_scc1 L_epoch")
    a("s_cmp_lg_u32 s3, 0\ns_cbranch_scc1 L_fin_d")
    for w in range(1, 8): a(f"ds_read_b128 {vr(64+4*w)}, v12 offset:{L_PM+w*1024}")
    a("s_waitcnt lgkmcnt(0)")
    pkadd(64, 36, 68, 4)
    for w in (2, 4, 6): pkadd(64 + 4 * w, 64 + 4 * w, 68 + 4 * w, 4)
    for w in (0, 4): pkadd(64 + 4 * w, 64 + 4 * w, 72 + 4 * w, 4)
    pkadd(64, 64, 80, 4)
    for i in range(4): a(f"v_fma_f32 v{64+i}, v{60+i}, v{64+i}, v{28+i}")
    a("v_cvt_pk_bf16_f32 v68, v64, v65\nv_cvt_pk_bf16_f32 v69, v66, v67")
    exec_set(0x000f000f, 0x000f000f)
    a(f"global_store_dwordx2 v19, v[68:69], {pOUT} {opol}")
    stamp(7)
    a("L_fin_d:")
    stamps_out(range(10))
    a("s_endpgm")
    a("L_epoch:")
    a("s_cmp_lg_u32 s2, 224\ns_cbranch_scc1 L_fin_d")
    a(f"v_mov_b32 v12, {WS_EP}\nv_mov_b32 v13, {sT}\ns_mov_b64 exec, 1\nglobal_store_dword v12, v13, {pWS} {opol}")
    a("s_branch L_fin_d")

    a("L_helper:")
    vJ, vG, vY, vFF = "v1", "v2", "v7", "v3"
    a(f"v_and_b32 {vJ}, 15, v0\nv_lshrrev_b32 {vG}, 4, v0\nv_mov_b32 {vFF}, 0xff")
    a(f"s_lshl_b32 s10, {sW}, 12")
    a(f"s_lshr_b32 s11, s2, 2\ns_and_b32 s12, s2, 3\ns_lshl_b32 s13, s12, 7\ns_lshl_b32 s4, {sW}, 5\ns_add_u32 s13, s13, s4")
    a("v_lshrrev_b32 v14, 3, v0\nv_add_u32 v14, s13, v14\nv_mul_u32_u24 v14, 6144, v14\nv_and_b32 v15, 7, v0\nv_lshlrev_b32 v15, 4, v15")
    a("s_lshl_b32 s4, s11, 7\nv_add3_u32 v14, v14, v15, s4")
    a(f"v_and_b32 v15, 3, v0\nv_lshlrev_b32 v15, 10, v15\nv_lshl_add_u32 v15, {vG}, 4, v15\ns_lshl_b32 s4, s13, 1\nv_add_u32 v15, s4, v15")
    a(f"s_lshl_b32 s4, {sXc}, 6\ns_lshl_b32 s5, {sW}, 4\ns_add_u32 s4, s4, s5\ns_lshl_b32 s4, s4, 13\ns_lshl_b32 s5, {sXr}, 8\ns_add_u32 s4, s4, s5")
    a(f"v_lshl_add_u32 v16, {vG}, 13, s4\nv_lshl_add_u32 v16, {vJ}, 4, v16")
    a(f"s_lshl_b32 s4, {sW}, 10\nv_lshl_add_u32 v17, v0, 4, s4")
    a("s_waitcnt lgkmcnt(0)")
    stamp(0)
    a(f"s_load_dword {sT}, {pWS}, {WS_EP}")
    def dma(n, voff, ptr, stride, ldsbase_s, ldsoff):
        for i in range(n):
            a(f"s_add_u32 m0, {ldsbase_s}, {ldsoff + i*1024}")
            a(f"global_load_lds_dwordx4 v{voff}, {ptr} nt")
            if i + 1 < n: a(f"v_add_u32 v{voff}, {stride}, v{voff}")
    a("s_cmp_ge_u32 s2, 192\ns_cbranch_scc1 L_nomod1")
    a(f"global_load_dwordx4 v[20:23], v15, {pC}")
    dma(4, 14, pWM, 8 * 6144, "s10", L_SA)
    a("L_nomod1:")
    a(f"global_load_dwordx4 v[24:27], v17, {pX}")
    dma(4, 16, pWQ, 4 * 8192, "s10", L_SB)
    a("s_barrier")
    a("s_waitcnt lgkmcnt(0)")
    make_tags()
    a("s_cmp_ge_u32 s2, 192\ns_cbranch_scc1 L_nomod2")
    a("s_waitcnt vmcnt(9)")
    stamp(11)
    unpack(28, 20, 4)
    for i in range(8): a(f"v_mul_f32 v{36+i}, {hex(LOG2E | 0x80000000)}, v{28+i}")
    for i in range(8): a(f"v_exp_f32 v{36+i}, v{36+i}")
    for i in range(8): a(f"v_add_f32 v{36+i}, 1.0, v{36+i}")
    for i in range(8): a(f"v_rcp_f32 v{44+i}, v{36+i}")
    for i in range(8): a(f"v_mul_f32 v{52+i}, v{28+i}, v{44+i}")
    for i in range(8): a(f"v_fma_f32 v{28+i}, -v{52+i}, v{36+i}, v{28+i}")
    for i in range(8): a(f"v_fma_f32 v{28+i}, v{28+i}, v{44+i}, v{52+i}")
    for i in range(8): a(f"v_cmp_u_f32 vcc, v{28+i}, v{28+i}\nv_cndmask_b32 v{28+i}, v{28+i}, v{52+i}, vcc")
    for i in range(4): a(f"v_cvt_pk_bf16_f32 v{20+i}, v{28+2*i}, v{29+2*i}")
    a(f"v_lshlrev_b32 v14, 10, {vG}\nv_bfe_u32 v15, v0, 2, 2\nv_lshl_add_u32 v14, v15, 7, v14\nv_and_b32 v15, 3, v0\nv_lshl_add_u32 v14, v15, 3, v14\nv_add_u32 v14, s10, v14")
    a("s_waitcnt vmcnt(5)")
    stamp(1)
    for cs in range(4):
        a(f"ds_read_b64_tr_b16 v[{64+4*cs}:{65+4*cs}], v14 offset:{L_SA+cs*32}\nds_read_b64_tr_b16 v[{66+4*cs}:{67+4*cs}], v14 offset:{L_SA+cs*32+512}")
    for cs in range(4):
        a(f"s_waitcnt lgkmcnt({6-2*cs})")
        a(f"v_mfma_f32_16x16x32_bf16 {vr(36+4*cs)}, {vr(64+4*cs)}, v[20:23], 0")
    for cs in (1, 2, 3):
        for r in range(4): a(f"v_mov_b32_dpp v{36+r}, v{36+4*cs+r} quad_perm:[0,1,2,3] row_mask:0xf bank_mask:{hex(1<<cs)}")
    a(f"s_lshl_b32 s4, {sW}, 10\nv_lshl_add_u32 v12, v0, 4, s4\nds_write_b128 v12, v[36:39] offset:{L_PM}")
    a(f"v_mov_b32 v12, {L_CNT}\nv_mov_b32 v13, 1\ns_waitcnt lgkmcnt(0)\ns_mov_b64 exec, 1")
    a(f"ds_add_rtn_u32 v13, v12, v13 offset:{C_MOD}\ns_waitcnt lgkmcnt(0)\nv_readfirstlane_b32 s4, v13")
    exec_all()
    a(f"s_cmp_lg_u32 s4, 3\ns_cbranch_scc1 L_nomod2")
    a("v_lshlrev_b32 v12, 4, v0")
    for w in range(4): a(f"ds_read_b128 {vr(36+4*w)}, v12 offset:{L_PM+w*1024}")
    a("s_cmp_lt_u32 s2, 64\ns_cbranch_scc1 L_modp")
    a(f"s_sub_u32 s4, s11, 16\ns_lshr_b32 s5, s4, 3\ns_lshl_b32 s5, s5, 15\ns_and_b32 s4, s4, 7\ns_lshl_b32 s4, s4, 8\ns_add_u32 s4, s4, s5")
    a(f"s_lshl_b32 s5, s12, 13\ns_add_u32 s4, s4, s5\ns_add_u32 s4, s4, {WS_MODN}")
    a(f"v_and_b32 v12, 3, v0\nv_lshl_add_u32 v12, v12, 11, s4\nv_bfe_u32 v13, v0, 2, 2\nv_lshl_add_u32 v12, v13, 6, v12\nv_lshl_add_u32 v12, {vG}, 4, v12")
    a("s_branch L_modst")
    a("L_modp:")
    a(f"s_and_b32 s4, s11, 7\ns_lshl_b32 s4, s4, 13\ns_lshl_b32 s5, s12, 11\ns_add_u32 s4, s4, s5\ns_lshr_b32 s5, s11, 3\ns_lshl_b32 s5, s5, 7\ns_add_u32 s4, s4, s5\ns_add_u32 s4, s4, {WS_MODP}")
    a("v_and_b32 v12, 3, v0\nv_lshl_add_u32 v12, v12, 4, s4\nv_bfe_u32 v13, v0, 4, 1\nv_lshl_add_u32 v12, v13, 10, v12")
    a("v_bfe_u32 v13, v0, 2, 1\nv_lshl_add_u32 v12, v13, 9, v12\nv_lshrrev_b32 v13, 5, v0\nv_lshl_add_u32 v12, v13, 8, v12\nv_bfe_u32 v13, v0, 3, 1\nv_lshl_add_u32 v12, v13, 6, v12")
    a("L_modst:")
    a("s_waitcnt lgkmcnt(0)")
    pkadd(36, 36, 44, 8); pkadd(36, 36, 40, 4)
    tag(36, 1, vFF)
    a(f"global_store_dwordx4 v12, v[36:39], {pWS} sc1")
    stamp(2)
    a("s_waitcnt vmcnt(1)\ns_branch L_ln")
    a("L_nomod2:")
    a("s_waitcnt vmcnt(0)")
    a("L_ln:")
    unpack(28, 24, 4)
    a("v_add_f32 v36, v28, v29\nv_add_f32 v37, v30, v31\nv_add_f32 v38, v32, v33\nv_add_f32 v39, v34, v35\nv_add_f32 v36, v36, v37\nv_add_f32 v38, v38, v39\nv_add_f32 v36, v36, v38")
    wave_reduce("v_add_f32", ["v36"], ["v37"])
    a("v_mul_f32 v36, 0x3b000000, v36")
    for i in range(8): a(f"v_sub_f32 v{40+i}, v{28+i}, v36")
    a("v_mul_f32 v37, v40, v40")
    for i in range(1, 8): a(f"v_fmac_f32 v37, v{40+i}, v{40+i}")
    wave_reduce("v_add_f32", ["v37"], ["v38"])
    a("v_mul_f32 v37, 0x3b000000, v37")
    rnd2("v36", "v37", "v38")
    a("v_add_f32 v37, 0x3727c5ac, v37\nv_cvt_pk_bf16_f32 v37, v37, v37\nv_and_b32 v37, 0xffff0000, v37\nv_sqrt_f32 v37, v37")
    a("v_cvt_pk_bf16_f32 v37, v37, v37\nv_and_b32 v37, 0xffff0000, v37\nv_rcp_f32 v38, v37")
    for i in range(8): a(f"v_sub_f32 v{28+i}, v{28+i}, v36")
    rndn(28, 8, 48)
    for i in range(8): a(f"v_mul_f32 v{40+i}, v{28+i}, v38")
    for i in range(8): a(f"v_fma_f32 v{28+i}, -v{40+i}, v37, v{28+i}")
    for i in range(8): a(f"v_fma_f32 v{40+i}, v{28+i}, v38, v{40+i}")
    rndn(40, 8, 48)
    a(f"s_lshl_b32 s4, {sW}, 8\nv_and_b32 v12, 7, v0\nv_lshl_add_u32 v12, v12, 5, s4\ns_lshl_b32 s4, {sXc}, 3\ns_lshl_b64 exec, 0xff, s4")
    a(f"ds_write_b128 v12, v[40:43] offset:{L_N}\nds_write_b128 v12, v[44:47] offset:{L_N+16}")
    lds_inc(C_N)
    a(f"s_cmp_lg_u32 {sW}, 0\ns_cbranch_scc1 L_noq")
    lds_wait(C_N, 4)
    a(f"v_lshlrev_b32 v14, 11, {vG}\nv_bfe_u32 v15, v0, 2, 2\nv_lshl_add_u32 v14, v15, 8, v14\nv_and_b32 v15, 3, v0\nv_lshl_add_u32 v14, v15, 3, v14\nv_add_u32 v14, {L_SB}, v14")
    for cb in range(8):
        for kb in range(2):
            r = 128 + 4 * (2 * cb + kb)
            a(f"ds_read_b64_tr_b16 v[{r}:{r+1}], v14 offset:{kb*8192+cb*32}\nds_read_b64_tr_b16 v[{r+2}:{r+3}], v14 offset:{kb*8192+cb*32+1024}")
        if cb & 1: a("s_waitcnt lgkmcnt(0)")
    a(f"v_lshlrev_b32 v15, 8, v15\nv_bfe_u32 v13, v0, 2, 1\nv_lshl_add_u32 v15, v13, 7, v15\nv_lshl_add_u32 v15, {vG}, 5, v15")
    a(f"ds_read_b128 v[28:31], v15 offset:{L_N}\nds_read_b128 v[32:35], v15 offset:{L_N+16}")
    a(f"s_lshl_b32 s4, {sXc}, 13\ns_add_u32 s4, s4, {WS_MODP + 4096}\nv_lshl_add_u32 v14, v0, 4, s4")
    a(f"s_lshl_b32 s4, {sXr}, 14\ns_lshl_b32 s5, {sXc}, 9\ns_add_u32 s4, s4, s5\ns_add_u32 s4, s4, {WS_QP}")
    a(f"v_and_b32 v16, 3, v0\nv_lshl_add_u32 v16, v16, 12, s4\nv_bfe_u32 v13, v0, 2, 2\nv_lshl_add_u32 v16, v13, 6, v16\nv_lshl_add_u32 v16, {vG}, 4, v16")
    a(f"s_lshl_b32 s4, {sH}, 14\ns_lshl_b32 s5, {sB}, 12\ns_add_u32 s4, s4, s5\ns_add_u32 s4, s4, {WS_QP}\nv_lshl_add_u32 v17, v0, 4, s4")
    a("v_mov_b32 v18, 1.0")
    stamp(3)
    poll([("v14", i * 1024 - 4096) for i in range(8)], 64, "v15")
    stamp(4)
    pkadd(64, 64, 80, 16); pkadd(64, 64, 72, 8)
    rndn(64, 8, 72)
    for i in range(8): a(f"v_add_f32_dpp v{76+i}, v{64+i}, v18 row_ror:8 row_mask:0xf bank_mask:0xf")
    rndn(76, 8, 72)
    a("s_waitcnt lgkmcnt(0)")
    for i in range(8): a(f"v_mul_f32 v{76+i}, v{28+i}, v{76+i}")
    rndn(76, 8, 72)
    for i in range(8): a(f"v_add_f32 v{76+i}, v{76+i}, v{64+i}")
    for i in range(4): a(f"v_cvt_pk_bf16_f32 v{20+i}, v{76+2*i}, v{77+2*i}")
    for i in range(4): a(f"v_mov_b32_dpp v{20+i}, v{20+i} row_ror:8 row_mask:0xf bank_mask:0xc")
    for i in range(4): a(f"v_mov_b32 v{24+i}, v{20+i}")
    for i in range(4): a(f"v_mov_b32_dpp v{24+i}, v{20+i} row_ror:4 row_mask:0xf bank_mask:0x5")
    for i in range(4): a(f"v_mov_b32_dpp v{20+i}, v{20+i} row_ror:4 row_mask:0xf bank_mask:0xa")
    for kb in range(2):
        for cb in range(8):
            d = vr(64 + 4 * cb)
            a(f"v_mfma_f32_16x16x32_bf16 {d}, {vr(128+4*(2*cb+kb))}, {vr(20+4*kb)}, {'0' if kb == 0 else d}")
    for s_ in range(2):
        for u in (1, 2, 3):
            for r in range(4): a(f"v_mov_b32_dpp v{64+16*s_+r}, v{64+16*s_+4*u+r} quad_perm:[0,1,2,3] row_mask:0xf bank_mask:{hex(1<<u)}")
        tag(64 + 16 * s_, 1, vFF)
        a(f"global_store_dwordx4 v16, {vr(64+16*s_)}, {pWS} offset:{256*s_} sc1")
    stamp(12)
    poll([("v17", i * 1024) for i in range(4)], 96, "v15")
    pkadd(96, 96, 104, 8); pkadd(96, 96, 100, 4)
    for r in range(4): a(f"v_mov_b32 v{100+r}, v{96+r}")
    for r in range(4): a(f"v_permlane32_swap_b32 v{96+r}, v{100+r}")
    pkadd(96, 96, 100, 4)
    a("v_cvt_pk_bf16_f32 v100, v96, v97\nv_cvt_pk_bf16_f32 v101, v98, v99")
    a(f"v_and_b32 v12, 31, v0\nv_lshlrev_b32 v12, 3, v12\nds_write_b64 v12, v[100:101] offset:{L_QB}\nv_mov_b32 v12, {L_CNT}\nv_mov_b32 v13, 1")
    a(f"ds_write_b32 v12, v13 offset:{C_Q}")
    a("L_noq:")
    stamp(5)
    lds_wait(C_XT, 4, sleep=4)
    a(f"s_cmp_eq_u32 {sW}, 2\ns_cbranch_scc1 L_w6")
    a(f"s_cmp_lg_u32 {sW}, 1\ns_cbranch_scc1 L_bg")
    a(f"s_cmp_lg_u32 {sSide}, 0\ns_cbranch_scc1 L_now")
    a(f"s_lshl_b32 s4, {sPair}, 7\ns_add_u32 s4, s4, {WS_W}\nv_mov_b32 v12, s4\nv_mov_b32 v13, 0")
    a(f"s_mov_b64 exec, 1\nglobal_store_dword v12, v13, {pWS} sc1")
    a("L_now:")
    a("s_branch L_bg")
    a("L_w6:")
    a("s_cmp_ge_u32 s2, 224\ns_cbranch_scc1 L_w6d")
    a("s_cmp_ge_u32 s2, 64\ns_cbranch_scc1 L_bg")
    a(f"s_lshl_b32 s4, s2, 9\ns_add_u32 s4, s4, {WS_ACT}\nv_lshl_add_u32 v12, v0, 3, s4\nv_mov_b32 v14, -1\nv_mov_b32 v15, -1\nglobal_store_dwordx2 v12, v[14:15], {pWS} sc1")
    a(f"v_and_b32 v12, 7, v0\nv_lshlrev_b32 v12, 4, v12\ns_lshl_b32 s4, s2, 7\nv_add_u32 v13, s4, v12")
    a(f"v_lshrrev_b32 v16, 1, v13\nglobal_load_dwordx2 v[36:37], v16, {pX}")
    a(f"v_bfe_u32 v14, v0, 3, 2\nv_lshl_add_u32 v14, v14, 13, v13\nv_add_u32 v14, {WS_MODN}, v14")
    a(f"v_lshrrev_b32 v17, 5, v0\nv_lshl_add_u32 v16, v17, 15, v14\nv_add_u32 v16, 32768, v16")
    poll([("v16", 0), ("v14", 0)], 20, "v15", sleep=8)
    ror("v_add_f32", vl(20, 8), 8)
    swap_add("v_permlane16_swap_b32", "v_add_f32", vl(20, 8), vl(28, 8))
    rndn(20, 8, 28)
    a("v_cvt_f32_u32 v18, v17")
    for i in range(4): a(f"v_add_f32 v{20+i}, v18, v{20+i}")
    rndn(20, 4, 28)
    unpack(32, 36, 2)
    a(f"ds_write_b128 v12, v[24:27] offset:{L_G}\nds_write_b128 v12, v[32:35] offset:{L_G+128}")
    for k in range(4): a(f"v_or_b32 v{20+k}, {sTag[k]}, v{20+k}")
    a(f"v_lshl_add_u32 v13, v17, 13, v13\nv_add_u32 v13, {WS_MODF}, v13")
    exec_set(0xff, 0xff)
    a(f"global_store_dwordx4 v13, v[20:23], {pWS} sc1")
    a("s_branch L_bg")
    a("L_w6d:")
    a(f"s_lshl_b32 s5, {sXc}, 2\ns_add_u32 s5, s5, {sXr}\ns_sub_u32 s5, s5, 28\ns_lshl_b32 s5, s5, 6\ns_add_u32 s5, s5, {WS_MODN + 3*32768}")
    a(f"v_lshl_add_u32 v14, {vJ}, 11, s5\nv_lshl_add_u32 v14, {vG}, 4, v14")
    poll([("v14", 0)], 20, "v15", sleep=8)
    ror("v_add_f32", vl(20, 4), 8); ror("v_add_f32", vl(20, 4), 4)
    rndn(20, 4, 28)
    a(f"v_and_b32 v12, 3, v0\nv_lshlrev_b32 v12, 4, v12\nv_lshl_add_u32 v12, {vG}, 6, v12\nds_write_b128 v12, v[20:23] offset:{L_G}")
    a("L_bg:")
    exec_all()
    a(f"s_lshl_b32 s4, {sH}, 17\ns_add_u32 s44, {lo(pWO)}, s4\ns_addc_u32 s45, {hi(pWO)}, 0\ns_mov_b32 s46, 0x20000\ns_mov_b32 s47, 0x20000")
    a(f"v_lshlrev_b32 v18, 15, {vG}\nv_lshl_add_u32 v18, {vJ}, 4, v18\ns_xor_b32 s13, {sH}, {sSide if wside else 0}\ns_and_b32 s13, s13, 1\ns_lshl_b32 s13, s13, 9")
    a("s_min_u32 s6, s2, 223")
    touch_addr("v14", "s6")
    a(f"s_lshl_b32 s11, {sH}, 1\ns_xor_b32 s11, s11, {sW}")
    for ph in range(2):
        L = a.label("Lbg")
        a(f"s_mov_b32 s12, 0\n{L}:")
        for k in range(BGD):
            a(f"s_xor_b32 s5, s12, s11\ns_lshl_b32 s6, s5, 10\ns_add_u32 m0, s6, {L_SF}")
            a("s_lshr_b32 s6, s5, 1\ns_lshl_b32 s6, s6, 10\ns_and_b32 s7, s5, 1\ns_lshl_b32 s7, s7, 8\ns_add_u32 s6, s6, s7\ns_add_u32 s6, s6, s13")
            a("s_and_b32 s7, s5, 6\ns_lshl_b32 s7, s7, 4\ns_and_b32 s5, s5, 16\ns_lshl_b32 s5, s5, 3\ns_or_b32 s5, s5, s7\nv_xor_b32 v19, s5, v18")
            a(f"buffer_load_dwordx4 v19, s[44:47], s6 offen {wpol} lds\ns_add_u32 s12, s12, 4")
        a(f"s_waitcnt vmcnt(0)\ns_cmp_lt_u32 s12, 64\ns_cbranch_scc1 {L}")
        lds_inc(C_BG)
        if ph == 0:
            for k, p in enumerate((pWD, pWG, pWU)):
                if (pref >> k) & 1:
                    Lk = a.label("Lpf")
                    a(f"s_cmp_lg_u32 {sW}, {k}\ns_cbranch_scc1 {Lk}\nglobal_load_dword v15, v14, {p}\n{Lk}:")
            lds_wait(C_BG, 4, sleep=4)
            wo_frags()
            lds_inc(C_BG)
            lds_wait(C_BG, 8, sleep=2)
            a("s_xor_b32 s13, s13, 512")
    if latemf: lds_wait(C_KD, 4, sleep=8)
    a("s_cmp_ge_u32 s2, 176\ns_cbranch_scc1 L_nomf\ns_cmp_lt_u32 s2, 64\ns_cbranch_scc1 L_nomf")
    a(f"s_lshl_b32 s4, {sW}, 11\ns_add_u32 s4, s4, {WS_MODF}\nv_lshl_add_u32 v12, v0, 4, s4\nv_add_u32 v13, 8192, v12")
    poll([("v12", 0), ("v12", 1024), ("v13", 0), ("v13", 1024)], 104, "v15", sleep=8, first_plain=True)
    a("L_nomf:")
    a(f"s_cmp_lt_u32 s2, 224\ns_cbranch_scc1 L_nomf2\ns_cmp_lg_u32 {sW}, 2\ns_cbranch_scc1 L_nomf2")
    a(f"v_lshlrev_b32 v12, 7, v0\nv_add_u32 v12, {WS_MODF}, v12")
    poll([("v12", 0)], 104, "v15", sleep=8, first_plain=True)
    a("L_nomf2:")
    stamp(13)
    a(f"s_cmp_lg_u32 {sW}, 1\ns_cbranch_scc1 L_noclaim")
    NS = (64 - 4 * S) // 16
    lds_wait(C_KD, 4, sleep=8)
    a(f"s_mov_b32 s6, {4*S*64}\ns_cmp_eq_u32 {sSide}, 0\ns_cselect_b32 s4, s6, 4096\ns_cselect_b32 s5, 4096, s6")
    a(f"s_add_u32 s4, s4, {L_SC}\ns_add_u32 s5, s5, {L_SC}")
    a("v_lshl_add_u32 v13, v0, 4, s4\nv_lshl_add_u32 v14, v0, 4, s5\nv_and_b32 v20, 3, v0\nv_lshlrev_b32 v21, 3, v20")
    XB = 28; XM = XB + 16 * NS; XP = XM + 4
    assert XP + 8 * NS <= 96
    for w in range(4):
        for i in range(NS): a(f"ds_read_b128 {vr(XB+4*(w*NS+i))}, v13 offset:{w*8192+i*1024}")
    a(f"ds_read_b64 v[{XM}:{XM+1}], v21 offset:{L_CNT+C_ML}\nds_read_b64 v[{XM+2}:{XM+3}], v21 offset:{L_CNT+C_ML}")
    a(f"s_lshl_b32 s4, {sCh}, 12\ns_add_u32 s4, s4, {WS_XS}\nv_lshl_add_u32 v16, v0, 4, s4\nv_xor_b32 v17, 0x1000, v16")
    a(f"s_lshl_b32 s4, {sCh}, 7\ns_add_u32 s4, s4, {WS_XM}\nv_and_b32 v18, 7, v0\nv_lshl_add_u32 v18, v18, 4, s4\nv_xor_b32 v19, 0x80, v18")
    a("s_mov_b32 s4, 0x07060302\ns_waitcnt lgkmcnt(0)")
    for i in range(8 * NS): a(f"v_perm_b32 v{XP+i}, v{XB+2*i+1}, v{XB+2*i}, s4")
    for i in range(2 * NS): a(f"global_store_dwordx4 v16, {vr(XP+4*i)}, {pWS} offset:{i*1024} {xspol}")
    tag(XM, 1, vFF)
    a(f"s_waitcnt vmcnt(0)\ns_mov_b64 exec, 0xff\nglobal_store_dwordx4 v18, {vr(XM)}, {pWS} sc1")
    exec_all()
    a(f"v_and_b32 v24, 0xffffff00, v{XM}\nv_and_b32 v25, 0xffffff00, v{XM+1}")
    lds_wait(C_PROG, 4 * S - TH - PRE, sleep=8)
    poll([("v19", 0)], XM, "v15", sleep=16)
    for i in range(2 * NS): a(f"global_load_dwordx4 {vr(XP+4*i)}, v17, {pWS} offset:{i*1024} sc1")
    a("s_waitcnt vmcnt(0)")
    unpack(XB, XP, 8 * NS)
    for w in range(4):
        for i in range(NS): a(f"ds_write_b128 v14, {vr(XB+4*(w*NS+i))} offset:{w*8192+i*1024}")
    a(f"v_mov_b32_dpp v24, v{XM} quad_perm:[0,1,2,3] row_mask:0xf bank_mask:0xa\nv_mov_b32_dpp v25, v{XM+1} quad_perm:[0,1,2,3] row_mask:0xf bank_mask:0xa")
    a("v_mov_b32 v22, v24")
    for sh in (4, 2, 1): ror("v_max_f32", ["v22"], sh)
    a(f"v_sub_f32 v24, v24, v22\nv_mul_f32 v24, {hex(LOG2E)}, v24\nv_exp_f32 v24, v24\nv_mul_f32 v25, v25, v24")
    for sh in (4, 2, 1): ror("v_add_f32", ["v25"], sh)
    a(f"v_log_f32 v25, v25\nv_fmac_f32 v25, {hex(LOG2E)}, v22")
    lds_wait(C_BG, 12, sleep=4)
    a(f"s_mov_b64 exec, 1\nds_write_b32 v12, v25 offset:{C_REF}")
    NDYN = 128 - 8 * S
    a(f"s_lshl_b32 s4, {sPair}, 7\ns_add_u32 s4, s4, {WS_W}\nv_mov_b32 v18, s4\ns_mov_b32 s12, 0\ns_mov_b32 s13, {KMAX}")
    a(f"L_claim:\nds_read_b128 v[20:23], v12 offset:{C_PROG}\ns_waitcnt lgkmcnt(0)")
    a("v_max3_u32 v20, v20, v21, v22\nv_max_u32 v20, v20, v23\nv_readfirstlane_b32 s4, v20")
    a(f"s_add_u32 s4, s4, {TH}\ns_add_u32 s5, s12, {4*S}\ns_cmp_ge_u32 s4, s5\ns_cbranch_scc1 L_doclaim\ns_sleep 2\ns_branch L_claim")
    a(f"L_doclaim:\nv_mov_b32 v19, s13\nglobal_atomic_add v19, v18, v19, {pWS} sc0 sc1\ns_waitcnt vmcnt(0)\nv_readfirstlane_b32 s4, v19")
    a(f"s_sub_i32 s4, {NDYN}, s4\ns_max_i32 s5, s4, 0\ns_min_i32 s5, s5, s13\ns_add_u32 s12, s12, s5\ns_sub_i32 s4, s4, s13")
    a(f"s_cmp_gt_i32 s4, 0\ns_cselect_b32 s5, 0, 0x10000\ns_or_b32 s5, s5, s12\nv_mov_b32 v19, s5\nds_write_b32 v12, v19 offset:{C_LIM}")
    a(f"s_lshr_b32 s13, s4, {KSH}\ns_min_u32 s13, s13, {KMAX}\ns_max_u32 s13, s13, 1")
    a("s_cmp_gt_i32 s4, 0\ns_cbranch_scc1 L_claim")
    a(f"s_add_u32 s12, s12, {4*S-EX}")
    a(f"L_near:\nds_read_b128 v[20:23], v12 offset:{C_PROG}\ns_waitcnt lgkmcnt(0)")
    a("v_min3_u32 v20, v20, v21, v22\nv_min_u32 v20, v20, v23\nv_readfirstlane_b32 s4, v20")
    a(f"s_cmp_ge_u32 s4, s12\ns_cbranch_scc1 L_near2\ns_sleep 1\ns_branch L_near")
    a(f"L_near2:\nv_mov_b32 v19, 1\nds_write_b32 v12, v19 offset:{C_END}")
    exec_all()
    a("L_noclaim:")
    a(f"s_and_b32 s4, {sXc}, {xrep-1}\ns_lshl_b32 s4, s4, 13\ns_lshl_b32 s5, {sW}, 11\ns_add_u32 s4, s4, s5\ns_add_u32 s4, s4, {WS_X1}\nv_lshl_add_u32 v23, v0, 4, s4")
    a(f"s_lshl_b32 s5, {sW}, 10\nv_lshl_add_u32 v24, v0, 3, s5")
    stamp(6)
    a(f"s_mul_i32 s4, {sXc}, 14\ns_add_u32 s4, s4, {sXr}\ns_sub_u32 s4, s4, 8\ns_lshl_b32 s4, s4, 5\ns_mul_i32 s5, {sW}, {128*3584}\ns_add_u32 s4, s4, s5")
    a(f"v_lshrrev_b32 v18, 2, v0\nv_mul_u32_u24 v14, 3584, v18\nv_and_b32 v19, 1, v0\nv_lshl_add_u32 v14, v19, 4, v14\nv_add_u32 v14, s4, v14")
    a(f"v_mov_b32 v16, {lo(pWG)}\nv_mov_b32 v17, {hi(pWG)}\nv_mov_b32 v12, {lo(pWU)}\nv_mov_b32 v13, {hi(pWU)}\nv_and_b32 v19, 2, v0\nv_cmp_eq_u32 vcc, 2, v19")
    a("v_cndmask_b32 v16, v16, v12, vcc\nv_cndmask_b32 v17, v17, v13, vcc\nv_add_co_u32 v16, vcc, v16, v14\nv_addc_co_u32 v17, vcc, 0, v17, vcc")
    a("s_waitcnt vmcnt(0)")
    if touch:
        a(f"s_mul_i32 s4, s2, 7168\ns_mul_i32 s5, {sW}, 1792\ns_add_u32 s4, s4, s5\nv_min_u32 v14, 13, v0\nv_lshl_add_u32 v14, v14, 7, s4")
        lds_wait(C_END, 1, sleep=2)
        a(f"global_load_dword v18, v14, {pWG}\nglobal_load_dword v19, v14, {pWU}")
    a("s_waitcnt lgkmcnt(0)\ns_barrier")
    stamp(7)
    y_product()
    stamp(8)
    a("s_cmp_ge_u32 s2, 224\ns_cbranch_scc1 L_down_s")
    a("s_cmp_ge_u32 s2, 176\ns_cbranch_scc1 L_idle_s\ns_cmp_lt_u32 s2, 64\ns_cbranch_scc1 L_fin_h")
    a(f"s_lshl_b32 s4, {sW}, 13")
    for i in range(8):
        a(f"s_add_u32 m0, s4, {L_SF + i*1024}\nglobal_load_lds_dwordx4 v[16:17], off")
        if i < 7: a(f"v_add_co_u32 v16, vcc, {16*3584}, v16\nv_addc_co_u32 v17, vcc, 0, v17, vcc")
    a("s_waitcnt vmcnt(0)")
    lds_inc(C_F)
    if x2stage:
        a(f"s_and_b32 s4, {sXr}, 7\ns_lshl_b32 s4, s4, 3\ns_lshl_b64 exec, 1, s4")
        poll([("v23", 0)], 40, "v15", sleep=xsleep)
        exec_all()
        poll([("v23", 0), ("v23", 1024)], 40, "v15")
    else:
        ppoll([("v23", 0), ("v23", 1024)], 40, 128, "v15", sleep=xsleep)
    stamp(9)
    if ln1:
        a("v_pk_mul_f32 v[50:51], v[40:41], v[40:41]\nv_pk_add_f32 v[48:49], v[40:41], v[42:43]\nv_pk_fma_f32 v[50:51], v[42:43], v[42:43], v[50:51]\nv_pk_add_f32 v[52:53], v[44:45], v[46:47]")
        a("v_pk_fma_f32 v[50:51], v[44:45], v[44:45], v[50:51]\nv_pk_add_f32 v[48:49], v[48:49], v[52:53]\nv_pk_fma_f32 v[50:51], v[46:47], v[46:47], v[50:51]")
        a("v_add_f32 v36, v48, v49\nv_add_f32 v37, v50, v51")
        wave_reduce("v_add_f32", ["v36", "v37"], ["v38", "v39"])
        a("v_mul_f32 v36, 0xbb000000, v36\nv_mul_f32 v37, 0x3b000000, v37\nv_fma_f32 v38, -v36, v36, v37\nv_mov_b32 v37, v36\nv_max_f32 v38, 0, v38\nv_add_f32 v38, 0x3727c5ac, v38\nv_rsq_f32 v38, v38")
        for i in range(0, 8, 2): a(f"v_pk_add_f32 v[{40+i}:{41+i}], v[{40+i}:{41+i}], v[36:37]")
        a("v_mov_b32 v39, v38")
        for i in range(0, 8, 2): a(f"v_pk_mul_f32 v[{40+i}:{41+i}], v[{40+i}:{41+i}], v[{112+i}:{113+i}]")
        for i in range(0, 8, 2): a(f"v_pk_fma_f32 v[{40+i}:{41+i}], v[{40+i}:{41+i}], v[38:39], v[{104+i}:{105+i}]")
    else:
        a("v_add_f32 v36, v40, v41\nv_add_f32 v38, v42, v43\nv_add_f32 v39, v44, v45\nv_add_f32 v48, v46, v47")
        a("v_add_f32 v36, v36, v38\nv_add_f32 v39, v39, v48\nv_add_f32 v36, v36, v39")
        wave_reduce("v_add_f32", ["v36"], ["v38"])
        a("v_mul_f32 v36, 0x3b000000, v36")
        for i in range(8): a(f"v_sub_f32 v{40+i}, v{40+i}, v36")
        a("v_mul_f32 v37, v40, v40\nv_mul_f32 v38, v41, v41")
        for i in range(2, 8): a(f"v_fmac_f32 v{37+(i&1)}, v{40+i}, v{40+i}")
        a("v_add_f32 v37, v37, v38")
        for i in range(8): a(f"v_mul_f32 v{40+i}, v{40+i}, v{112+i}")
        wave_reduce("v_add_f32", ["v37"], ["v38"])
        a("v_mov_b32 v38, 0x3727c5ac\nv_fmac_f32 v38, 0x3b000000, v37\nv_rsq_f32 v38, v38")
        for i in range(8): a(f"v_fma_f32 v{40+i}, v{40+i}, v38, v{104+i}")
    for i in range(4): a(f"v_cvt_pk_bf16_f32 v{28+i}, v{40+2*i}, v{41+2*i}")
    a(f"ds_write_b64 v24, v[28:29] offset:{L_H2}\nds_write_b64 v24, v[30:31] offset:{L_H2+512}\ns_waitcnt lgkmcnt(0)\ns_barrier")
    stamp(10)
    a("L_fin_h:")
    stamps_out(range(14))
    a("L_end:\ns_endpgm")
    body, nops = a.finalize()
    tail = f""".section .rodata,"a"
.p2align 6
.amdhsa_kernel {KN}
  .amdhsa_next_free_vgpr 256
  .amdhsa_next_free_sgpr 102
  .amdhsa_accum_offset 256
  .amdhsa_group_segment_fixed_size 0
  .amdhsa_kernarg_size 112
  .amdhsa_user_sgpr_count 2
  .amdhsa_user_sgpr_kernarg_segment_ptr 1
  .amdhsa_system_sgpr_workgroup_id_x 1
  .amdhsa_float_denorm_mode_32 3
.end_amdhsa_kernel
"""
    body = body.replace("    ; @launch", "; @launch", 1)
    return body + tail

if __name__ == "__main__":
    kw = eval("dict(" + (sys.argv[2] if len(sys.argv) > 2 else "") + ")")
    open(sys.argv[1], "w").write(gen(**kw))
```

```python
import sys
from asmlib import Asm

KN = "adaLN_cond__mha_block_cached__geglu_ffn__decode_kernel"

WS_EP   = 0x0000
WS_W    = 0x4000
WS_MODF = 0x8000
WS_ACT  = 0x10000
WS_AF   = 0x18000
WS_MODP = 0x20000
WS_MODN = 0x30000
WS_XM   = 0x50000
WS_X1   = 0x60000
WS_Y    = 0x80000
WS_QP   = 0x100000
WS_XS   = 0x200000
WS_WDF  = 0xC000
WS_WD2  = 0x600000
WS_ST   = 0x800000
L_CNT  = 0x0000
L_QB   = 0x0100
L_G    = 0x0200
L_N    = 0x0400
L_PM   = 0x0800
L_OP   = 0x2800
L_OB   = 0x3000
L_H2   = 0x3800
L_SA   = 0x5000
L_SB   = 0x9000
L_SC   = 0xD000
L_SF   = 0x15000
LDS_SIZE = 0x15000 + 64 * 1024
C_MOD, C_N, C_Q, C_KD, C_LIM, C_XT, C_REF = 0, 4, 8, 12, 16, 20, 24
C_PROG, C_ML = 32, 64
C_END, C_F, C_BG, C_FP = 48, 52, 56, 60

LOG2E = 0x3fb8aa3b
SCALE = 0x3db504f3

pX, pK, pV, pWQ, pWO, pBX, pWG, pWU, pWD, pC, pWM, pOUT, pDBG, pWS = [f"s[{16+2*i}:{17+2*i}]" for i in range(14)]
def lo(p): return "s" + p[2:p.index(":")]
def hi(p): return "s" + p[p.index(":")+1:-1]
SRDC, SRDN = "s[44:47]", "s[48:51]"
sTC, sTN, sOF, sLC = "s52", "s53", "s54", "s55"
sB, sH, sSide, sPair, sTO, sW = "s56", "s57", "s58", "s59", "s60", "s61"
sM1, sM2, sM3 = "s[62:63]", "s[64:65]", "s[66:67]"
sXc, sXr = "s68", "s69"
sTag = ["s98", "s99", "s100", "s101"]
sCh = "s15"
sT = "s14"

def vr(b, n=4): return f"v[{b}:{b+n-1}]"
def vl(b, n): return [f"v{b+i}" for i in range(n)]

def gen(D=6, Df=7, bits=(10,11,15,12,13,14,16,17,18,19), S=12, TH=3, KMAX=4, KSH=2, pairx=3, stamps=False, wpol="", xrep=8,
        TO=1 << 17, kvpol="nt", PR=1, PGAP=5, NRED=1, RGAP=8, BGD=2, xsleep=0, ysleep=0, asleep=0, x2stage=1, wdpol='sc1', xspol='sc1', nowo=0, noffn=0, fpol=None, klin=0, now7=0, nokwork=0, trace=0, latemf=0, nowdf=1, wox=1, dpat=0, remap=0, PRE=10, dshift=0, pref=0, EX=1, lateout=0, afull=1, a2stage=1, touch=0, post=7, wside=1, adelay=0, ln1=1, ax4=1, opol='', seqfill=0, pd1=0, pd2=0, ps=0, qpol='sc1', F1=26, F2=48, rnd=1, ybar=1, afirst=1, asame=0, aany=1, xany=1, aflag=0, fdel=0, peek=3, THS=3, KSS=3, MARG=2, tmap=1, satom=1, csleep=2, post2=0, mixbit=3, rot=1):
    a = Asm()
    def stamp(k):
        if stamps: a(f"s_memrealtime s[{70+2*k}:{71+2*k}]")
    def stamps_out(ks, late=True):
        if not stamps: return
        a("s_waitcnt lgkmcnt(0)")
        if lateout and late: a("s_sleep 127\ns_sleep 127\ns_sleep 127")
        a("s_mov_b64 exec, 1")
        a("s_lshl_b32 s4, s2, 3\ns_add_u32 s4, s4, s3\ns_lshl_b32 s4, s4, 6")
        a(f"s_add_u32 s4, s4, {WS_ST}\nv_mov_b32 v1, s4")
        for k in ks:
            a(f"v_mov_b32 v2, s{70+2*k}\nglobal_store_dword v1, v2, {pWS} offset:{4*k}")
    def tr():
        if trace:
            a("s_memrealtime s[96:97]\ns_waitcnt lgkmcnt(0)\ns_mov_b32 m0, s27\nv_writelane_b32 v63, s96, m0\ns_add_u32 s27, s27, 1")
    def exec_set(lo_, hi_):
        a(f"s_mov_b32 exec_lo, {hex(lo_)}\ns_mov_b32 exec_hi, {hex(hi_)}")
    def exec_all(): a("s_mov_b64 exec, -1")
    def tree(op2, op3, t, r):
        r = list(r)
        if len(r) % 2 == 0:
            a(f"{op2} {t}, {r[0]}, {r[1]}"); r = r[2:]
        else:
            a(f"{op3} {t}, {r[0]}, {r[1]}, {r[2]}"); r = r[3:]
        while r:
            a(f"{op3} {t}, {t}, {r[0]}, {r[1]}"); r = r[2:]
    def check(n, src, dst, tmp, tagged, younger):
        if tagged:
            for i in range(n):
                a(f"s_waitcnt vmcnt({younger+n-1-i})")
                for k in range(4): a(f"v_xor_b32 v{dst+4*i+k}, {sTag[k]}, v{src+4*i+k}")
            tree("v_or_b32", "v_or3_b32", tmp, vl(dst, 4 * n))
            a(f"v_and_b32 {tmp}, 0xff, {tmp}\nv_cmp_ne_u32 vcc, 0, {tmp}")
        else:
            a(f"s_waitcnt vmcnt({younger})")
            tree("v_max_u32", "v_max3_u32", tmp, vl(src, 4 * n))
            a(f"v_cmp_eq_u32 vcc, -1, {tmp}")
            if dst != src:
                for i in range(4 * n): a(f"v_mov_b32 v{dst+i}, v{src+i}")
        a("s_cmp_eq_u64 vcc, 0")
    def poll(addrs, dst, tmp, sleep=0, tagged=True, first_plain=False, any_=False):
        L, Dn = a.label("Lpoll"), a.label("Lpdone")
        n = len(addrs)
        a(f"s_mov_b32 {sTO}, {TO}")
        if first_plain:
            Lc = a.label("Lpchk")
            for i, (va, off) in enumerate(addrs): a(f"global_load_dwordx4 {vr(dst+4*i)}, {va}, {pWS} offset:{off}")
            a(f"s_branch {Lc}")
        a(f"{L}:")
        for i, (va, off) in enumerate(addrs): a(f"global_load_dwordx4 {vr(dst+4*i)}, {va}, {pWS} offset:{off} sc1")
        if first_plain: a(f"{Lc}:")
        check(n, dst, dst, tmp, tagged, 0)
        if any_: a("s_cmp_lg_u64 vcc, exec")
        a(f"s_cbranch_scc1 {Dn}\ns_sub_u32 {sTO}, {sTO}, 1\ns_cbranch_scc1 {Dn}")
        if sleep: a(f"s_sleep {sleep}")
        a(f"s_branch {L}\n{Dn}:")
    def ppoll(addrs, dst, buf, tmp, tagged=True, sleep=0):
        if PR == 1: return poll(addrs, dst, tmp, tagged=tagged, sleep=sleep)
        L, Dn = a.label("Lpp"), a.label("Lppd")
        n = len(addrs)
        def iss(r):
            for i, (va, off) in enumerate(addrs): a(f"global_load_dwordx4 {vr(buf+4*(n*r+i))}, {va}, {pWS} offset:{off} sc1")
        a(f"s_mov_b32 {sTO}, {TO}")
        for r in range(PR - 1):
            iss(r); a(f"s_sleep {PGAP}")
        a(f"{L}:")
        for r in range(PR):
            iss((r + PR - 1) % PR)
            check(n, buf + 4 * n * r, dst, tmp, tagged, n * (PR - 1))
            a(f"s_cbranch_scc1 {Dn}")
        a(f"s_sub_u32 {sTO}, {sTO}, 1\ns_cbranch_scc0 {L}\n{Dn}:")
    def tag(base, n4, vff, round_=False):
        if round_:
            for i in range(4 * n4): a(f"v_add_u32 v{base+i}, 0x80, v{base+i}")
        for i in range(n4):
            for k in range(4): a(f"v_bfi_b32 v{base+4*i+k}, {vff}, {sTag[k]}, v{base+4*i+k}")
    def lds_wait(off, val, va="v12", vt="v13", sleep=1):
        L, Dn = a.label("Llw"), a.label("Llwd")
        a(f"v_mov_b32 {va}, {L_CNT}")
        a(f"{L}:\nds_read_b32 {vt}, {va} offset:{off}\ns_waitcnt lgkmcnt(0)\nv_readfirstlane_b32 s4, {vt}")
        a(f"s_cmp_ge_u32 s4, {val}\ns_cbranch_scc1 {Dn}\ns_sleep {sleep}\ns_branch {L}\n{Dn}:")
    def lds_inc(off, va="v12", vt="v13"):
        a(f"s_mov_b64 exec, 1\nv_mov_b32 {va}, {L_CNT}\nv_mov_b32 {vt}, 1\ns_waitcnt lgkmcnt(0)\nds_add_u32 {va}, {vt} offset:{off}")
        exec_all()
    def swap_add(pl, op, regs, tmps):
        for r, t in zip(regs, tmps): a(f"v_mov_b32 {t}, {r}")
        for r, t in zip(regs, tmps): a(f"{pl} {r}, {t}")
        for r, t in zip(regs, tmps): a(f"{op} {r}, {r}, {t}")
    def ror(op, regs, sh):
        for r in regs: a(f"{op}_dpp {r}, {r}, {r} row_ror:{sh} row_mask:0xf bank_mask:0xf")
    def wave_reduce(op, regs, tmps):
        for sh in (8, 4, 2, 1): ror(op, regs, sh)
        for pl in ("v_permlane16_swap_b32", "v_permlane32_swap_b32"): swap_add(pl, op, regs, tmps)
    def rnd2(x0, x1, t):
        a(f"v_cvt_pk_bf16_f32 {t}, {x0}, {x1}\nv_lshlrev_b32 {x0}, 16, {t}\nv_and_b32 {x1}, 0xffff0000, {t}")
    def rndn(base, n, tb):
        for i in range(n // 2): a(f"v_cvt_pk_bf16_f32 v{tb+i}, v{base+2*i}, v{base+2*i+1}")
        unpack(base, tb, n // 2)
    def unpack(dst, src, n):
        for i in range(n):
            a(f"v_lshlrev_b32 v{dst+2*i}, 16, v{src+i}\nv_and_b32 v{dst+2*i+1}, 0xffff0000, v{src+i}")
    def pkadd(d, x, y, n):
        for i in range(0, n, 2): a(f"v_pk_add_f32 v[{d+i}:{d+i+1}], v[{x+i}:{x+i+1}], v[{y+i}:{y+i+1}]")
    def make_tags():
        a(f"s_add_u32 {sT}, {sT}, 0x9e3779b1")
        for k in range(4): a(f"s_bfe_u32 {sTag[k]}, {sT}, {hex(0x80000 + 8*k)}")

    def touch_addr(dst, sidx):
        a(f"s_lshr_b32 s4, {sidx}, 4\ns_lshl_b32 s4, s4, 17\ns_and_b32 s5, {sidx}, 15\ns_lshl_b32 s5, s5, 11\ns_add_u32 s4, s4, s5")
        a(f"v_and_b32 {dst}, 15, v0\nv_lshl_add_u32 {dst}, {dst}, 7, s4\nv_lshrrev_b32 v13, 4, v0\nv_lshl_add_u32 {dst}, v13, 15, {dst}")
    def post_touch():
        mats = [p for k, p in enumerate((pWD, pWG, pWU)) if (post >> k) & 1]
        L = a.label("Lpt")
        if post2:
            a(f"s_cmp_lt_u32 s3, 2\ns_cbranch_scc1 {L}\ns_sub_u32 s6, s2, 112\ns_cmp_lt_u32 s2, 64\ns_cselect_b32 s6, s2, s6\ns_lshl_b32 s6, s6, 1\ns_and_b32 s7, s3, 1\ns_add_u32 s6, s6, s7")
            touch_addr("v14", "s6")
            for i, p in enumerate((pWD, pWG, pWU)):
                Lk = a.label("Lpk")
                a(f"s_lshr_b32 s7, s3, 1\ns_cmp_lg_u32 s7, {i+1}\ns_cbranch_scc1 {Lk}\nglobal_load_dword v16, v14, {p}\n{Lk}:")
            a(f"s_waitcnt vmcnt(0)\n{L}:")
            return
        a(f"s_sub_u32 s6, s2, 176\ns_mul_i32 s7, s3, 48\ns_add_u32 s6, s6, s7\ns_cmp_ge_u32 s6, 224\ns_cbranch_scc1 {L}")
        touch_addr("v14", "s6")
        for i, p in enumerate(mats): a(f"global_load_dword v{16+i}, v14, {p}")
        a(f"s_waitcnt vmcnt(0)\n{L}:")
    def wo_frags():
        a(f"v_lshrrev_b32 v56, 4, v0\nv_bfe_u32 v57, v0, 2, 2\nv_lshlrev_b32 v58, 14, v56\nv_lshl_add_u32 v58, v57, 11, v58\nv_and_b32 v59, 3, v0\nv_lshl_add_u32 v58, v59, 3, v58")
        a(f"v_bfe_u32 v57, v0, 2, 3\ns_and_b32 s4, {sW}, 1\ns_lshl_b32 s4, s4, 2\nv_xor_b32 v57, s4, v57\ns_lshr_b32 s4, {sW}, 1\ns_lshl_b32 s4, s4, 10\ns_add_u32 s4, s4, {L_SF}\nv_add_u32 v58, s4, v58")
        for t in range(4):
            a(f"v_xor_b32 v60, {t}, v57\nv_lshl_add_u32 v60, v60, 5, v58")
            for kb in range(4):
                r = 128 + 4 * (4 * t + kb)
                a(f"ds_read_b64_tr_b16 v[{r}:{r+1}], v60 offset:{kb*256}\nds_read_b64_tr_b16 v[{r+2}:{r+3}], v60 offset:{kb*256+8192}")
            a("s_waitcnt lgkmcnt(0)")
        a(f"v_lshlrev_b32 v226, 8, v59\nv_lshl_add_u32 v226, v56, 4, v226")
        a(f"s_xor_b32 s4, {sH}, {sSide if wside else 0}\ns_and_b32 s4, s4, 1\ns_lshl_b32 s4, s4, 2\ns_xor_b32 s4, s4, s3\ns_xor_b32 s4, s4, 4\ns_lshl_b32 s4, s4, 1\ns_lshl_b32 s5, {sB}, 4\ns_add_u32 s4, s4, s5\ns_lshl_b32 s4, s4, 13\ns_and_b32 s5, s2, 63\ns_lshl_b32 s5, s5, 7")
        a(f"s_add_u32 s4, s4, s5\ns_add_u32 s4, s4, {WS_Y}\nv_lshrrev_b32 v227, 5, v0\nv_lshl_add_u32 v227, v227, 13, s4\nv_and_b32 v228, 31, v0\nv_lshl_add_u32 v227, v228, 2, v227")
        a(f"v_lshlrev_b32 v228, 3, v59\nv_lshrrev_b32 v228, v228, {sT}\nv_mov_b32 v229, 0xff")
    def y_product():
        for kb in range(4): a(f"ds_read_b128 {vr(192+4*kb)}, v226 offset:{L_OP+kb*64}")
        for kb in range(4):
            a(f"s_waitcnt lgkmcnt({3-kb})")
            for t in range(4):
                d = vr(208 + 4 * t)
                a(f"v_mfma_f32_16x16x32_bf16 {d}, {vr(192+4*kb)}, {vr(128+4*(4*t+kb))}, {'0' if kb == 0 else d}")
        for t in range(4): pkadd(208 + 4 * t, 208 + 4 * t, 210 + 4 * t, 2)
        a("v_add_f32 v224, v208, v209")
        for t in (1, 2, 3): a(f"v_add_f32_dpp v224, v{208+4*t}, v{209+4*t} quad_perm:[0,1,2,3] row_mask:{hex(1<<t)} bank_mask:0xf")
        a(f"v_bfi_b32 v224, v229, v228, v224\nglobal_store_dword v227, v224, {pWS} sc1")
        if ybar: a("s_barrier")

    a(f"; @launch grid=(256,1,1) block=(512,1,1) lds={LDS_SIZE}")
    a('.amdgcn_target "amdgcn-amd-amdhsa--gfx950"')
    a(f".text\n.globl {KN}\n.p2align 8\n.type {KN},@function\n{KN}:")
    a("s_cmp_ge_u32 s2, 256\ns_cbranch_scc1 L_end")
    a("s_load_dwordx16 s[16:31], s[0:1], 0\ns_load_dwordx8 s[32:39], s[0:1], 64\ns_load_dwordx4 s[40:43], s[0:1], 96")
    a("v_lshrrev_b32 v1, 6, v0\nv_and_b32 v0, 63, v0\nv_readfirstlane_b32 s3, v1")
    a(f"v_lshlrev_b32 v12, 2, v0\nv_mov_b32 v13, 0\nds_write_b32 v12, v13 offset:{L_CNT}")
    if pairx == 35:
        a(f"s_bfe_u32 s4, s2, 0x10001\ns_bfe_u32 s5, s2, 0x10002\ns_bitcmp1_b32 s2, {mixbit}\ns_cselect_b32 {sSide}, s5, s4\ns_cselect_b32 s5, s4, s5")
        a(f"s_xor_b32 s4, {sSide}, s2\ns_and_b32 s4, s4, 1\ns_lshr_b32 {sPair}, s2, 3\ns_lshl_b32 {sPair}, {sPair}, 1\ns_or_b32 {sPair}, {sPair}, s5\ns_lshl_b32 {sPair}, {sPair}, 1\ns_or_b32 {sPair}, {sPair}, s4")
    elif pairx == 3:
        a(f"s_lshr_b32 s4, s2, 1\ns_and_b32 {sSide}, s4, 1\ns_xor_b32 s4, s4, s2\ns_and_b32 s4, s4, 1\ns_lshr_b32 {sPair}, s2, 2\ns_lshl_b32 {sPair}, {sPair}, 1\ns_or_b32 {sPair}, {sPair}, s4")
    else:
        a(f"s_and_b32 {sSide}, s2, 1\ns_lshr_b32 {sPair}, s2, 1")
    a(f"s_lshr_b32 {sB}, s2, 6\ns_and_b32 {sH}, {sPair}, 31\ns_lshl_b32 {sCh}, {sPair}, 1\ns_or_b32 {sCh}, {sCh}, {sSide}")
    if remap:
        a(f"s_xor_b32 s4, {sSide}, 1\ns_lshl_b32 s4, s4, 5\ns_cmp_ge_u32 s2, 192\ns_cselect_b32 s4, s4, 0\ns_xor_b32 s2, s2, s4")
    a(f"s_and_b32 {sXc}, s2, 7\ns_lshr_b32 {sXr}, s2, 3\ns_and_b32 {sW}, s3, 3")
    a("s_cmp_ge_u32 s3, 4\ns_cbranch_scc1 L_helper")

    vK, vV, vNxt, vSp, vM, vL, vS, vP, vNM = "v1", "v2", "v4", "v5", "v6", "v7", "v8", "v9", "v10"
    T0 = 12; BQ = 20; DD = 36
    RING = 64; X0 = 128; X1 = 192
    a(f"v_and_b32 v12, 15, v0\nv_lshrrev_b32 v13, 4, v0")
    a(f"v_lshlrev_b32 {vK}, 6, v12\nv_lshl_add_u32 {vK}, v13, 4, {vK}")
    a(f"v_lshlrev_b32 {vV}, 4, v0")
    if klin: a(f"v_mov_b32 {vK}, {vV}")
    a(f"s_and_b32 s4, s3, 1\ns_lshl_b32 s4, s4, {bits[0]}\ns_lshr_b32 s5, s3, 1\ns_lshl_b32 s5, s5, {bits[1]}\ns_add_u32 s4, s4, s5")
    a(f"v_add_u32 {vK}, s4, {vK}\nv_add_u32 {vV}, s4, {vV}")
    a(f"s_lshl_b32 s5, {sCh}, 20")
    a("s_waitcnt lgkmcnt(0)")
    stamp(0)
    a(f"s_add_u32 s44, {lo(pK)}, s5\ns_addc_u32 s45, {hi(pK)}, 0\ns_mov_b32 s46, 0x100000\ns_mov_b32 s47, 0x20000")
    assert 5 <= D <= 8
    ubits = list(bits[4:10]) + [20]
    def uoff(U): return sum(((U >> k) & 1) << ubits[k] for k in range(7))
    def uoff_s(dst, src):
        k = 0; first = True
        while k < 7:
            e = k
            while e + 1 < 7 and ubits[e + 1] == ubits[e] + 1: e += 1
            t = dst if first else "s4"
            a(f"s_bfe_u32 {t}, {src}, {hex(((e - k + 1) << 16) + k)}\ns_lshl_b32 {t}, {t}, {ubits[k]}")
            if not first: a(f"s_or_b32 {dst}, {dst}, s4")
            first = False; k = e + 1
    def issue(p, slot, va, srd, st):
        o_ = sum(((p >> k) & 1) << bits[2 + k] for k in range(4))
        so, imm = o_ & ~4095, o_ & 4095
        if isinstance(st, int): a(f"s_mov_b32 {sOF}, {st+so}"); o = sOF
        elif so: a(f"s_add_u32 {sOF}, {st}, {so}"); o = sOF
        else: o = st
        if slot is None:
            a(f"s_add_u32 m0, s10, {p*1024 - imm}")
            a(f"buffer_load_dwordx4 {va}, {srd}, {o} offen offset:{imm} {kvpol} lds")
        else:
            a(f"buffer_load_dwordx4 {vr(slot)}, {va}, {srd}, {o} offen offset:{imm} {kvpol}")
    NB = 4
    order = [(0, X0), (1, None), (2, X1), (3, RING)]
    poff = lambda p: sum(((p >> k) & 1) << bits[2 + k] for k in range(4))
    fill = [(t, p, None if base is None else base + 4 * p) for t, base in order for p in (sorted(range(16), key=poff) if t < seqfill else range(16))]
    for idx, (t, p, slot) in enumerate(fill):
        if idx == Df:
            a("s_barrier")
            a(f"s_load_dword {sT}, {pWS}, {WS_EP}")
            a(f"s_mov_b32 s48, s44\ns_mov_b32 s49, s45\ns_mov_b32 s50, 0x100000\ns_mov_b32 s51, 0x20000")
            a(f"s_mov_b32 s62, 0x22222222\ns_mov_b32 s63, 0x22222222\ns_mov_b32 s64, 0x44444444\ns_mov_b32 s65, 0x44444444")
            a(f"s_mov_b32 s66, 0x88888888\ns_mov_b32 s67, 0x88888888")
            a(f"s_lshl_b32 s4, s3, 13\ns_lshl_b32 s5, {sSide}, 12\ns_add_u32 s4, s4, s5\ns_add_u32 s4, s4, {L_SC}")
            a(f"v_and_b32 v12, 3, v0\nv_lshl_add_u32 {vSp}, v12, 6, s4\nv_and_b32 v12, 60, v0\nv_add_u32 {vSp}, v12, {vSp}")
            a(f"v_mov_b32 {vM}, 0xff7fffff\nv_mov_b32 {vL}, 0")
            a(f"v_mov_b32 {vNxt}, {vK}")
            a(f"s_lshl_b32 s10, s3, 14\ns_add_u32 s10, s10, {L_SF}")
        if idx >= Df: a(f"s_waitcnt vmcnt({Df-1})")
        if idx == Df: stamp(8)
        if idx == 16 + Df - 1: stamp(9)
        if idx == 32 + Df - 1: stamp(10)
        issue(p, slot, vK, SRDC, uoff(4 * t))
        if idx in (F1, F2):
            a(f"v_mov_b32 v12, {L_CNT}\nv_mov_b32 v13, {1 if idx == F1 else 2}\nds_max_u32 v12, v13 offset:{C_FP}")
    stamp(1)
    lds_wait(C_Q, 1)
    stamp(2)
    a(f"v_and_b32 v12, 3, v0\nv_lshlrev_b32 v12, 6, v12\nv_lshrrev_b32 v13, 4, v0\nv_lshl_add_u32 v12, v13, 4, v12\nds_read_b128 v[16:19], v12 offset:{L_QB}")
    a("v_bfe_u32 v13, v0, 2, 2")
    make_tags()
    a("s_waitcnt lgkmcnt(0)")
    for t in range(4):
        a(f"v_cmp_eq_u32 vcc, {t}, v13")
        for r in range(4): a(f"v_cndmask_b32 v{BQ+4*t+r}, 0, v{16+r}, vcc")
    def k_step(n, slot):
        u, t = n >> 2, n & 3
        d = vr(DD + 4 * u)
        a(f"v_mfma_f32_16x16x32_bf16 {d}, {vr(slot)}, {vr(BQ+4*t)}, {'0' if t == 0 else d}")
    def k_group(u):
        T = T0 + u
        o = [(u + i) & 3 for i in (1, 2, 3)]
        a(f"v_add_f32_dpp v{T}, v{DD+4*u+o[0]}, v{DD+4*u+u} quad_perm:[{o[0]},{o[0]},{o[0]},{o[0]}] row_mask:0xf bank_mask:0xf")
        for x in o[1:]:
            a(f"v_add_f32_dpp v{T}, v{DD+4*u+x}, v{T} quad_perm:[{x},{x},{x},{x}] row_mask:0xf bank_mask:0xf")
    def k_finish(off):
        a(f"v_cndmask_b32 v12, v12, v13, {sM1}\nv_cndmask_b32 v12, v12, v14, {sM2}\nv_cndmask_b32 v12, v12, v15, {sM3}")
        a(f"v_cvt_pk_bf16_f32 v12, v12, v12\nv_and_b32 v12, 0xffff0000, v12\nv_mul_f32 v12, {hex(SCALE)}, v12")
        a(f"v_cvt_pk_bf16_f32 v12, v12, v12\nv_and_b32 v12, 0xffff0000, v12")
        a(f"ds_write_b32 {vSp}, v12 offset:{off}")
        a(f"v_max_f32 v13, {vM}, v12\nv_sub_f32 v14, {vM}, v13\nv_sub_f32 v15, v12, v13")
        a(f"v_mul_f32 v14, {hex(LOG2E)}, v14\nv_mul_f32 v15, {hex(LOG2E)}, v15\nv_exp_f32 v14, v14\nv_exp_f32 v15, v15")
        a(f"v_mov_b32 {vM}, v13\nv_fma_f32 {vL}, {vL}, v14, v15")
    def k_tile(base, off, pre=None, post=None):
        for n in range(16):
            if pre: pre(n)
            k_step(n, base + 4 * n)
            if post: post(n)
            if n & 3 == 0 and n and not nokwork: k_group((n >> 2) - 1)
        if not nokwork: k_group(3)
        k_finish(off)
    k_tile(RING, (NB - 1) * 256, pre=lambda n: a("s_waitcnt vmcnt(15)"), post=lambda n: issue(n, RING + 4 * n, vK, SRDC, uoff(4 * NB)))
    k_tile(X0, 0)
    a(f"v_lshl_add_u32 v16, v0, 4, s10")
    for p in range(16):
        a(f"ds_read_b128 {vr(X0+4*p)}, v16 offset:{p*1024}")
        if p == 7: a("s_waitcnt lgkmcnt(0)")
    k_tile(X1, 2 * 256)
    lds_inc(C_XT, "v16", "v17")
    k_tile(X0, 256)
    def preB(n):
        if n + D >= 16:
            issue(n + D - 16, RING + 4 * (n + D - 16), vK, SRDC, uoff(4 * NB + 4)); a(f"s_waitcnt vmcnt({D})")
        else: a(f"s_waitcnt vmcnt({15-n})")
    k_tile(RING, NB * 256, pre=preB)
    stamp(3)
    if trace: a("s_mov_b32 s27, 0\nv_mov_b32 v63, 0")
    tr()
    sN0, sN1, sStep, sN, sEnd, sU0 = sTN, "s11", "s12", sLC, "s13", "s8"
    a(f"s_mov_b32 {sN0}, {uoff(4*NB+4)}\ns_mov_b32 {sN}, {4*NB+4}\nv_add_u32 {vSp}, {(NB+1)*256}, {vSp}")
    a(f"s_lshl_b32 s5, {sPair}, 21\ns_add_u32 s6, {lo(pV)}, s5\ns_addc_u32 s7, {hi(pV)}, 0")
    a(f"s_mul_i32 {sU0}, {sSide}, 127\ns_lshl_b32 s4, {sSide}, 1\ns_sub_u32 {sStep}, 1, s4")
    def pre_steady(n):
        p = n + D
        if p < 16: issue(p, RING + 4 * p, vK, SRDC, sTC)
        else: issue((p - 16) & 3, RING + 4 * (p - 16), vNxt, SRDN, sN0 if p < 20 else sN1)
    a("L_kloop:")
    a(f"s_mov_b32 {sTC}, {sN0}\ns_add_u32 {sN}, {sN}, 4")
    uoff_s(sN0, sN)
    a(f"s_add_u32 {sN1}, {sN0}, {uoff(1)}")
    a(f"s_cmp_lg_u32 {sN}, 64\ns_cbranch_scc1 L_knosw")
    a(f"s_mov_b32 s48, s6\ns_mov_b32 s49, s7\ns_mov_b32 s50, 0x200000\nv_mov_b32 {vNxt}, {vV}")
    uoff_s(sN0, sU0)
    a(f"s_add_u32 s5, {sU0}, {sStep}")
    uoff_s(sN1, "s5")
    a("L_knosw:")
    k_tile(RING, 0, pre=lambda n: (pre_steady(n), a(f"s_waitcnt vmcnt({D})")))
    a(f"v_add_u32 {vSp}, 256, {vSp}")
    tr()
    a(f"s_cmp_lg_u32 {sN}, 64\ns_cbranch_scc1 L_kloop")
    stamp(4)
    sUa, sUb, sNx = sN1, sN0, sTC
    vCn, vLim, vPg, vSt = "v3", "v4", "v11", "v1"
    a(f"s_add_u32 {sNx}, {sU0}, {sStep}\ns_add_u32 {sNx}, {sNx}, {sStep}")
    a(f"s_lshl_b32 s4, s3, 13\ns_lshl_b32 s5, {sU0}, 6\ns_add_u32 s4, s4, s5\ns_add_u32 s4, s4, {L_SC}")
    a(f"v_and_b32 v12, 3, v0\nv_lshl_add_u32 {vSp}, v12, 2, s4\nv_and_b32 v12, 48, v0\nv_add_u32 {vSp}, v12, {vSp}")
    a(f"ds_read_b32 {vS}, {vSp}")
    a(f"s_lshl_b32 s4, {sStep}, 6\nv_mov_b32 {vSt}, s4\nv_mov_b32 {vCn}, {L_CNT}\nv_mov_b32 {vLim}, 0")
    a(f"v_mov_b32 v12, {vM}")
    wave_reduce("v_max_f32", ["v12"], ["v13"])
    a(f"v_sub_f32 v14, {vM}, v12\nv_mul_f32 v14, {hex(LOG2E)}, v14\nv_exp_f32 v14, v14\nv_mul_f32 v13, {vL}, v14")
    wave_reduce("v_add_f32", ["v13"], ["v14"])
    a(f"v_mov_b32 {vM}, v12\nv_mov_b32 {vNM}, 0")
    a(f"s_lshl_b32 s4, s3, 3\nv_mov_b32 v14, s4\ns_lshl_b32 s4, s3, 2\nv_mov_b32 {vPg}, s4\nv_mov_b32 v15, 1")
    a(f"s_mov_b64 exec, 1\nds_write_b64 v14, v[12:13] offset:{L_CNT+C_ML}\nds_add_u32 {vCn}, v15 offset:{C_KD}")
    exec_all()
    ACC, AS, MK = DD, DD + 4, DD + 12
    a("v_and_b32 v12, 1, v0\nv_lshlrev_b32 v12, 4, v12\nv_mov_b32 v13, 0xffff\nv_lshlrev_b32 v12, v12, v13\nv_bfe_u32 v13, v0, 1, 3")
    for r in range(4):
        a(f"v_cmp_eq_u32 vcc, {r}, v13\nv_cndmask_b32 v{MK+r}, 0, v12, vcc\nv_mov_b32 v{ACC+r}, 0")
    a(f"s_mov_b32 s9, {hex(LOG2E)}\ns_mov_b32 {sN}, 0\ns_mov_b32 {sEnd}, 0xffff")
    a("v_and_b32 v16, 15, v0\nv_lshlrev_b32 v16, 4, v16\nv_bfe_u32 v13, v0, 4, 1\nv_lshl_add_u32 v16, v13, 3, v16\ns_lshl_b32 s4, s3, 8\nv_add_u32 v16, s4, v16")
    a(f"v_mov_b32 v227, {WS_Y}")
    a("L_vloop:")
    a(f"s_cmp_lg_u32 {sN}, {4*S}\ns_cbranch_scc1 L_vnosw")
    a(f"ds_read_b64 v[12:13], {vCn} offset:{C_REF}\ns_waitcnt lgkmcnt(0)")
    a(f"v_sub_f32 v14, {vM}, v12\nv_mov_b32 {vM}, v12\nv_mov_b32 {vNM}, v13\nv_fma_f32 v14, v14, s9, v13\nv_exp_f32 v14, v14")
    for r in range(4): a(f"v_mul_f32 v{ACC+r}, v{ACC+r}, v14")
    wo_frags()
    a(f"s_cmp_eq_u32 {sN}, {sEnd}\ns_cbranch_scc1 L_vdone")
    a("L_vnosw:")
    for c in range(4):
        Lchk, Lok, Lgo = a.label("Lchk"), a.label("Lok"), a.label("Lgo")
        a("s_waitcnt lgkmcnt(0)")
        a(f"v_sub_f32 {vP}, {vS}, {vM}\nv_fma_f32 {vP}, {vP}, s9, {vNM}\nv_add_u32 {vSp}, {vSt}, {vSp}\nv_exp_f32 {vP}, {vP}\nv_mov_b32 v12, {sN}")
        a(f"ds_write_b32 {vPg}, v12 offset:{L_CNT+C_PROG}")
        a(f"{Lchk}:")
        a(f"v_readfirstlane_b32 s4, {vLim}")
        a(f"s_and_b32 s5, s4, 0xffff\ns_add_u32 s5, s5, {4*S-2}\ns_cmp_lt_u32 {sN}, s5\ns_cbranch_scc1 {Lok}")
        a(f"s_mov_b32 {sUb}, 0x40000000\ns_add_u32 {sEnd}, s5, 2\ns_bitcmp1_b32 s4, 16\ns_cbranch_scc1 {Lgo}")
        a(f"s_mov_b32 {sEnd}, 0xffff\nds_read_b32 {vLim}, {vCn} offset:{C_LIM}\ns_waitcnt lgkmcnt(0)\ns_branch {Lchk}")
        a(f"{Lok}:")
        uoff_s(sUb, sNx)
        a(f"s_add_u32 {sNx}, {sNx}, {sStep}")
        a(f"{Lgo}:")
        a(f"v_cvt_pk_bf16_f32 {vP}, {vP}, {vP}")
        a(f"ds_read_b32 {vS}, {vSp}\nds_read_b32 {vLim}, {vCn} offset:{C_LIM}")
        for t in range(4):
            n = 4 * c + t
            idx = t + D
            issue(idx & 3, RING + 4 * ((n + D) & 15), vV, SRDN, sUa if idx < 8 else sUb)
            A = AS + 4 * (n & 1)
            for r in range(4):
                a(f"v_and_b32_dpp v{A+r}, {vP}, v{MK+r} row_newbcast:{t} row_mask:0xf bank_mask:0xf")
            a(f"s_waitcnt vmcnt({D})")
            a(f"v_mfma_f32_16x16x32_bf16 {vr(ACC)}, {vr(A)}, {vr(RING+4*n)}, {vr(ACC)}")
        a(f"s_mov_b32 {sUa}, {sUb}\ns_add_u32 {sN}, {sN}, 1")
        if c < 3: a(f"s_cmp_eq_u32 {sN}, {sEnd}\ns_cbranch_scc1 L_vdone")
    tr()
    a(f"s_cmp_eq_u32 {sN}, {4*S}\ns_cbranch_scc1 L_vloop")
    a(f"s_cmp_lg_u32 {sN}, {sEnd}\ns_cbranch_scc1 L_vloop")
    a("L_vdone:")
    exec_set(0xffffffff, 0)
    a(f"v_cvt_pk_bf16_f32 v12, v{ACC}, v{ACC+1}\nv_cvt_pk_bf16_f32 v13, v{ACC+2}, v{ACC+3}\nds_write_b64 v16, v[12:13] offset:{L_OP}")
    exec_all()
    stamp(5)
    if stamps: a(f"s_mov_b32 s92, {sN}")
    a("s_waitcnt lgkmcnt(0)\ns_barrier")
    y_product()
    a("s_waitcnt vmcnt(1)")
    if trace:
        a(f"s_lshl_b32 s4, s2, 2\ns_add_u32 s4, s4, s3\ns_lshl_b32 s4, s4, 8\ns_add_u32 s4, s4, {WS_ST+0x100000}\nv_lshl_add_u32 v12, v0, 2, s4\nglobal_store_dword v12, v63, {pWS}")
    a("s_cmp_ge_u32 s2, 224\ns_cbranch_scc1 L_down_s")
    a("s_cmp_ge_u32 s2, 176\ns_cbranch_scc1 L_idle_s")
    a("s_cmp_ge_u32 s2, 64\ns_cbranch_scc1 L_ffn")
    a(f"s_cmp_ge_u32 s3, {NRED}\ns_cbranch_scc1 {'L_idle_s' if post2 else 'L_fin_s'}")
    a(f"v_and_b32 v12, 7, v0\nv_lshlrev_b32 v12, 4, v12\nds_read_b128 v[16:19], v12 offset:{L_G}\nds_read_b128 v[24:27], v12 offset:{L_G+128}")
    a(f"s_lshl_b32 s4, s2, 7\ns_add_u32 s4, s4, {WS_X1}\nv_lshrrev_b32 v14, 3, v0\nv_lshl_add_u32 v13, v14, 13, s4\nv_add_u32 v13, v12, v13")
    a(f"s_lshl_b32 s4, s2, 13\ns_add_u32 s4, s4, {WS_Y + 4096}\nv_lshl_add_u32 v14, v0, 4, s4\nv_mov_b32 v20, 0xff")
    for w in range(1, NRED):
        Ls = a.label("Lrs")
        a(f"s_cmp_lt_u32 s3, {w}\ns_cbranch_scc1 {Ls}\ns_sleep {RGAP}\n{Ls}:")
    poll([("v14", i * 1024 - 4096) for i in range(8)], 64, "v15", sleep=ysleep)
    stamp(6)
    for st in (16, 8, 4): pkadd(64, 64, 64 + st, st)
    ror("v_add_f32", vl(64, 4), 8)
    for pl in ("v_permlane16_swap_b32", "v_permlane32_swap_b32"): swap_add(pl, "v_add_f32", vl(64, 4), vl(68, 4))
    a("s_waitcnt lgkmcnt(0)")
    for i in range(4): a(f"v_fma_f32 v{64+i}, v{16+i}, v{64+i}, v{24+i}")
    rndn(64, 4, 68)
    for k in range(4): a(f"v_or_b32 v{64+k}, {sTag[k]}, v{64+k}")
    if xrep < 8:
        m = (1 << (8 * xrep)) - 1
        exec_set(m & 0xffffffff, m >> 32)
    a(f"global_store_dwordx4 v13, v[64:67], {pWS} sc1")
    stamp(7)
    a("L_fin_s:")
    stamps_out(range(12), late=False)
    a("s_endpgm")

    a("L_idle_s:")
    if post: post_touch()
    a("s_cmp_lt_u32 s3, 4\ns_cbranch_scc1 L_fin_s\ns_branch L_fin_h")
    a("L_ffn:")
    a("s_cmp_lt_u32 s3, 2\ns_cbranch_scc1 L_fin_s")
    lds_wait(C_F, 4)
    a("v_lshrrev_b32 v13, 4, v0\nv_lshlrev_b32 v14, 9, v13\nv_bfe_u32 v12, v0, 1, 3\nv_lshl_add_u32 v14, v12, 5, v14\nv_and_b32 v12, 1, v0\nv_lshl_add_u32 v14, v12, 3, v14")
    a(f"s_and_b32 s7, s3, 1\ns_lshl_b32 s4, s7, 4\ns_add_u32 s4, s4, {L_SF}\nv_add_u32 v14, s4, v14")
    for kb in range(16):
        a(f"ds_read_b64_tr_b16 v[{64+4*kb}:{65+4*kb}], v14 offset:{kb*2048}\nds_read_b64_tr_b16 v[{66+4*kb}:{67+4*kb}], v14 offset:{kb*2048+256}")
        if kb % 4 == 3: a("s_waitcnt lgkmcnt(0)")
    a("v_and_b32 v15, 3, v0\nv_lshlrev_b32 v15, 10, v15\nv_bfe_u32 v16, v0, 2, 2\nv_lshl_add_u32 v15, v16, 6, v15\nv_lshl_add_u32 v15, v13, 4, v15")
    a(f"s_mul_i32 s4, {sXc}, 14\ns_add_u32 s4, s4, {sXr}\ns_sub_u32 s4, s4, 8\ns_lshl_b32 s4, s4, 1\ns_add_u32 s4, s4, s7\ns_lshl_b32 s4, s4, {6+afull}\ns_add_u32 s4, s4, {WS_ACT}")
    if ax4: a("v_and_b32 v16, 3, v0\nv_lshl_add_u32 v16, v16, 4, s4\nv_bfe_u32 v17, v0, 4, 1\nv_lshl_add_u32 v16, v17, 6, v16")
    else: a("v_and_b32 v16, 3, v0\nv_lshl_add_u32 v16, v16, 4, s4\nv_bfe_u32 v17, v0, 4, 1\nv_lshl_add_u32 v16, v17, 3, v16\nv_lshrrev_b32 v17, 5, v0\nv_lshl_add_u32 v16, v17, 6, v16")
    stamp(7)
    a("s_mov_b32 s5, 0x3d372713\ns_mov_b32 s6, 0xc0135761\ns_waitcnt lgkmcnt(0)")
    a("s_barrier")
    for i in range(4): a(f"ds_read_b128 {vr(20+4*i)}, v15 offset:{L_H2+i*256}")
    for i in range(4):
        a(f"s_waitcnt lgkmcnt({3-i})")
        for k in range(4):
            d = vr(36 + 4 * k)
            a(f"v_mfma_f32_16x16x32_bf16 {d}, {vr(64+4*(4*i+k))}, {vr(20+4*i)}, {'0' if i == 0 else d}")
    for k in (1, 2, 3):
        for r in range(4): a(f"v_add_f32_dpp v{36+r}, v{36+4*k+r}, v{36+r} row_shl:{4*k} row_mask:0xf bank_mask:0xf")
    for r in range(4): a(f"v_mov_b32 v{40+r}, v{36+r}")
    for r in range(4): a(f"v_permlane32_swap_b32 v{36+r}, v{40+r}")
    for r in range(4): a(f"v_mul_f32 v{44+r}, v{36+r}, v{36+r}")
    for r in range(4): a(f"v_fma_f32 v{44+r}, v{44+r}, s5, 1.0")
    for r in range(4): a(f"v_mul_f32 v{44+r}, v{44+r}, v{36+r}")
    for r in range(4): a(f"v_mul_f32 v{44+r}, s6, v{44+r}")
    for r in range(4): a(f"v_exp_f32 v{44+r}, v{44+r}")
    for r in range(4): a(f"v_add_f32 v{44+r}, 1.0, v{44+r}")
    for r in range(4): a(f"v_rcp_f32 v{44+r}, v{44+r}")
    for r in range(4): a(f"v_mul_f32 v{36+r}, v{36+r}, v{44+r}")
    for r in range(4): a(f"v_mul_f32 v{36+r}, v{36+r}, v{40+r}")
    a("v_cvt_pk_bf16_f32 v52, v36, v37\nv_cvt_pk_bf16_f32 v53, v38, v39\nv_min_u32 v52, -2, v52\nv_min_u32 v53, -2, v53")
    if ax4:
        a("v_mov_b32 v54, v52\nv_mov_b32 v55, v53\nv_permlane16_swap_b32 v52, v54\nv_permlane16_swap_b32 v53, v55")
        exec_set(0x000f000f if afull else 0xf, 0)
        a(f"global_store_dwordx4 v16, v[52:55], {pWS} sc1")
    else:
        exec_set(0x000f000f, 0x000f000f if afull else 0)
        a(f"global_store_dwordx2 v16, v[52:53], {pWS} sc1")
    stamp(6)
    stamps_out(range(8))
    a("s_endpgm")

    def down_dma():
        a(f"s_lshl_b32 s4, {sXc}, 2\ns_add_u32 s4, s4, {sXr}\ns_sub_u32 s4, s4, 28\ns_lshl_b32 s4, s4, 5\ns_mul_i32 s5, s3, {7*32*1024}\ns_add_u32 s4, s4, s5")
        a(f"v_lshrrev_b32 v14, 1, v0\nv_lshlrev_b32 v14, 10, v14\nv_and_b32 v13, 1, v0\nv_lshlrev_b32 v13, 4, v13\nv_add3_u32 v14, v14, v13, s4\ns_mul_i32 s6, s3, {7*1024}")
        a(f"s_add_u32 s6, s6, {L_SF}\ns_and_b32 s7, {sXr}, {3 if rot else 0}\ns_lshl_b32 s7, s7, 1")
        for kb in range(7):
            a(f"s_lshl_b32 s5, s7, 10\ns_add_u32 m0, s6, s5\ns_lshl_b32 s5, s7, 15\nv_add_u32 v13, s5, v14\nglobal_load_lds_dwordx4 v13, {pWD}")
            if kb < 6: a("s_add_u32 s7, s7, 1\ns_cmp_eq_u32 s7, 7\ns_cselect_b32 s7, 0, s7")
    a("L_down_s:")
    down_dma()
    a("v_and_b32 v12, 15, v0\nv_lshrrev_b32 v13, 4, v0\nv_lshlrev_b32 v14, 8, v13\nv_lshl_add_u32 v14, v12, 3, v14")
    a(f"s_mul_i32 s4, s3, {7*1024}\ns_add_u32 s4, s4, {L_SF}\nv_add_u32 v14, s4, v14")
    a(f"s_mul_i32 s4, s3, 7\nv_bfe_u32 v15, v0, 2, 2\nv_add_u32 v15, s4, v15\nv_add_u32 v16, 4, v15\nv_min_u32 v16, 55, v16")
    a(f"v_and_b32 v17, 3, v0\nv_lshlrev_b32 v18, 4, v17\nv_lshl_add_u32 v18, v13, 6, v18")
    a(f"ds_read_b128 v[60:63], v18 offset:{L_G}\nv_add_u32 v18, {WS_ACT}, v18")
    if afull: a(f"v_lshl_add_u32 v18, v13, 6, v18\ns_and_b32 s4, {sXr}, 1\ns_lshl_b32 s4, s4, 6\nv_add_u32 v18, s4, v18")
    a(f"v_lshl_add_u32 v15, v15, {8+afull}, v18\nv_lshl_add_u32 v16, v16, {8+afull}, v18")
    a(f"s_lshl_b32 s5, {sXc}, 2\ns_add_u32 s5, s5, {sXr}\ns_sub_u32 s5, s5, 28")
    a("s_lshl_b32 s6, s5, 5\nv_lshl_add_u32 v19, v17, 10, s6\nv_lshl_add_u32 v19, v13, 3, v19")
    a(f"s_and_b32 s6, {sXc}, {xrep-1}\ns_lshl_b32 s6, s6, 13\ns_add_u32 s6, s6, {WS_X1}\nv_lshl_add_u32 v56, v19, 1, s6")
    for k in range(4): a(f"v_mov_b32 v{32+k}, {sTag[k]}")
    def act_loads():
        L = a.label("Lal")
        a(f"s_cmp_lg_u32 s3, 0\ns_cbranch_scc1 {L}\nglobal_load_dwordx4 v[32:35], v56, {pWS} sc1\n{L}:")
        a(f"global_load_dwordx4 v[20:23], v15, {pWS} sc1\nglobal_load_dwordx4 v[24:27], v16, {pWS} sc1")
    def act_check():
        a("s_waitcnt vmcnt(0)")
        tree("v_max_u32", "v_max3_u32", "v57", vl(20, 8))
        for k in range(4): a(f"v_xor_b32 v{28+k}, {sTag[k]}, v{32+k}")
        a("v_cmp_eq_u32 s[6:7], -1, v57\nv_or3_b32 v58, v28, v29, v30\nv_or_b32 v58, v58, v31\nv_and_b32 v58, 0xff, v58\nv_cmp_ne_u32 vcc, 0, v58\ns_or_b64 vcc, vcc, s[6:7]")
    if afirst:
        act_loads()
        a("s_waitcnt vmcnt(3)")
        a("s_cmp_eq_u32 s3, 0\ns_cbranch_scc1 L_dw0\ns_waitcnt vmcnt(2)\nL_dw0:")
    else: a("s_waitcnt vmcnt(0)")
    for kb in range(7):
        a(f"ds_read_b64_tr_b16 v[{64+4*kb}:{65+4*kb}], v14 offset:{kb*1024}\nds_read_b64_tr_b16 v[{66+4*kb}:{67+4*kb}], v14 offset:{kb*1024+128}")
    stamp(9)
    if afirst:
        act_check()
        a("s_cbranch_scc0 L_gotact")
    if a2stage:
        m = sum(1 << (64 // aany * i) for i in range(aany))
        a(f"s_mov_b32 s6, {hex(m & 0xffffffff)}\ns_mov_b32 s7, {hex(m >> 32)}\ns_and_b32 s4, s2, {16 // aany - 1}\ns_lshl_b32 s4, s4, 2\ns_lshl_b64 exec, s[6:7], s4")
        if aflag:
            a(f"s_mul_i32 s4, s3, 14\ns_lshr_b32 s5, s2, 2\ns_and_b32 s5, s5, 7\ns_add_u32 s4, s4, s5\ns_lshl_b32 s4, s4, 7\ns_add_u32 s4, s4, {WS_AF}\nv_mov_b32 v58, s4")
            poll([("v58", 0)], 20, "v57", sleep=asleep)
            if fdel: a(f"s_sleep {fdel}")
        else: poll([("v15", 0)], 20, "v57", tagged=False, sleep=asleep, any_=True)
        exec_all()
    stamp(10)
    a(f"s_mov_b32 {sTO}, {TO}\nL_actp:")
    act_loads()
    act_check()
    a(f"s_cbranch_scc0 L_gotact\ns_sub_u32 {sTO}, {sTO}, 1\ns_cbranch_scc0 L_actp\nL_gotact:")
    if stamps: a(f"s_mov_b32 s92, {sTO}")
    stamp(6)
    a("s_waitcnt lgkmcnt(0)")
    for kb in range(7):
        d = vr(36 + 4 * (kb & 3))
        a(f"v_mfma_f32_16x16x32_bf16 {d}, {vr(64+4*kb)}, {vr(20+4*(kb>>2))}, {'0' if kb < 4 else d}")
    a(f"s_lshl_b32 s4, s3, 10\nv_lshl_add_u32 v12, v0, 4, s4")
    for k in (3, 1, 2):
        for r in range(4): a(f"v_add_f32_dpp v{36+r}, v{36+4*k+r}, v{36+r} row_shl:{4*k} row_mask:0xf bank_mask:0xf")
    a(f"ds_write_b128 v12, v[36:39] offset:{L_PM}")
    a("s_waitcnt lgkmcnt(0)\ns_barrier")
    a("s_cmp_eq_u32 s3, 4\ns_cbranch_scc1 L_epoch")
    a("s_cmp_lg_u32 s3, 0\ns_cbranch_scc1 L_fin_d")
    for w in range(1, 8): a(f"ds_read_b128 {vr(64+4*w)}, v12 offset:{L_PM+w*1024}")
    a("s_waitcnt lgkmcnt(0)")
    pkadd(64, 36, 68, 4)
    for w in (2, 4, 6): pkadd(64 + 4 * w, 64 + 4 * w, 68 + 4 * w, 4)
    for w in (0, 4): pkadd(64 + 4 * w, 64 + 4 * w, 72 + 4 * w, 4)
    pkadd(64, 64, 80, 4)
    for i in range(4): a(f"v_fma_f32 v{64+i}, v{60+i}, v{64+i}, v{28+i}")
    a("v_cvt_pk_bf16_f32 v68, v64, v65\nv_cvt_pk_bf16_f32 v69, v66, v67")
    exec_set(0x000f000f, 0x000f000f)
    a(f"global_store_dwordx2 v19, v[68:69], {pOUT} {opol}")
    stamp(7)
    a("L_fin_d:")
    stamps_out(range(12))
    a("s_endpgm")
    a("L_epoch:")
    a("s_cmp_lg_u32 s2, 224\ns_cbranch_scc1 L_fin_d")
    a(f"v_mov_b32 v12, {WS_EP}\nv_mov_b32 v13, {sT}\ns_mov_b64 exec, 1\nglobal_store_dword v12, v13, {pWS} {opol}")
    a("s_branch L_fin_d")

    a("L_helper:")
    vJ, vG, vY, vFF = "v1", "v2", "v7", "v3"
    a(f"v_and_b32 {vJ}, 15, v0\nv_lshrrev_b32 {vG}, 4, v0\nv_mov_b32 {vFF}, 0xff")
    a(f"s_lshl_b32 s10, {sW}, 12")
    if tmap:
        a(f"s_and_b32 s9, {sXc}, 3\ns_xor_b32 s9, s9, {sXr}")
        a("s_cmp_ge_u32 s2, 128\ns_cbranch_scc1 L_t1")
        a("s_and_b32 s12, s2, 3\ns_lshr_b32 s4, s2, 2\ns_lshr_b32 s5, s4, 1\ns_lshl_b32 s5, s5, 2\ns_and_b32 s6, s4, 1\ns_add_u32 s5, s5, s6")
        a("s_lshl_b32 s11, s4, 2\ns_sub_u32 s11, s11, 78\ns_cmp_lt_u32 s4, 24\ns_cselect_b32 s11, s5, s11\ns_branch L_t2")
        a(f"L_t1:\ns_and_b32 s12, {sPair}, 3\ns_and_b32 s4, {sPair}, 60\ns_add_u32 s5, s4, 3\ns_sub_u32 s11, s4, 46\ns_cmp_lt_u32 s4, 48\ns_cselect_b32 s11, s5, s11")
        a("s_bitcmp1_b32 s9, 0\ns_cselect_b32 s11, 48, s11\nL_t2:")
    else:
        a(f"s_lshr_b32 s11, s2, 2\ns_and_b32 s12, s2, 3\ns_mov_b32 s9, {sXr}")
    a(f"s_lshl_b32 s13, s12, 7\ns_lshl_b32 s4, {sW}, 5\ns_add_u32 s13, s13, s4")
    a("v_lshrrev_b32 v14, 3, v0\nv_add_u32 v14, s13, v14\nv_mul_u32_u24 v14, 6144, v14\nv_and_b32 v15, 7, v0\nv_lshlrev_b32 v15, 4, v15")
    a("s_lshl_b32 s4, s11, 7\nv_add3_u32 v14, v14, v15, s4")
    a(f"v_and_b32 v15, 3, v0\nv_lshlrev_b32 v15, 10, v15\nv_lshl_add_u32 v15, {vG}, 4, v15\ns_lshl_b32 s4, s13, 1\nv_add_u32 v15, s4, v15")
    a(f"s_lshl_b32 s4, {sXc}, 6\ns_lshl_b32 s5, {sW}, 4\ns_add_u32 s4, s4, s5\ns_lshl_b32 s4, s4, 13\ns_lshl_b32 s5, s9, 8\ns_add_u32 s4, s4, s5")
    a(f"v_lshl_add_u32 v16, {vG}, 13, s4\nv_lshl_add_u32 v16, {vJ}, 4, v16")
    a(f"s_lshl_b32 s4, {sW}, 10\nv_lshl_add_u32 v17, v0, 4, s4")
    a("s_waitcnt lgkmcnt(0)")
    stamp(0)
    a(f"s_load_dword {sT}, {pWS}, {WS_EP}")
    def dma(n, voff, ptr, stride, ldsbase_s, ldsoff):
        for i in range(n):
            a(f"s_add_u32 m0, {ldsbase_s}, {ldsoff + i*1024}")
            a(f"global_load_lds_dwordx4 v{voff}, {ptr} nt")
            if i + 1 < n: a(f"v_add_u32 v{voff}, {stride}, v{voff}")
    a("s_cmp_ge_u32 s11, 48\ns_cbranch_scc1 L_nomod1")
    a(f"global_load_dwordx4 v[20:23], v15, {pC}")
    dma(4, 14, pWM, 8 * 6144, "s10", L_SA)
    a("L_nomod1:")
    a(f"global_load_dwordx4 v[24:27], v17, {pX}")
    dma(4, 16, pWQ, 4 * 8192, "s10", L_SB)
    a("s_barrier")
    a("s_waitcnt lgkmcnt(0)")
    make_tags()
    a("s_cmp_ge_u32 s11, 48\ns_cbranch_scc1 L_nomod2")
    a("s_waitcnt vmcnt(9)")
    stamp(11)
    unpack(28, 20, 4)
    for i in range(8): a(f"v_mul_f32 v{36+i}, {hex(LOG2E | 0x80000000)}, v{28+i}")
    for i in range(8): a(f"v_exp_f32 v{36+i}, v{36+i}")
    for i in range(8): a(f"v_add_f32 v{36+i}, 1.0, v{36+i}")
    for i in range(8): a(f"v_rcp_f32 v{44+i}, v{36+i}")
    for i in range(8): a(f"v_mul_f32 v{52+i}, v{28+i}, v{44+i}")
    for i in range(8): a(f"v_fma_f32 v{28+i}, -v{52+i}, v{36+i}, v{28+i}")
    for i in range(8): a(f"v_fma_f32 v{28+i}, v{28+i}, v{44+i}, v{52+i}")
    for i in range(8): a(f"v_cmp_u_f32 vcc, v{28+i}, v{28+i}\nv_cndmask_b32 v{28+i}, v{28+i}, v{52+i}, vcc")
    for i in range(4): a(f"v_cvt_pk_bf16_f32 v{20+i}, v{28+2*i}, v{29+2*i}")
    a(f"v_lshlrev_b32 v14, 10, {vG}\nv_bfe_u32 v15, v0, 2, 2\nv_lshl_add_u32 v14, v15, 7, v14\nv_and_b32 v15, 3, v0\nv_lshl_add_u32 v14, v15, 3, v14\nv_add_u32 v14, s10, v14")
    a("s_waitcnt vmcnt(5)")
    stamp(1)
    for cs in range(4):
        a(f"ds_read_b64_tr_b16 v[{64+4*cs}:{65+4*cs}], v14 offset:{L_SA+cs*32}\nds_read_b64_tr_b16 v[{66+4*cs}:{67+4*cs}], v14 offset:{L_SA+cs*32+512}")
    for cs in range(4):
        a(f"s_waitcnt lgkmcnt({6-2*cs})")
        a(f"v_mfma_f32_16x16x32_bf16 {vr(36+4*cs)}, {vr(64+4*cs)}, v[20:23], 0")
    for cs in (1, 2, 3):
        for r in range(4): a(f"v_mov_b32_dpp v{36+r}, v{36+4*cs+r} quad_perm:[0,1,2,3] row_mask:0xf bank_mask:{hex(1<<cs)}")
    a(f"s_lshl_b32 s4, {sW}, 10\nv_lshl_add_u32 v12, v0, 4, s4\nds_write_b128 v12, v[36:39] offset:{L_PM}")
    a(f"v_mov_b32 v12, {L_CNT}\nv_mov_b32 v13, 1\ns_waitcnt lgkmcnt(0)\ns_mov_b64 exec, 1")
    a(f"ds_add_rtn_u32 v13, v12, v13 offset:{C_MOD}\ns_waitcnt lgkmcnt(0)\nv_readfirstlane_b32 s4, v13")
    exec_all()
    a(f"s_cmp_lg_u32 s4, 3\ns_cbranch_scc1 L_nomod2")
    a("v_lshlrev_b32 v12, 4, v0")
    for w in range(4): a(f"ds_read_b128 {vr(36+4*w)}, v12 offset:{L_PM+w*1024}")
    a("s_cmp_lt_u32 s11, 16\ns_cbranch_scc1 L_modp")
    a(f"s_sub_u32 s4, s11, 16\ns_lshr_b32 s5, s4, 3\ns_lshl_b32 s5, s5, 15\ns_and_b32 s4, s4, 7\ns_lshl_b32 s4, s4, 8\ns_add_u32 s4, s4, s5")
    a(f"s_lshl_b32 s5, s12, 13\ns_add_u32 s4, s4, s5\ns_add_u32 s4, s4, {WS_MODN}")
    a(f"v_and_b32 v12, 3, v0\nv_lshl_add_u32 v12, v12, 11, s4\nv_bfe_u32 v13, v0, 2, 2\nv_lshl_add_u32 v12, v13, 6, v12\nv_lshl_add_u32 v12, {vG}, 4, v12")
    a("s_branch L_modst")
    a("L_modp:")
    a(f"s_and_b32 s4, s11, 7\ns_lshl_b32 s4, s4, 13\ns_lshl_b32 s5, s12, 11\ns_add_u32 s4, s4, s5\ns_lshr_b32 s5, s11, 3\ns_lshl_b32 s5, s5, 7\ns_add_u32 s4, s4, s5\ns_add_u32 s4, s4, {WS_MODP}")
    a("v_and_b32 v12, 3, v0\nv_lshl_add_u32 v12, v12, 4, s4\nv_bfe_u32 v13, v0, 4, 1\nv_lshl_add_u32 v12, v13, 10, v12")
    a("v_bfe_u32 v13, v0, 2, 1\nv_lshl_add_u32 v12, v13, 9, v12\nv_lshrrev_b32 v13, 5, v0\nv_lshl_add_u32 v12, v13, 8, v12\nv_bfe_u32 v13, v0, 3, 1\nv_lshl_add_u32 v12, v13, 6, v12")
    a("L_modst:")
    a("s_waitcnt lgkmcnt(0)")
    pkadd(36, 36, 44, 8); pkadd(36, 36, 40, 4)
    tag(36, 1, vFF, rnd)
    a(f"global_store_dwordx4 v12, v[36:39], {pWS} sc1")
    stamp(2)
    a("s_waitcnt vmcnt(1)\ns_branch L_ln")
    a("L_nomod2:")
    a("s_waitcnt vmcnt(0)")
    a("L_ln:")
    unpack(28, 24, 4)
    a("v_add_f32 v36, v28, v29\nv_add_f32 v37, v30, v31\nv_add_f32 v38, v32, v33\nv_add_f32 v39, v34, v35\nv_add_f32 v36, v36, v37\nv_add_f32 v38, v38, v39\nv_add_f32 v36, v36, v38")
    wave_reduce("v_add_f32", ["v36"], ["v37"])
    a("v_mul_f32 v36, 0x3b000000, v36")
    for i in range(8): a(f"v_sub_f32 v{40+i}, v{28+i}, v36")
    a("v_mul_f32 v37, v40, v40")
    for i in range(1, 8): a(f"v_fmac_f32 v37, v{40+i}, v{40+i}")
    wave_reduce("v_add_f32", ["v37"], ["v38"])
    a("v_mul_f32 v37, 0x3b000000, v37")
    rnd2("v36", "v37", "v38")
    a("v_add_f32 v37, 0x3727c5ac, v37\nv_cvt_pk_bf16_f32 v37, v37, v37\nv_and_b32 v37, 0xffff0000, v37\nv_sqrt_f32 v37, v37")
    a("v_cvt_pk_bf16_f32 v37, v37, v37\nv_and_b32 v37, 0xffff0000, v37\nv_rcp_f32 v38, v37")
    for i in range(8): a(f"v_sub_f32 v{28+i}, v{28+i}, v36")
    rndn(28, 8, 48)
    for i in range(8): a(f"v_mul_f32 v{40+i}, v{28+i}, v38")
    for i in range(8): a(f"v_fma_f32 v{28+i}, -v{40+i}, v37, v{28+i}")
    for i in range(8): a(f"v_fma_f32 v{40+i}, v{28+i}, v38, v{40+i}")
    rndn(40, 8, 48)
    a(f"s_lshl_b32 s4, {sW}, 8\nv_and_b32 v12, 7, v0\nv_lshl_add_u32 v12, v12, 5, s4\ns_lshl_b32 s4, {sXc}, 3\ns_lshl_b64 exec, 0xff, s4")
    a(f"ds_write_b128 v12, v[40:43] offset:{L_N}\nds_write_b128 v12, v[44:47] offset:{L_N+16}")
    lds_inc(C_N)
    a(f"s_cmp_lg_u32 {sW}, 0\ns_cbranch_scc1 L_noq")
    lds_wait(C_N, 4)
    a(f"v_lshlrev_b32 v14, 11, {vG}\nv_bfe_u32 v15, v0, 2, 2\nv_lshl_add_u32 v14, v15, 8, v14\nv_and_b32 v15, 3, v0\nv_lshl_add_u32 v14, v15, 3, v14\nv_add_u32 v14, {L_SB}, v14")
    for cb in range(8):
        for kb in range(2):
            r = 128 + 4 * (2 * cb + kb)
            a(f"ds_read_b64_tr_b16 v[{r}:{r+1}], v14 offset:{kb*8192+cb*32}\nds_read_b64_tr_b16 v[{r+2}:{r+3}], v14 offset:{kb*8192+cb*32+1024}")
        if cb & 1: a("s_waitcnt lgkmcnt(0)")
    a(f"v_lshlrev_b32 v15, 8, v15\nv_bfe_u32 v13, v0, 2, 1\nv_lshl_add_u32 v15, v13, 7, v15\nv_lshl_add_u32 v15, {vG}, 5, v15")
    a(f"ds_read_b128 v[28:31], v15 offset:{L_N}\nds_read_b128 v[32:35], v15 offset:{L_N+16}")
    a(f"s_lshl_b32 s4, {sXc}, 13\ns_add_u32 s4, s4, {WS_MODP + 4096}\nv_lshl_add_u32 v14, v0, 4, s4")
    a(f"s_lshl_b32 s4, s9, 14\ns_lshl_b32 s5, {sXc}, 9\ns_add_u32 s4, s4, s5\ns_add_u32 s4, s4, {WS_QP}")
    a(f"v_and_b32 v16, 3, v0\nv_lshl_add_u32 v16, v16, 12, s4\nv_bfe_u32 v13, v0, 2, 2\nv_lshl_add_u32 v16, v13, 6, v16\nv_lshl_add_u32 v16, {vG}, 4, v16")
    a(f"s_lshl_b32 s4, {sH}, 14\ns_lshl_b32 s5, {sB}, 12\ns_add_u32 s4, s4, s5\ns_add_u32 s4, s4, {WS_QP}\nv_lshl_add_u32 v17, v0, 4, s4")
    a("v_mov_b32 v18, 1.0")
    stamp(3)
    if F1: lds_wait(C_FP, 1, sleep=2)
    poll([("v14", i * 1024 - 4096) for i in range(8)], 64, "v15", sleep=ps)
    stamp(4)
    pkadd(64, 64, 80, 16); pkadd(64, 64, 72, 8)
    rndn(64, 8, 72)
    for i in range(8): a(f"v_add_f32_dpp v{76+i}, v{64+i}, v18 row_ror:8 row_mask:0xf bank_mask:0xf")
    rndn(76, 8, 72)
    a("s_waitcnt lgkmcnt(0)")
    for i in range(8): a(f"v_mul_f32 v{76+i}, v{28+i}, v{76+i}")
    rndn(76, 8, 72)
    for i in range(8): a(f"v_add_f32 v{76+i}, v{76+i}, v{64+i}")
    for i in range(4): a(f"v_cvt_pk_bf16_f32 v{20+i}, v{76+2*i}, v{77+2*i}")
    for i in range(4): a(f"v_mov_b32_dpp v{20+i}, v{20+i} row_ror:8 row_mask:0xf bank_mask:0xc")
    for i in range(4): a(f"v_mov_b32 v{24+i}, v{20+i}")
    for i in range(4): a(f"v_mov_b32_dpp v{24+i}, v{20+i} row_ror:4 row_mask:0xf bank_mask:0x5")
    for i in range(4): a(f"v_mov_b32_dpp v{20+i}, v{20+i} row_ror:4 row_mask:0xf bank_mask:0xa")
    for kb in range(2):
        for cb in range(8):
            d = vr(64 + 4 * cb)
            a(f"v_mfma_f32_16x16x32_bf16 {d}, {vr(128+4*(2*cb+kb))}, {vr(20+4*kb)}, {'0' if kb == 0 else d}")
    for s_ in range(2):
        for u in (1, 2, 3):
            for r in range(4): a(f"v_mov_b32_dpp v{64+16*s_+r}, v{64+16*s_+4*u+r} quad_perm:[0,1,2,3] row_mask:0xf bank_mask:{hex(1<<u)}")
        tag(64 + 16 * s_, 1, vFF, rnd)
        a(f"global_store_dwordx4 v16, {vr(64+16*s_)}, {pWS} offset:{256*s_} {qpol}")
    stamp(12)
    if F2: lds_wait(C_FP, 2, sleep=2)
    poll([("v17", i * 1024) for i in range(4)], 96, "v15", sleep=ps)
    pkadd(96, 96, 104, 8); pkadd(96, 96, 100, 4)
    for r in range(4): a(f"v_mov_b32 v{100+r}, v{96+r}")
    for r in range(4): a(f"v_permlane32_swap_b32 v{96+r}, v{100+r}")
    pkadd(96, 96, 100, 4)
    a("v_cvt_pk_bf16_f32 v100, v96, v97\nv_cvt_pk_bf16_f32 v101, v98, v99")
    a(f"v_and_b32 v12, 31, v0\nv_lshlrev_b32 v12, 3, v12\nds_write_b64 v12, v[100:101] offset:{L_QB}\nv_mov_b32 v12, {L_CNT}\nv_mov_b32 v13, 1")
    a(f"ds_write_b32 v12, v13 offset:{C_Q}")
    a("L_noq:")
    stamp(5)
    lds_wait(C_XT, 4, sleep=4)
    a(f"s_cmp_eq_u32 {sW}, 2\ns_cbranch_scc1 L_w6")
    a(f"s_cmp_lg_u32 {sW}, 1\ns_cbranch_scc1 L_bg")
    a(f"s_cmp_lg_u32 {sSide}, 0\ns_cbranch_scc1 L_now")
    a(f"s_lshl_b32 s4, {sPair}, 7\ns_add_u32 s4, s4, {WS_W}\nv_mov_b32 v12, s4\nv_mov_b32 v13, 0")
    a(f"s_mov_b64 exec, 1\nglobal_store_dword v12, v13, {pWS} sc1")
    a("L_now:")
    a("s_branch L_bg")
    a("L_w6:")
    a("s_cmp_ge_u32 s2, 224\ns_cbranch_scc1 L_w6d")
    a("s_cmp_ge_u32 s2, 64\ns_cbranch_scc1 L_bg")
    a(f"s_lshl_b32 s4, s2, 9\ns_add_u32 s4, s4, {WS_ACT}\nv_lshl_add_u32 v12, v0, 3, s4\nv_mov_b32 v14, -1\nv_mov_b32 v15, -1\nglobal_store_dwordx2 v12, v[14:15], {pWS} sc1")
    a(f"v_and_b32 v12, 7, v0\nv_lshlrev_b32 v12, 4, v12\ns_lshl_b32 s4, s2, 7\nv_add_u32 v13, s4, v12")
    a(f"v_lshrrev_b32 v16, 1, v13\nglobal_load_dwordx2 v[36:37], v16, {pX}")
    a(f"v_bfe_u32 v14, v0, 3, 2\nv_lshl_add_u32 v14, v14, 13, v13\nv_add_u32 v14, {WS_MODN}, v14")
    a(f"v_lshrrev_b32 v17, 5, v0\nv_lshl_add_u32 v16, v17, 15, v14\nv_add_u32 v16, 32768, v16")
    poll([("v16", 0), ("v14", 0)], 20, "v15", sleep=8)
    ror("v_add_f32", vl(20, 8), 8)
    swap_add("v_permlane16_swap_b32", "v_add_f32", vl(20, 8), vl(28, 8))
    rndn(20, 8, 28)
    a("v_cvt_f32_u32 v18, v17")
    for i in range(4): a(f"v_add_f32 v{20+i}, v18, v{20+i}")
    rndn(20, 4, 28)
    unpack(32, 36, 2)
    a(f"ds_write_b128 v12, v[24:27] offset:{L_G}\nds_write_b128 v12, v[32:35] offset:{L_G+128}")
    for k in range(4): a(f"v_or_b32 v{20+k}, {sTag[k]}, v{20+k}")
    a(f"v_lshl_add_u32 v13, v17, 13, v13\nv_add_u32 v13, {WS_MODF}, v13")
    exec_set(0xff, 0xff)
    a(f"global_store_dwordx4 v13, v[20:23], {pWS} sc1")
    a("s_branch L_bg")
    a("L_w6d:")
    a(f"s_lshl_b32 s5, {sXc}, 2\ns_add_u32 s5, s5, {sXr}\ns_sub_u32 s5, s5, 28\ns_lshl_b32 s5, s5, 6\ns_add_u32 s5, s5, {WS_MODN + 3*32768}")
    a(f"v_lshl_add_u32 v14, {vJ}, 11, s5\nv_lshl_add_u32 v14, {vG}, 4, v14")
    poll([("v14", 0)], 20, "v15", sleep=8)
    ror("v_add_f32", vl(20, 4), 8); ror("v_add_f32", vl(20, 4), 4)
    rndn(20, 4, 28)
    a(f"v_and_b32 v12, 3, v0\nv_lshlrev_b32 v12, 4, v12\nv_lshl_add_u32 v12, {vG}, 6, v12\nds_write_b128 v12, v[20:23] offset:{L_G}")
    a("L_bg:")
    exec_all()
    a(f"s_lshl_b32 s4, {sH}, 17\ns_add_u32 s44, {lo(pWO)}, s4\ns_addc_u32 s45, {hi(pWO)}, 0\ns_mov_b32 s46, 0x20000\ns_mov_b32 s47, 0x20000")
    a(f"v_lshlrev_b32 v18, 15, {vG}\nv_lshl_add_u32 v18, {vJ}, 4, v18\ns_xor_b32 s13, {sH}, {sSide if wside else 0}\ns_and_b32 s13, s13, 1\ns_lshl_b32 s13, s13, 9")
    a("s_min_u32 s6, s2, 223")
    touch_addr("v14", "s6")
    a(f"s_lshl_b32 s11, {sH}, 1\ns_xor_b32 s11, s11, {sW}")
    for ph in range(2):
        L = a.label("Lbg")
        a(f"s_mov_b32 s12, 0\n{L}:")
        for k in range(BGD):
            a(f"s_xor_b32 s5, s12, s11\ns_lshl_b32 s6, s5, 10\ns_add_u32 m0, s6, {L_SF}")
            a("s_lshr_b32 s6, s5, 1\ns_lshl_b32 s6, s6, 10\ns_and_b32 s7, s5, 1\ns_lshl_b32 s7, s7, 8\ns_add_u32 s6, s6, s7\ns_add_u32 s6, s6, s13")
            a("s_and_b32 s7, s5, 6\ns_lshl_b32 s7, s7, 4\ns_and_b32 s5, s5, 16\ns_lshl_b32 s5, s5, 3\ns_or_b32 s5, s5, s7\nv_xor_b32 v19, s5, v18")
            a(f"buffer_load_dwordx4 v19, s[44:47], s6 offen {wpol} lds\ns_add_u32 s12, s12, 4")
        a(f"s_waitcnt vmcnt(0)\ns_cmp_lt_u32 s12, 64\ns_cbranch_scc1 {L}")
        lds_inc(C_BG)
        if ph == 0:
            for k, p in enumerate((pWD, pWG, pWU)):
                if (pref >> k) & 1:
                    Lk = a.label("Lpf")
                    a(f"s_cmp_lg_u32 {sW}, {k}\ns_cbranch_scc1 {Lk}\nglobal_load_dword v15, v14, {p}\n{Lk}:")
            lds_wait(C_BG, 4, sleep=4)
            wo_frags()
            lds_inc(C_BG)
            lds_wait(C_BG, 8, sleep=2)
            a("s_xor_b32 s13, s13, 512")
    if latemf: lds_wait(C_KD, 4, sleep=8)
    a("s_cmp_ge_u32 s2, 176\ns_cbranch_scc1 L_nomf\ns_cmp_lt_u32 s2, 64\ns_cbranch_scc1 L_nomf")
    a(f"s_lshl_b32 s4, {sW}, 11\ns_add_u32 s4, s4, {WS_MODF}\nv_lshl_add_u32 v12, v0, 4, s4\nv_add_u32 v13, 8192, v12")
    poll([("v12", 0), ("v12", 1024), ("v13", 0), ("v13", 1024)], 104, "v15", sleep=8, first_plain=True)
    a("L_nomf:")
    a(f"s_cmp_lt_u32 s2, 224\ns_cbranch_scc1 L_nomf2\ns_cmp_lg_u32 {sW}, 2\ns_cbranch_scc1 L_nomf2")
    a(f"v_lshlrev_b32 v12, 7, v0\nv_add_u32 v12, {WS_MODF}, v12")
    poll([("v12", 0)], 104, "v15", sleep=8, first_plain=True)
    a("L_nomf2:")
    stamp(13)
    a(f"s_cmp_lg_u32 {sW}, 1\ns_cbranch_scc1 L_noclaim")
    GW = (64 - 4 * S) * 4
    NL = GW // 16
    assert NL % 2 == 0 and NL <= 8
    MAGIC = -(-65536 // GW)
    assert all((q * MAGIC) >> 16 == q // GW for q in range(4 * GW))
    lds_wait(C_KD, 4, sleep=8)
    a(f"s_mov_b32 s6, {4*S*64}\ns_cmp_eq_u32 {sSide}, 0\ns_cselect_b32 s4, s6, 4096\ns_cselect_b32 s5, 4096, s6")
    a(f"s_sub_u32 s7, s5, s4\ns_add_u32 s4, s4, {L_SC}")
    XB = 28; XM = XB + 4 * NL; XP = XM + 4; XA = XP + 2 * NL
    assert XA + NL <= 96
    for i in range(NL):
        a(f"v_add_u32 v13, {64*i}, v0\nv_mul_u32_u24 v14, {MAGIC}, v13\nv_lshrrev_b32 v14, 16, v14\nv_mul_u32_u24 v14, {8192 - 16*GW}, v14")
        a(f"v_lshl_add_u32 v14, v13, 4, v14\nv_add_u32 v{XA+i}, s4, v14\nds_read_b128 {vr(XB+4*i)}, v{XA+i}")
    a("v_and_b32 v20, 3, v0\nv_lshlrev_b32 v21, 3, v20")
    a(f"ds_read_b64 v[{XM}:{XM+1}], v21 offset:{L_CNT+C_ML}\nds_read_b64 v[{XM+2}:{XM+3}], v21 offset:{L_CNT+C_ML}")
    a(f"s_lshl_b32 s4, {sCh}, 12\ns_add_u32 s4, s4, {WS_XS}\nv_lshl_add_u32 v16, v0, 4, s4\nv_xor_b32 v17, 0x1000, v16")
    a(f"s_lshl_b32 s4, {sCh}, 7\ns_add_u32 s4, s4, {WS_XM}\nv_and_b32 v18, 7, v0\nv_lshl_add_u32 v18, v18, 4, s4\nv_xor_b32 v19, 0x80, v18")
    a("s_mov_b32 s4, 0x07060302\ns_waitcnt lgkmcnt(0)")
    for i in range(NL): a(f"v_add_u32 v{XA+i}, s7, v{XA+i}")
    for i in range(2 * NL): a(f"v_perm_b32 v{XP+i}, v{XB+2*i+1}, v{XB+2*i}, s4")
    for i in range(NL // 2): a(f"global_store_dwordx4 v16, {vr(XP+4*i)}, {pWS} offset:{i*1024} {xspol}")
    tag(XM, 1, vFF)
    a(f"s_waitcnt vmcnt(0)\ns_mov_b64 exec, 0xff\nglobal_store_dwordx4 v18, {vr(XM)}, {pWS} sc1")
    exec_all()
    a(f"v_and_b32 v24, 0xffffff00, v{XM}\nv_and_b32 v25, 0xffffff00, v{XM+1}")
    lds_wait(C_PROG, 4 * S - TH - PRE, sleep=8)
    poll([("v19", 0)], XM, "v15", sleep=16)
    for i in range(NL // 2): a(f"global_load_dwordx4 {vr(XP+4*i)}, v17, {pWS} offset:{i*1024} sc1")
    a("s_waitcnt vmcnt(0)")
    unpack(XB, XP, 2 * NL)
    for i in range(NL): a(f"ds_write_b128 v{XA+i}, {vr(XB+4*i)}")
    a(f"v_mov_b32_dpp v24, v{XM} quad_perm:[0,1,2,3] row_mask:0xf bank_mask:0xa\nv_mov_b32_dpp v25, v{XM+1} quad_perm:[0,1,2,3] row_mask:0xf bank_mask:0xa")
    a("v_mov_b32 v22, v24")
    for sh in (4, 2, 1): ror("v_max_f32", ["v22"], sh)
    a(f"v_sub_f32 v24, v24, v22\nv_mul_f32 v24, {hex(LOG2E)}, v24\nv_exp_f32 v24, v24\nv_mul_f32 v25, v25, v24")
    for sh in (4, 2, 1): ror("v_add_f32", ["v25"], sh)
    a(f"v_log_f32 v25, v25\nv_mov_b32 v24, v22\nv_sub_f32 v25, 0, v25")
    lds_wait(C_BG, 12, sleep=4)
    a(f"s_mov_b64 exec, 1\nds_write_b64 v12, v[24:25] offset:{C_REF}")
    NDYN = 128 - 8 * S
    a(f"s_lshl_b32 s4, {sPair}, 7\ns_add_u32 s4, s4, {WS_W}\nv_mov_b32 v18, s4\ns_add_u32 s48, {lo(pWS)}, s4\ns_addc_u32 s49, {hi(pWS)}, 0\ns_mov_b32 s12, 0\ns_mov_b32 s13, {0 if peek else KMAX}\ns_mov_b32 s11, {TH + peek}")
    a(f"L_claim:\nds_read_b128 v[20:23], v12 offset:{C_PROG}\ns_waitcnt lgkmcnt(0)")
    a("v_max3_u32 v20, v20, v21, v22\nv_max_u32 v20, v20, v23\nv_readfirstlane_b32 s4, v20")
    a(f"s_add_u32 s4, s4, s11\ns_add_u32 s5, s12, {4*S}\ns_cmp_ge_u32 s4, s5\ns_cbranch_scc1 L_doclaim\ns_sleep {csleep}\ns_branch L_claim")
    if satom: a(f"L_doclaim:\ns_mov_b32 s4, s13\ns_atomic_add s4, s[48:49], 0 glc\ns_waitcnt lgkmcnt(0)")
    else: a(f"L_doclaim:\nv_mov_b32 v19, s13\nglobal_atomic_add v19, v18, v19, {pWS} sc0 sc1\ns_waitcnt vmcnt(0)\nv_readfirstlane_b32 s4, v19")
    a(f"s_lshl_b32 s6, s12, 1\ns_add_u32 s6, s6, {MARG}\ns_cmp_lt_u32 s6, s4\ns_cselect_b32 s11, {THS}, {TH}\ns_cselect_b32 s6, {KSS}, {KSH}")
    a(f"s_sub_i32 s4, {NDYN}, s4\ns_max_i32 s5, s4, 0\ns_min_i32 s5, s5, s13\ns_add_u32 s12, s12, s5\ns_sub_i32 s4, s4, s13")
    a(f"s_cmp_gt_i32 s4, 0\ns_cselect_b32 s5, 0, 0x10000\ns_or_b32 s5, s5, s12\nv_mov_b32 v19, s5\nds_write_b32 v12, v19 offset:{C_LIM}")
    a(f"s_lshr_b32 s13, s4, s6\ns_min_u32 s13, s13, {KMAX}\ns_max_u32 s13, s13, 1")
    a("s_cmp_gt_i32 s4, 0\ns_cbranch_scc1 L_claim")
    a(f"s_add_u32 s12, s12, {4*S-EX}")
    a(f"L_near:\nds_read_b128 v[20:23], v12 offset:{C_PROG}\ns_waitcnt lgkmcnt(0)")
    a("v_min3_u32 v20, v20, v21, v22\nv_min_u32 v20, v20, v23\nv_readfirstlane_b32 s4, v20")
    a(f"s_cmp_ge_u32 s4, s12\ns_cbranch_scc1 L_near2\ns_sleep 1\ns_branch L_near")
    a(f"L_near2:\nv_mov_b32 v19, 1\nds_write_b32 v12, v19 offset:{C_END}")
    exec_all()
    a("L_noclaim:")
    a(f"s_and_b32 s4, {sXc}, {xrep-1}\ns_lshl_b32 s4, s4, 13\ns_lshl_b32 s5, {sW}, 11\ns_add_u32 s4, s4, s5\ns_add_u32 s4, s4, {WS_X1}\nv_lshl_add_u32 v23, v0, 4, s4")
    a(f"s_lshl_b32 s5, {sW}, 10\nv_lshl_add_u32 v24, v0, 3, s5")
    stamp(6)
    a(f"s_mul_i32 s4, {sXc}, 14\ns_add_u32 s4, s4, {sXr}\ns_sub_u32 s4, s4, 8\ns_lshl_b32 s4, s4, 5\ns_mul_i32 s5, {sW}, {128*3584}\ns_add_u32 s4, s4, s5")
    a(f"v_lshrrev_b32 v18, 2, v0\nv_mul_u32_u24 v14, 3584, v18\nv_and_b32 v19, 1, v0\nv_lshl_add_u32 v14, v19, 4, v14\nv_add_u32 v14, s4, v14")
    a(f"v_mov_b32 v16, {lo(pWG)}\nv_mov_b32 v17, {hi(pWG)}\nv_mov_b32 v12, {lo(pWU)}\nv_mov_b32 v13, {hi(pWU)}\nv_and_b32 v19, 2, v0\nv_cmp_eq_u32 vcc, 2, v19")
    a("v_cndmask_b32 v16, v16, v12, vcc\nv_cndmask_b32 v17, v17, v13, vcc\nv_add_co_u32 v16, vcc, v16, v14\nv_addc_co_u32 v17, vcc, 0, v17, vcc")
    a("s_waitcnt vmcnt(0)")
    if touch:
        a(f"s_mul_i32 s4, s2, 7168\ns_mul_i32 s5, {sW}, 1792\ns_add_u32 s4, s4, s5\nv_min_u32 v14, 13, v0\nv_lshl_add_u32 v14, v14, 7, s4")
        lds_wait(C_END, 1, sleep=2)
        a(f"global_load_dword v18, v14, {pWG}\nglobal_load_dword v19, v14, {pWU}")
    a("s_waitcnt lgkmcnt(0)\ns_barrier")
    stamp(7)
    y_product()
    stamp(8)
    a("s_cmp_ge_u32 s2, 224\ns_cbranch_scc1 L_down_s")
    a(f"s_cmp_ge_u32 s2, 176\ns_cbranch_scc1 L_idle_s\ns_cmp_lt_u32 s2, 64\ns_cbranch_scc1 {'L_idle_s' if post2 else 'L_fin_h'}")
    a(f"s_lshl_b32 s4, {sW}, 13\ns_add_u32 s4, s4, {L_SF}")
    a(f"s_mul_i32 s7, {sXc}, 14\ns_add_u32 s7, s7, {sXr}\ns_and_b32 s7, s7, {3 if rot else 0}\ns_lshl_b32 s7, s7, 1")
    for i in range(8):
        a(f"s_xor_b32 s5, s7, {i}\ns_mul_i32 s6, s5, {16*3584}\ns_lshl_b32 s5, s5, 10\ns_add_u32 m0, s4, s5")
        a(f"v_add_co_u32 v18, vcc, s6, v16\nv_addc_co_u32 v19, vcc, 0, v17, vcc\nglobal_load_lds_dwordx4 v[18:19], off")
    a("s_waitcnt vmcnt(0)")
    lds_inc(C_F)
    if x2stage:
        m = sum(1 << (64 // xany * i) for i in range(xany))
        a(f"s_mov_b32 s6, {hex(m & 0xffffffff)}\ns_mov_b32 s7, {hex(m >> 32)}\ns_and_b32 s4, {sXr}, {8 // xany - 1}\ns_lshl_b32 s4, s4, 3\ns_lshl_b64 exec, s[6:7], s4")
        poll([("v23", 0)], 40, "v15", sleep=xsleep, any_=True)
        exec_all()
        poll([("v23", 0), ("v23", 1024)], 40, "v15")
    else:
        ppoll([("v23", 0), ("v23", 1024)], 40, 128, "v15", sleep=xsleep)
    stamp(9)
    if ln1:
        a("v_pk_mul_f32 v[50:51], v[40:41], v[40:41]\nv_pk_add_f32 v[48:49], v[40:41], v[42:43]\nv_pk_fma_f32 v[50:51], v[42:43], v[42:43], v[50:51]\nv_pk_add_f32 v[52:53], v[44:45], v[46:47]")
        a("v_pk_fma_f32 v[50:51], v[44:45], v[44:45], v[50:51]\nv_pk_add_f32 v[48:49], v[48:49], v[52:53]\nv_pk_fma_f32 v[50:51], v[46:47], v[46:47], v[50:51]")
        a("v_add_f32 v36, v48, v49\nv_add_f32 v37, v50, v51")
        wave_reduce("v_add_f32", ["v36", "v37"], ["v38", "v39"])
        a("v_mul_f32 v36, 0xbb000000, v36\nv_mul_f32 v37, 0x3b000000, v37\nv_fma_f32 v38, -v36, v36, v37\nv_mov_b32 v37, v36\nv_max_f32 v38, 0, v38\nv_add_f32 v38, 0x3727c5ac, v38\nv_rsq_f32 v38, v38")
        for i in range(0, 8, 2): a(f"v_pk_add_f32 v[{40+i}:{41+i}], v[{40+i}:{41+i}], v[36:37]")
        a("v_mov_b32 v39, v38")
        for i in range(0, 8, 2): a(f"v_pk_mul_f32 v[{40+i}:{41+i}], v[{40+i}:{41+i}], v[{112+i}:{113+i}]")
        for i in range(0, 8, 2): a(f"v_pk_fma_f32 v[{40+i}:{41+i}], v[{40+i}:{41+i}], v[38:39], v[{104+i}:{105+i}]")
    else:
        a("v_add_f32 v36, v40, v41\nv_add_f32 v38, v42, v43\nv_add_f32 v39, v44, v45\nv_add_f32 v48, v46, v47")
        a("v_add_f32 v36, v36, v38\nv_add_f32 v39, v39, v48\nv_add_f32 v36, v36, v39")
        wave_reduce("v_add_f32", ["v36"], ["v38"])
        a("v_mul_f32 v36, 0x3b000000, v36")
        for i in range(8): a(f"v_sub_f32 v{40+i}, v{40+i}, v36")
        a("v_mul_f32 v37, v40, v40\nv_mul_f32 v38, v41, v41")
        for i in range(2, 8): a(f"v_fmac_f32 v{37+(i&1)}, v{40+i}, v{40+i}")
        a("v_add_f32 v37, v37, v38")
        for i in range(8): a(f"v_mul_f32 v{40+i}, v{40+i}, v{112+i}")
        wave_reduce("v_add_f32", ["v37"], ["v38"])
        a("v_mov_b32 v38, 0x3727c5ac\nv_fmac_f32 v38, 0x3b000000, v37\nv_rsq_f32 v38, v38")
        for i in range(8): a(f"v_fma_f32 v{40+i}, v{40+i}, v38, v{104+i}")
    for i in range(4): a(f"v_cvt_pk_bf16_f32 v{28+i}, v{40+2*i}, v{41+2*i}")
    a(f"ds_write_b64 v24, v[28:29] offset:{L_H2}\nds_write_b64 v24, v[30:31] offset:{L_H2+512}")
    if aflag:
        for k in range(4): a(f"v_mov_b32 v{32+k}, {sTag[k]}")
        a(f"s_sub_u32 s4, s2, 64\ns_lshl_b32 s4, s4, 7\ns_add_u32 s4, s4, {WS_AF}\nv_lshl_add_u32 v12, v0, 4, s4\ns_mov_b64 exec, 0xff")
    a("s_waitcnt lgkmcnt(0)\ns_barrier")
    if aflag:
        a(f"s_cmp_lg_u32 {sW}, 0\ns_cbranch_scc1 L_noaf\nglobal_store_dwordx4 v12, v[32:35], {pWS} sc1\nL_noaf:")
    stamp(10)
    a("L_fin_h:")
    stamps_out(range(14))
    a("L_end:\ns_endpgm")
    body, nops = a.finalize()
    tail = f""".section .rodata,"a"
.p2align 6
.amdhsa_kernel {KN}
  .amdhsa_next_free_vgpr 256
  .amdhsa_next_free_sgpr 102
  .amdhsa_accum_offset 256
  .amdhsa_group_segment_fixed_size 0
  .amdhsa_kernarg_size 112
  .amdhsa_user_sgpr_count 2
  .amdhsa_user_sgpr_kernarg_segment_ptr 1
  .amdhsa_system_sgpr_workgroup_id_x 1
  .amdhsa_float_denorm_mode_32 3
.end_amdhsa_kernel
"""
    body = body.replace("    ; @launch", "; @launch", 1)
    return body + tail

if __name__ == "__main__":
    kw = eval("dict(" + (sys.argv[2] if len(sys.argv) > 2 else "") + ")")
    open(sys.argv[1], "w").write(gen(**kw))
```

```python
import sys
from asmlib import Asm

KN = "adaLN_cond__mha_block_cached__geglu_ffn__decode_kernel"

WS_EP   = 0x0000
WS_W    = 0x4000
WS_MODF = 0x8000
WS_ACT  = 0x10000
WS_AF   = 0x18000
WS_MODP = 0x20000
WS_MODN = 0x30000
WS_XM   = 0x50000
WS_X1   = 0x60000
WS_Y    = 0x80000
WS_QP   = 0x100000
WS_XS   = 0x200000
WS_WDF  = 0xC000
WS_WD2  = 0x600000
WS_ST   = 0x800000
L_CNT  = 0x0000
L_QB   = 0x0100
L_G    = 0x0200
L_N    = 0x0400
L_PM   = 0x0800
L_OP   = 0x2800
L_OB   = 0x3000
L_H2   = 0x3800
L_SA   = 0x5000
L_SB   = 0x9000
L_SC   = 0xD000
L_SF   = 0x15000
LDS_SIZE = 0x15000 + 64 * 1024
C_MOD, C_N, C_Q, C_KD, C_LIM, C_XT, C_REF = 0, 4, 8, 12, 16, 20, 24
C_PROG, C_ML = 32, 64
C_END, C_F, C_BG, C_FP = 48, 52, 56, 60

LOG2E = 0x3fb8aa3b
SCALE = 0x3db504f3

pX, pK, pV, pWQ, pWO, pBX, pWG, pWU, pWD, pC, pWM, pOUT, pDBG, pWS = [f"s[{16+2*i}:{17+2*i}]" for i in range(14)]
def lo(p): return "s" + p[2:p.index(":")]
def hi(p): return "s" + p[p.index(":")+1:-1]
SRDC, SRDN = "s[44:47]", "s[48:51]"
sTC, sTN, sOF, sLC = "s52", "s53", "s54", "s55"
sB, sH, sSide, sPair, sTO, sW = "s56", "s57", "s58", "s59", "s60", "s61"
sM1, sM2, sM3 = "s[62:63]", "s[64:65]", "s[66:67]"
sXc, sXr = "s68", "s69"
sTag = ["s98", "s99", "s100", "s101"]
sCh = "s15"
sT = "s14"

def vr(b, n=4): return f"v[{b}:{b+n-1}]"
def vl(b, n): return [f"v{b+i}" for i in range(n)]

def gen(D=6, Df=7, bits=(10,11,15,12,13,14,16,17,18,19), S=12, TH=3, KMAX=4, KSH=2, pairx=3, stamps=False, wpol="", xrep=8,
        TO=1 << 17, kvpol="nt", PR=1, PGAP=5, NRED=1, RGAP=8, BGD=2, xsleep=0, ysleep=0, asleep=0, x2stage=1, wdpol='sc1', xspol='sc1', nowo=0, noffn=0, fpol=None, klin=0, now7=0, nokwork=0, trace=0, latemf=0, nowdf=1, wox=1, dpat=0, remap=0, PRE=10, dshift=0, pref=0, EX=1, lateout=0, afull=1, a2stage=1, touch=0, post=7, wside=1, adelay=0, ln1=1, ax4=1, opol='', seqfill=0, pd1=0, pd2=0, ps=0, qpol='sc1', F1=26, F2=48, rnd=1, ybar=1, afirst=1, asame=0, aany=1, xany=1, aflag=0, fdel=0, peek=3, THS=3, KSS=3, MARG=2, tmap=1, satom=1, csleep=2, post2=0, mixbit=3, rot=1, tlbw=1, tomark=0):
    a = Asm()
    npoll = [0]
    def stamp(k):
        if stamps: a(f"s_memrealtime s[{70+2*k}:{71+2*k}]")
    def stamps_out(ks, late=True):
        if not stamps: return
        a("s_waitcnt lgkmcnt(0)")
        if lateout and late: a("s_sleep 127\ns_sleep 127\ns_sleep 127")
        a("s_mov_b64 exec, 1")
        a("s_lshl_b32 s4, s2, 3\ns_add_u32 s4, s4, s3\ns_lshl_b32 s4, s4, 6")
        a(f"s_add_u32 s4, s4, {WS_ST}\nv_mov_b32 v1, s4")
        for k in ks:
            a(f"v_mov_b32 v2, s{70+2*k}\nglobal_store_dword v1, v2, {pWS} offset:{4*k}")
    def tr():
        if trace:
            a("s_memrealtime s[96:97]\ns_waitcnt lgkmcnt(0)\ns_mov_b32 m0, s27\nv_writelane_b32 v63, s96, m0\ns_add_u32 s27, s27, 1")
    def exec_set(lo_, hi_):
        a(f"s_mov_b32 exec_lo, {hex(lo_)}\ns_mov_b32 exec_hi, {hex(hi_)}")
    def exec_all(): a("s_mov_b64 exec, -1")
    def tree(op2, op3, t, r):
        r = list(r)
        if len(r) % 2 == 0:
            a(f"{op2} {t}, {r[0]}, {r[1]}"); r = r[2:]
        else:
            a(f"{op3} {t}, {r[0]}, {r[1]}, {r[2]}"); r = r[3:]
        while r:
            a(f"{op3} {t}, {t}, {r[0]}, {r[1]}"); r = r[2:]
    def check(n, src, dst, tmp, tagged, younger):
        if tagged:
            for i in range(n):
                a(f"s_waitcnt vmcnt({younger+n-1-i})")
                for k in range(4): a(f"v_xor_b32 v{dst+4*i+k}, {sTag[k]}, v{src+4*i+k}")
            tree("v_or_b32", "v_or3_b32", tmp, vl(dst, 4 * n))
            a(f"v_and_b32 {tmp}, 0xff, {tmp}\nv_cmp_ne_u32 vcc, 0, {tmp}")
        else:
            a(f"s_waitcnt vmcnt({younger})")
            tree("v_max_u32", "v_max3_u32", tmp, vl(src, 4 * n))
            a(f"v_cmp_eq_u32 vcc, -1, {tmp}")
            if dst != src:
                for i in range(4 * n): a(f"v_mov_b32 v{dst+i}, v{src+i}")
        a("s_cmp_eq_u64 vcc, 0")
    def poll(addrs, dst, tmp, sleep=0, tagged=True, first_plain=False, any_=False):
        L, Dn = a.label("Lpoll"), a.label("Lpdone")
        n = len(addrs)
        a(f"s_mov_b32 {sTO}, {TO}")
        if first_plain:
            Lc = a.label("Lpchk")
            for i, (va, off) in enumerate(addrs): a(f"global_load_dwordx4 {vr(dst+4*i)}, {va}, {pWS} offset:{off}")
            a(f"s_branch {Lc}")
        a(f"{L}:")
        for i, (va, off) in enumerate(addrs): a(f"global_load_dwordx4 {vr(dst+4*i)}, {va}, {pWS} offset:{off} sc1")
        if first_plain: a(f"{Lc}:")
        check(n, dst, dst, tmp, tagged, 0)
        if any_: a("s_cmp_lg_u64 vcc, exec")
        a(f"s_cbranch_scc1 {Dn}\ns_sub_u32 {sTO}, {sTO}, 1\ns_cbranch_scc1 {Dn}")
        if sleep: a(f"s_sleep {sleep}")
        a(f"s_branch {L}\n{Dn}:")
        if tomark:
            npoll[0] += 1
            Lm = a.label("Lmk")
            a(f"s_cmp_lg_u32 {sTO}, -1\ns_cbranch_scc1 {Lm}\ns_mov_b32 s4, 1\ns_atomic_add s4, {pDBG}, {4*npoll[0]} glc\ns_waitcnt lgkmcnt(0)\n{Lm}:")
    def ppoll(addrs, dst, buf, tmp, tagged=True, sleep=0):
        if PR == 1: return poll(addrs, dst, tmp, tagged=tagged, sleep=sleep)
        L, Dn = a.label("Lpp"), a.label("Lppd")
        n = len(addrs)
        def iss(r):
            for i, (va, off) in enumerate(addrs): a(f"global_load_dwordx4 {vr(buf+4*(n*r+i))}, {va}, {pWS} offset:{off} sc1")
        a(f"s_mov_b32 {sTO}, {TO}")
        for r in range(PR - 1):
            iss(r); a(f"s_sleep {PGAP}")
        a(f"{L}:")
        for r in range(PR):
            iss((r + PR - 1) % PR)
            check(n, buf + 4 * n * r, dst, tmp, tagged, n * (PR - 1))
            a(f"s_cbranch_scc1 {Dn}")
        a(f"s_sub_u32 {sTO}, {sTO}, 1\ns_cbranch_scc0 {L}\n{Dn}:")
    def tag(base, n4, vff, round_=False):
        if round_:
            for i in range(4 * n4): a(f"v_add_u32 v{base+i}, 0x80, v{base+i}")
        for i in range(n4):
            for k in range(4): a(f"v_bfi_b32 v{base+4*i+k}, {vff}, {sTag[k]}, v{base+4*i+k}")
    def lds_wait(off, val, va="v12", vt="v13", sleep=1):
        L, Dn = a.label("Llw"), a.label("Llwd")
        a(f"v_mov_b32 {va}, {L_CNT}")
        a(f"{L}:\nds_read_b32 {vt}, {va} offset:{off}\ns_waitcnt lgkmcnt(0)\nv_readfirstlane_b32 s4, {vt}")
        a(f"s_cmp_ge_u32 s4, {val}\ns_cbranch_scc1 {Dn}\ns_sleep {sleep}\ns_branch {L}\n{Dn}:")
    def lds_inc(off, va="v12", vt="v13"):
        a(f"s_mov_b64 exec, 1\nv_mov_b32 {va}, {L_CNT}\nv_mov_b32 {vt}, 1\ns_waitcnt lgkmcnt(0)\nds_add_u32 {va}, {vt} offset:{off}")
        exec_all()
    def swap_add(pl, op, regs, tmps):
        for r, t in zip(regs, tmps): a(f"v_mov_b32 {t}, {r}")
        for r, t in zip(regs, tmps): a(f"{pl} {r}, {t}")
        for r, t in zip(regs, tmps): a(f"{op} {r}, {r}, {t}")
    def ror(op, regs, sh):
        for r in regs: a(f"{op}_dpp {r}, {r}, {r} row_ror:{sh} row_mask:0xf bank_mask:0xf")
    def wave_reduce(op, regs, tmps):
        for sh in (8, 4, 2, 1): ror(op, regs, sh)
        for pl in ("v_permlane16_swap_b32", "v_permlane32_swap_b32"): swap_add(pl, op, regs, tmps)
    def rnd2(x0, x1, t):
        a(f"v_cvt_pk_bf16_f32 {t}, {x0}, {x1}\nv_lshlrev_b32 {x0}, 16, {t}\nv_and_b32 {x1}, 0xffff0000, {t}")
    def rndn(base, n, tb):
        for i in range(n // 2): a(f"v_cvt_pk_bf16_f32 v{tb+i}, v{base+2*i}, v{base+2*i+1}")
        unpack(base, tb, n // 2)
    def unpack(dst, src, n):
        for i in range(n):
            a(f"v_lshlrev_b32 v{dst+2*i}, 16, v{src+i}\nv_and_b32 v{dst+2*i+1}, 0xffff0000, v{src+i}")
    def pkadd(d, x, y, n):
        for i in range(0, n, 2): a(f"v_pk_add_f32 v[{d+i}:{d+i+1}], v[{x+i}:{x+i+1}], v[{y+i}:{y+i+1}]")
    def make_tags():
        a(f"s_add_u32 {sT}, {sT}, 0x9e3779b1")
        for k in range(4): a(f"s_bfe_u32 {sTag[k]}, {sT}, {hex(0x80000 + 8*k)}")

    def touch_addr(dst, sidx):
        a(f"s_lshr_b32 s4, {sidx}, 4\ns_lshl_b32 s4, s4, 17\ns_and_b32 s5, {sidx}, 15\ns_lshl_b32 s5, s5, 11\ns_add_u32 s4, s4, s5")
        a(f"v_and_b32 {dst}, 15, v0\nv_lshl_add_u32 {dst}, {dst}, 7, s4\nv_lshrrev_b32 v13, 4, v0\nv_lshl_add_u32 {dst}, v13, 15, {dst}")
    def post_touch():
        mats = [p for k, p in enumerate((pWD, pWG, pWU)) if (post >> k) & 1]
        L = a.label("Lpt")
        if post2:
            a(f"s_cmp_lt_u32 s3, 2\ns_cbranch_scc1 {L}\ns_sub_u32 s6, s2, 112\ns_cmp_lt_u32 s2, 64\ns_cselect_b32 s6, s2, s6\ns_lshl_b32 s6, s6, 1\ns_and_b32 s7, s3, 1\ns_add_u32 s6, s6, s7")
            touch_addr("v14", "s6")
            for i, p in enumerate((pWD, pWG, pWU)):
                Lk = a.label("Lpk")
                a(f"s_lshr_b32 s7, s3, 1\ns_cmp_lg_u32 s7, {i+1}\ns_cbranch_scc1 {Lk}\nglobal_load_dword v16, v14, {p}\n{Lk}:")
            a(f"s_waitcnt vmcnt(0)\n{L}:")
            return
        a(f"s_sub_u32 s6, s2, 176\ns_mul_i32 s7, s3, 48\ns_add_u32 s6, s6, s7\ns_cmp_ge_u32 s6, 224\ns_cbranch_scc1 {L}")
        touch_addr("v14", "s6")
        for i, p in enumerate(mats): a(f"global_load_dword v{16+i}, v14, {p}")
        a(f"s_waitcnt vmcnt(0)\n{L}:")
    def wo_frags():
        a(f"v_lshrrev_b32 v56, 4, v0\nv_bfe_u32 v57, v0, 2, 2\nv_lshlrev_b32 v58, 14, v56\nv_lshl_add_u32 v58, v57, 11, v58\nv_and_b32 v59, 3, v0\nv_lshl_add_u32 v58, v59, 3, v58")
        a(f"v_bfe_u32 v57, v0, 2, 3\ns_and_b32 s4, {sW}, 1\ns_lshl_b32 s4, s4, 2\nv_xor_b32 v57, s4, v57\ns_lshr_b32 s4, {sW}, 1\ns_lshl_b32 s4, s4, 10\ns_add_u32 s4, s4, {L_SF}\nv_add_u32 v58, s4, v58")
        for t in range(4):
            a(f"v_xor_b32 v60, {t}, v57\nv_lshl_add_u32 v60, v60, 5, v58")
            for kb in range(4):
                r = 128 + 4 * (4 * t + kb)
                a(f"ds_read_b64_tr_b16 v[{r}:{r+1}], v60 offset:{kb*256}\nds_read_b64_tr_b16 v[{r+2}:{r+3}], v60 offset:{kb*256+8192}")
            a("s_waitcnt lgkmcnt(0)")
        a(f"v_lshlrev_b32 v226, 8, v59\nv_lshl_add_u32 v226, v56, 4, v226")
        a(f"s_xor_b32 s4, {sH}, {sSide if wside else 0}\ns_and_b32 s4, s4, 1\ns_lshl_b32 s4, s4, 2\ns_xor_b32 s4, s4, s3\ns_xor_b32 s4, s4, 4\ns_lshl_b32 s4, s4, 1\ns_lshl_b32 s5, {sB}, 4\ns_add_u32 s4, s4, s5\ns_lshl_b32 s4, s4, 13\ns_and_b32 s5, s2, 63\ns_lshl_b32 s5, s5, 7")
        a(f"s_add_u32 s4, s4, s5\ns_add_u32 s4, s4, {WS_Y}\nv_lshrrev_b32 v227, 5, v0\nv_lshl_add_u32 v227, v227, 13, s4\nv_and_b32 v228, 31, v0\nv_lshl_add_u32 v227, v228, 2, v227")
        a(f"v_lshlrev_b32 v228, 3, v59\nv_lshrrev_b32 v228, v228, {sT}\nv_mov_b32 v229, 0xff")
    def y_product():
        for kb in range(4): a(f"ds_read_b128 {vr(192+4*kb)}, v226 offset:{L_OP+kb*64}")
        for kb in range(4):
            a(f"s_waitcnt lgkmcnt({3-kb})")
            for t in range(4):
                d = vr(208 + 4 * t)
                a(f"v_mfma_f32_16x16x32_bf16 {d}, {vr(192+4*kb)}, {vr(128+4*(4*t+kb))}, {'0' if kb == 0 else d}")
        for t in range(4): pkadd(208 + 4 * t, 208 + 4 * t, 210 + 4 * t, 2)
        a("v_add_f32 v224, v208, v209")
        for t in (1, 2, 3): a(f"v_add_f32_dpp v224, v{208+4*t}, v{209+4*t} quad_perm:[0,1,2,3] row_mask:{hex(1<<t)} bank_mask:0xf")
        a(f"v_bfi_b32 v224, v229, v228, v224\nglobal_store_dword v227, v224, {pWS} sc1")
        if ybar: a("s_barrier")

    a(f"; @launch grid=(256,1,1) block=(512,1,1) lds={LDS_SIZE}")
    a('.amdgcn_target "amdgcn-amd-amdhsa--gfx950"')
    a(f".text\n.globl {KN}\n.p2align 8\n.type {KN},@function\n{KN}:")
    a("s_cmp_ge_u32 s2, 256\ns_cbranch_scc1 L_end")
    a("s_load_dwordx16 s[16:31], s[0:1], 0\ns_load_dwordx8 s[32:39], s[0:1], 64\ns_load_dwordx4 s[40:43], s[0:1], 96")
    a("v_lshrrev_b32 v1, 6, v0\nv_and_b32 v0, 63, v0\nv_readfirstlane_b32 s3, v1")
    a(f"v_lshlrev_b32 v12, 2, v0\nv_mov_b32 v13, 0\nds_write_b32 v12, v13 offset:{L_CNT}")
    if pairx == 35:
        a(f"s_bfe_u32 s4, s2, 0x10001\ns_bfe_u32 s5, s2, 0x10002\ns_bitcmp1_b32 s2, {mixbit}\ns_cselect_b32 {sSide}, s5, s4\ns_cselect_b32 s5, s4, s5")
        a(f"s_xor_b32 s4, {sSide}, s2\ns_and_b32 s4, s4, 1\ns_lshr_b32 {sPair}, s2, 3\ns_lshl_b32 {sPair}, {sPair}, 1\ns_or_b32 {sPair}, {sPair}, s5\ns_lshl_b32 {sPair}, {sPair}, 1\ns_or_b32 {sPair}, {sPair}, s4")
    elif pairx == 3:
        a(f"s_lshr_b32 s4, s2, 1\ns_and_b32 {sSide}, s4, 1\ns_xor_b32 s4, s4, s2\ns_and_b32 s4, s4, 1\ns_lshr_b32 {sPair}, s2, 2\ns_lshl_b32 {sPair}, {sPair}, 1\ns_or_b32 {sPair}, {sPair}, s4")
    else:
        a(f"s_and_b32 {sSide}, s2, 1\ns_lshr_b32 {sPair}, s2, 1")
    a(f"s_lshr_b32 {sB}, s2, 6\ns_and_b32 {sH}, {sPair}, 31\ns_lshl_b32 {sCh}, {sPair}, 1\ns_or_b32 {sCh}, {sCh}, {sSide}")
    if remap:
        a(f"s_xor_b32 s4, {sSide}, 1\ns_lshl_b32 s4, s4, 5\ns_cmp_ge_u32 s2, 192\ns_cselect_b32 s4, s4, 0\ns_xor_b32 s2, s2, s4")
    a(f"s_and_b32 {sXc}, s2, 7\ns_lshr_b32 {sXr}, s2, 3\ns_and_b32 {sW}, s3, 3")
    a("s_cmp_ge_u32 s3, 4\ns_cbranch_scc1 L_helper")

    vK, vV, vNxt, vSp, vM, vL, vS, vP, vNM = "v1", "v2", "v4", "v5", "v6", "v7", "v8", "v9", "v10"
    T0 = 12; BQ = 20; DD = 36
    RING = 64; X0 = 128; X1 = 192
    a(f"v_and_b32 v12, 15, v0\nv_lshrrev_b32 v13, 4, v0")
    a(f"v_lshlrev_b32 {vK}, 6, v12\nv_lshl_add_u32 {vK}, v13, 4, {vK}")
    a(f"v_lshlrev_b32 {vV}, 4, v0")
    if klin: a(f"v_mov_b32 {vK}, {vV}")
    a(f"s_and_b32 s4, s3, 1\ns_lshl_b32 s4, s4, {bits[0]}\ns_lshr_b32 s5, s3, 1\ns_lshl_b32 s5, s5, {bits[1]}\ns_add_u32 s4, s4, s5")
    a(f"v_add_u32 {vK}, s4, {vK}\nv_add_u32 {vV}, s4, {vV}")
    a(f"s_lshl_b32 s5, {sCh}, 20")
    a("s_waitcnt lgkmcnt(0)")
    stamp(0)
    a(f"s_add_u32 s44, {lo(pK)}, s5\ns_addc_u32 s45, {hi(pK)}, 0\ns_mov_b32 s46, 0x100000\ns_mov_b32 s47, 0x20000")
    assert 5 <= D <= 8
    ubits = list(bits[4:10]) + [20]
    def uoff(U): return sum(((U >> k) & 1) << ubits[k] for k in range(7))
    def uoff_s(dst, src):
        k = 0; first = True
        while k < 7:
            e = k
            while e + 1 < 7 and ubits[e + 1] == ubits[e] + 1: e += 1
            t = dst if first else "s4"
            a(f"s_bfe_u32 {t}, {src}, {hex(((e - k + 1) << 16) + k)}\ns_lshl_b32 {t}, {t}, {ubits[k]}")
            if not first: a(f"s_or_b32 {dst}, {dst}, s4")
            first = False; k = e + 1
    def issue(p, slot, va, srd, st):
        o_ = sum(((p >> k) & 1) << bits[2 + k] for k in range(4))
        so, imm = o_ & ~4095, o_ & 4095
        if isinstance(st, int): a(f"s_mov_b32 {sOF}, {st+so}"); o = sOF
        elif so: a(f"s_add_u32 {sOF}, {st}, {so}"); o = sOF
        else: o = st
        if slot is None:
            a(f"s_add_u32 m0, s10, {p*1024 - imm}")
            a(f"buffer_load_dwordx4 {va}, {srd}, {o} offen offset:{imm} {kvpol} lds")
        else:
            a(f"buffer_load_dwordx4 {vr(slot)}, {va}, {srd}, {o} offen offset:{imm} {kvpol}")
    NB = 4
    order = [(0, X0), (1, None), (2, X1), (3, RING)]
    poff = lambda p: sum(((p >> k) & 1) << bits[2 + k] for k in range(4))
    fill = [(t, p, None if base is None else base + 4 * p) for t, base in order for p in (sorted(range(16), key=poff) if t < seqfill else range(16))]
    for idx, (t, p, slot) in enumerate(fill):
        if idx == Df:
            a("s_barrier")
            a(f"s_load_dword {sT}, {pWS}, {WS_EP}")
            a(f"s_mov_b32 s48, s44\ns_mov_b32 s49, s45\ns_mov_b32 s50, 0x100000\ns_mov_b32 s51, 0x20000")
            a(f"s_mov_b32 s62, 0x22222222\ns_mov_b32 s63, 0x22222222\ns_mov_b32 s64, 0x44444444\ns_mov_b32 s65, 0x44444444")
            a(f"s_mov_b32 s66, 0x88888888\ns_mov_b32 s67, 0x88888888")
            a(f"s_lshl_b32 s4, s3, 13\ns_lshl_b32 s5, {sSide}, 12\ns_add_u32 s4, s4, s5\ns_add_u32 s4, s4, {L_SC}")
            a(f"v_and_b32 v12, 3, v0\nv_lshl_add_u32 {vSp}, v12, 6, s4\nv_and_b32 v12, 60, v0\nv_add_u32 {vSp}, v12, {vSp}")
            a(f"v_mov_b32 {vM}, 0xff7fffff\nv_mov_b32 {vL}, 0")
            a(f"v_mov_b32 {vNxt}, {vK}")
            a(f"s_lshl_b32 s10, s3, 14\ns_add_u32 s10, s10, {L_SF}")
        if idx >= Df: a(f"s_waitcnt vmcnt({Df-1})")
        if idx == Df: stamp(8)
        if idx == 16 + Df - 1: stamp(9)
        if idx == 32 + Df - 1: stamp(10)
        issue(p, slot, vK, SRDC, uoff(4 * t))
        if idx in (F1, F2):
            a(f"v_mov_b32 v12, {L_CNT}\nv_mov_b32 v13, {1 if idx == F1 else 2}\nds_max_u32 v12, v13 offset:{C_FP}")
    stamp(1)
    lds_wait(C_Q, 1)
    stamp(2)
    a(f"v_and_b32 v12, 3, v0\nv_lshlrev_b32 v12, 6, v12\nv_lshrrev_b32 v13, 4, v0\nv_lshl_add_u32 v12, v13, 4, v12\nds_read_b128 v[16:19], v12 offset:{L_QB}")
    a("v_bfe_u32 v13, v0, 2, 2")
    make_tags()
    a("s_waitcnt lgkmcnt(0)")
    for t in range(4):
        a(f"v_cmp_eq_u32 vcc, {t}, v13")
        for r in range(4): a(f"v_cndmask_b32 v{BQ+4*t+r}, 0, v{16+r}, vcc")
    def k_step(n, slot):
        u, t = n >> 2, n & 3
        d = vr(DD + 4 * u)
        a(f"v_mfma_f32_16x16x32_bf16 {d}, {vr(slot)}, {vr(BQ+4*t)}, {'0' if t == 0 else d}")
    def k_group(u):
        T = T0 + u
        o = [(u + i) & 3 for i in (1, 2, 3)]
        a(f"v_add_f32_dpp v{T}, v{DD+4*u+o[0]}, v{DD+4*u+u} quad_perm:[{o[0]},{o[0]},{o[0]},{o[0]}] row_mask:0xf bank_mask:0xf")
        for x in o[1:]:
            a(f"v_add_f32_dpp v{T}, v{DD+4*u+x}, v{T} quad_perm:[{x},{x},{x},{x}] row_mask:0xf bank_mask:0xf")
    def k_finish(off):
        a(f"v_cndmask_b32 v12, v12, v13, {sM1}\nv_cndmask_b32 v12, v12, v14, {sM2}\nv_cndmask_b32 v12, v12, v15, {sM3}")
        a(f"v_cvt_pk_bf16_f32 v12, v12, v12\nv_and_b32 v12, 0xffff0000, v12\nv_mul_f32 v12, {hex(SCALE)}, v12")
        a(f"v_cvt_pk_bf16_f32 v12, v12, v12\nv_and_b32 v12, 0xffff0000, v12")
        a(f"ds_write_b32 {vSp}, v12 offset:{off}")
        a(f"v_max_f32 v13, {vM}, v12\nv_sub_f32 v14, {vM}, v13\nv_sub_f32 v15, v12, v13")
        a(f"v_mul_f32 v14, {hex(LOG2E)}, v14\nv_mul_f32 v15, {hex(LOG2E)}, v15\nv_exp_f32 v14, v14\nv_exp_f32 v15, v15")
        a(f"v_mov_b32 {vM}, v13\nv_fma_f32 {vL}, {vL}, v14, v15")
    def k_tile(base, off, pre=None, post=None):
        for n in range(16):
            if pre: pre(n)
            k_step(n, base + 4 * n)
            if post: post(n)
            if n & 3 == 0 and n and not nokwork: k_group((n >> 2) - 1)
        if not nokwork: k_group(3)
        k_finish(off)
    k_tile(RING, (NB - 1) * 256, pre=lambda n: a("s_waitcnt vmcnt(15)"), post=lambda n: issue(n, RING + 4 * n, vK, SRDC, uoff(4 * NB)))
    k_tile(X0, 0)
    a(f"v_lshl_add_u32 v16, v0, 4, s10")
    for p in range(16):
        a(f"ds_read_b128 {vr(X0+4*p)}, v16 offset:{p*1024}")
        if p == 7: a("s_waitcnt lgkmcnt(0)")
    k_tile(X1, 2 * 256)
    lds_inc(C_XT, "v16", "v17")
    k_tile(X0, 256)
    def preB(n):
        if n + D >= 16:
            issue(n + D - 16, RING + 4 * (n + D - 16), vK, SRDC, uoff(4 * NB + 4)); a(f"s_waitcnt vmcnt({D})")
        else: a(f"s_waitcnt vmcnt({15-n})")
    k_tile(RING, NB * 256, pre=preB)
    stamp(3)
    if trace: a("s_mov_b32 s27, 0\nv_mov_b32 v63, 0")
    tr()
    sN0, sN1, sStep, sN, sEnd, sU0 = sTN, "s11", "s12", sLC, "s13", "s8"
    a(f"s_mov_b32 {sN0}, {uoff(4*NB+4)}\ns_mov_b32 {sN}, {4*NB+4}\nv_add_u32 {vSp}, {(NB+1)*256}, {vSp}")
    a(f"s_lshl_b32 s5, {sPair}, 21\ns_add_u32 s6, {lo(pV)}, s5\ns_addc_u32 s7, {hi(pV)}, 0")
    a(f"s_mul_i32 {sU0}, {sSide}, 127\ns_lshl_b32 s4, {sSide}, 1\ns_sub_u32 {sStep}, 1, s4")
    def pre_steady(n):
        p = n + D
        if p < 16: issue(p, RING + 4 * p, vK, SRDC, sTC)
        else: issue((p - 16) & 3, RING + 4 * (p - 16), vNxt, SRDN, sN0 if p < 20 else sN1)
    a("L_kloop:")
    a(f"s_mov_b32 {sTC}, {sN0}\ns_add_u32 {sN}, {sN}, 4")
    uoff_s(sN0, sN)
    a(f"s_add_u32 {sN1}, {sN0}, {uoff(1)}")
    a(f"s_cmp_lg_u32 {sN}, 64\ns_cbranch_scc1 L_knosw")
    a(f"s_mov_b32 s48, s6\ns_mov_b32 s49, s7\ns_mov_b32 s50, 0x200000\nv_mov_b32 {vNxt}, {vV}")
    uoff_s(sN0, sU0)
    a(f"s_add_u32 s5, {sU0}, {sStep}")
    uoff_s(sN1, "s5")
    a("L_knosw:")
    k_tile(RING, 0, pre=lambda n: (pre_steady(n), a(f"s_waitcnt vmcnt({D})")))
    a(f"v_add_u32 {vSp}, 256, {vSp}")
    tr()
    a(f"s_cmp_lg_u32 {sN}, 64\ns_cbranch_scc1 L_kloop")
    stamp(4)
    sUa, sUb, sNx = sN1, sN0, sTC
    vCn, vLim, vPg, vSt = "v3", "v4", "v11", "v1"
    a(f"s_add_u32 {sNx}, {sU0}, {sStep}\ns_add_u32 {sNx}, {sNx}, {sStep}")
    a(f"s_lshl_b32 s4, s3, 13\ns_lshl_b32 s5, {sU0}, 6\ns_add_u32 s4, s4, s5\ns_add_u32 s4, s4, {L_SC}")
    a(f"v_and_b32 v12, 3, v0\nv_lshl_add_u32 {vSp}, v12, 2, s4\nv_and_b32 v12, 48, v0\nv_add_u32 {vSp}, v12, {vSp}")
    a(f"ds_read_b32 {vS}, {vSp}")
    a(f"s_lshl_b32 s4, {sStep}, 6\nv_mov_b32 {vSt}, s4\nv_mov_b32 {vCn}, {L_CNT}\nv_mov_b32 {vLim}, 0")
    a(f"v_mov_b32 v12, {vM}")
    wave_reduce("v_max_f32", ["v12"], ["v13"])
    a(f"v_sub_f32 v14, {vM}, v12\nv_mul_f32 v14, {hex(LOG2E)}, v14\nv_exp_f32 v14, v14\nv_mul_f32 v13, {vL}, v14")
    wave_reduce("v_add_f32", ["v13"], ["v14"])
    a(f"v_mov_b32 {vM}, v12\nv_mov_b32 {vNM}, 0")
    a(f"s_lshl_b32 s4, s3, 3\nv_mov_b32 v14, s4\ns_lshl_b32 s4, s3, 2\nv_mov_b32 {vPg}, s4\nv_mov_b32 v15, 1")
    a(f"s_mov_b64 exec, 1\nds_write_b64 v14, v[12:13] offset:{L_CNT+C_ML}\nds_add_u32 {vCn}, v15 offset:{C_KD}")
    exec_all()
    ACC, AS, MK = DD, DD + 4, DD + 12
    a("v_and_b32 v12, 1, v0\nv_lshlrev_b32 v12, 4, v12\nv_mov_b32 v13, 0xffff\nv_lshlrev_b32 v12, v12, v13\nv_bfe_u32 v13, v0, 1, 3")
    for r in range(4):
        a(f"v_cmp_eq_u32 vcc, {r}, v13\nv_cndmask_b32 v{MK+r}, 0, v12, vcc\nv_mov_b32 v{ACC+r}, 0")
    a(f"s_mov_b32 s9, {hex(LOG2E)}\ns_mov_b32 {sN}, 0\ns_mov_b32 {sEnd}, 0xffff")
    a("v_and_b32 v16, 15, v0\nv_lshlrev_b32 v16, 4, v16\nv_bfe_u32 v13, v0, 4, 1\nv_lshl_add_u32 v16, v13, 3, v16\ns_lshl_b32 s4, s3, 8\nv_add_u32 v16, s4, v16")
    a(f"v_mov_b32 v227, {WS_Y}")
    a("L_vloop:")
    a(f"s_cmp_lg_u32 {sN}, {4*S}\ns_cbranch_scc1 L_vnosw")
    a(f"ds_read_b64 v[12:13], {vCn} offset:{C_REF}\ns_waitcnt lgkmcnt(0)")
    a(f"v_sub_f32 v14, {vM}, v12\nv_mov_b32 {vM}, v12\nv_mov_b32 {vNM}, v13\nv_fma_f32 v14, v14, s9, v13\nv_exp_f32 v14, v14")
    for r in range(4): a(f"v_mul_f32 v{ACC+r}, v{ACC+r}, v14")
    wo_frags()
    a(f"s_cmp_eq_u32 {sN}, {sEnd}\ns_cbranch_scc1 L_vdone")
    a("L_vnosw:")
    for c in range(4):
        Lchk, Lok, Lgo = a.label("Lchk"), a.label("Lok"), a.label("Lgo")
        a("s_waitcnt lgkmcnt(0)")
        a(f"v_sub_f32 {vP}, {vS}, {vM}\nv_fma_f32 {vP}, {vP}, s9, {vNM}\nv_add_u32 {vSp}, {vSt}, {vSp}\nv_exp_f32 {vP}, {vP}\nv_mov_b32 v12, {sN}")
        a(f"ds_write_b32 {vPg}, v12 offset:{L_CNT+C_PROG}")
        a(f"{Lchk}:")
        a(f"v_readfirstlane_b32 s4, {vLim}")
        a(f"s_and_b32 s5, s4, 0xffff\ns_add_u32 s5, s5, {4*S-2}\ns_cmp_lt_u32 {sN}, s5\ns_cbranch_scc1 {Lok}")
        a(f"s_mov_b32 {sUb}, 0x40000000\ns_add_u32 {sEnd}, s5, 2\ns_bitcmp1_b32 s4, 16\ns_cbranch_scc1 {Lgo}")
        a(f"s_mov_b32 {sEnd}, 0xffff\nds_read_b32 {vLim}, {vCn} offset:{C_LIM}\ns_waitcnt lgkmcnt(0)\ns_branch {Lchk}")
        a(f"{Lok}:")
        uoff_s(sUb, sNx)
        a(f"s_add_u32 {sNx}, {sNx}, {sStep}")
        a(f"{Lgo}:")
        a(f"v_cvt_pk_bf16_f32 {vP}, {vP}, {vP}")
        a(f"ds_read_b32 {vS}, {vSp}\nds_read_b32 {vLim}, {vCn} offset:{C_LIM}")
        for t in range(4):
            n = 4 * c + t
            idx = t + D
            issue(idx & 3, RING + 4 * ((n + D) & 15), vV, SRDN, sUa if idx < 8 else sUb)
            A = AS + 4 * (n & 1)
            for r in range(4):
                a(f"v_and_b32_dpp v{A+r}, {vP}, v{MK+r} row_newbcast:{t} row_mask:0xf bank_mask:0xf")
            a(f"s_waitcnt vmcnt({D})")
            a(f"v_mfma_f32_16x16x32_bf16 {vr(ACC)}, {vr(A)}, {vr(RING+4*n)}, {vr(ACC)}")
        a(f"s_mov_b32 {sUa}, {sUb}\ns_add_u32 {sN}, {sN}, 1")
        if c < 3: a(f"s_cmp_eq_u32 {sN}, {sEnd}\ns_cbranch_scc1 L_vdone")
    tr()
    a(f"s_cmp_eq_u32 {sN}, {4*S}\ns_cbranch_scc1 L_vloop")
    a(f"s_cmp_lg_u32 {sN}, {sEnd}\ns_cbranch_scc1 L_vloop")
    a("L_vdone:")
    exec_set(0xffffffff, 0)
    a(f"v_cvt_pk_bf16_f32 v12, v{ACC}, v{ACC+1}\nv_cvt_pk_bf16_f32 v13, v{ACC+2}, v{ACC+3}\nds_write_b64 v16, v[12:13] offset:{L_OP}")
    exec_all()
    stamp(5)
    if stamps: a(f"s_mov_b32 s92, {sN}")
    a("s_waitcnt lgkmcnt(0)\ns_barrier")
    y_product()
    a("s_waitcnt vmcnt(1)")
    if trace:
        a(f"s_lshl_b32 s4, s2, 2\ns_add_u32 s4, s4, s3\ns_lshl_b32 s4, s4, 8\ns_add_u32 s4, s4, {WS_ST+0x100000}\nv_lshl_add_u32 v12, v0, 2, s4\nglobal_store_dword v12, v63, {pWS}")
    a("s_cmp_ge_u32 s2, 224\ns_cbranch_scc1 L_down_s")
    a("s_cmp_ge_u32 s2, 176\ns_cbranch_scc1 L_idle_s")
    a("s_cmp_ge_u32 s2, 64\ns_cbranch_scc1 L_ffn")
    a(f"s_cmp_ge_u32 s3, {NRED}\ns_cbranch_scc1 {'L_idle_s' if post2 else 'L_fin_s'}")
    a(f"v_and_b32 v12, 7, v0\nv_lshlrev_b32 v12, 4, v12\nds_read_b128 v[16:19], v12 offset:{L_G}\nds_read_b128 v[24:27], v12 offset:{L_G+128}")
    a(f"s_lshl_b32 s4, s2, 7\ns_add_u32 s4, s4, {WS_X1}\nv_lshrrev_b32 v14, 3, v0\nv_lshl_add_u32 v13, v14, 13, s4\nv_add_u32 v13, v12, v13")
    a(f"s_lshl_b32 s4, s2, 13\ns_add_u32 s4, s4, {WS_Y + 4096}\nv_lshl_add_u32 v14, v0, 4, s4\nv_mov_b32 v20, 0xff")
    for w in range(1, NRED):
        Ls = a.label("Lrs")
        a(f"s_cmp_lt_u32 s3, {w}\ns_cbranch_scc1 {Ls}\ns_sleep {RGAP}\n{Ls}:")
    poll([("v14", i * 1024 - 4096) for i in range(8)], 64, "v15", sleep=ysleep)
    stamp(6)
    for st in (16, 8, 4): pkadd(64, 64, 64 + st, st)
    ror("v_add_f32", vl(64, 4), 8)
    for pl in ("v_permlane16_swap_b32", "v_permlane32_swap_b32"): swap_add(pl, "v_add_f32", vl(64, 4), vl(68, 4))
    a("s_waitcnt lgkmcnt(0)")
    for i in range(4): a(f"v_fma_f32 v{64+i}, v{16+i}, v{64+i}, v{24+i}")
    rndn(64, 4, 68)
    for k in range(4): a(f"v_or_b32 v{64+k}, {sTag[k]}, v{64+k}")
    if xrep < 8:
        m = (1 << (8 * xrep)) - 1
        exec_set(m & 0xffffffff, m >> 32)
    a(f"global_store_dwordx4 v13, v[64:67], {pWS} sc1")
    stamp(7)
    a("L_fin_s:")
    stamps_out(range(12), late=False)
    a("s_endpgm")

    a("L_idle_s:")
    if post: post_touch()
    a("s_cmp_lt_u32 s3, 4\ns_cbranch_scc1 L_fin_s\ns_branch L_fin_h")
    a("L_ffn:")
    a("s_cmp_lt_u32 s3, 2\ns_cbranch_scc1 L_fin_s")
    lds_wait(C_F, 4)
    a("v_lshrrev_b32 v13, 4, v0\nv_lshlrev_b32 v14, 9, v13\nv_bfe_u32 v12, v0, 1, 3\nv_lshl_add_u32 v14, v12, 5, v14\nv_and_b32 v12, 1, v0\nv_lshl_add_u32 v14, v12, 3, v14")
    a(f"s_and_b32 s7, s3, 1\ns_lshl_b32 s4, s7, 4\ns_add_u32 s4, s4, {L_SF}\nv_add_u32 v14, s4, v14")
    for kb in range(16):
        a(f"ds_read_b64_tr_b16 v[{64+4*kb}:{65+4*kb}], v14 offset:{kb*2048}\nds_read_b64_tr_b16 v[{66+4*kb}:{67+4*kb}], v14 offset:{kb*2048+256}")
        if kb % 4 == 3: a("s_waitcnt lgkmcnt(0)")
    a("v_and_b32 v15, 3, v0\nv_lshlrev_b32 v15, 10, v15\nv_bfe_u32 v16, v0, 2, 2\nv_lshl_add_u32 v15, v16, 6, v15\nv_lshl_add_u32 v15, v13, 4, v15")
    a(f"s_mul_i32 s4, {sXc}, 14\ns_add_u32 s4, s4, {sXr}\ns_sub_u32 s4, s4, 8\ns_lshl_b32 s4, s4, 1\ns_add_u32 s4, s4, s7\ns_lshl_b32 s4, s4, {6+afull}\ns_add_u32 s4, s4, {WS_ACT}")
    if ax4: a("v_and_b32 v16, 3, v0\nv_lshl_add_u32 v16, v16, 4, s4\nv_bfe_u32 v17, v0, 4, 1\nv_lshl_add_u32 v16, v17, 6, v16")
    else: a("v_and_b32 v16, 3, v0\nv_lshl_add_u32 v16, v16, 4, s4\nv_bfe_u32 v17, v0, 4, 1\nv_lshl_add_u32 v16, v17, 3, v16\nv_lshrrev_b32 v17, 5, v0\nv_lshl_add_u32 v16, v17, 6, v16")
    stamp(7)
    a("s_mov_b32 s5, 0x3d372713\ns_mov_b32 s6, 0xc0135761\ns_waitcnt lgkmcnt(0)")
    a("s_barrier")
    for i in range(4): a(f"ds_read_b128 {vr(20+4*i)}, v15 offset:{L_H2+i*256}")
    for i in range(4):
        a(f"s_waitcnt lgkmcnt({3-i})")
        for k in range(4):
            d = vr(36 + 4 * k)
            a(f"v_mfma_f32_16x16x32_bf16 {d}, {vr(64+4*(4*i+k))}, {vr(20+4*i)}, {'0' if i == 0 else d}")
    for k in (1, 2, 3):
        for r in range(4): a(f"v_add_f32_dpp v{36+r}, v{36+4*k+r}, v{36+r} row_shl:{4*k} row_mask:0xf bank_mask:0xf")
    for r in range(4): a(f"v_mov_b32 v{40+r}, v{36+r}")
    for r in range(4): a(f"v_permlane32_swap_b32 v{36+r}, v{40+r}")
    for r in range(4): a(f"v_mul_f32 v{44+r}, v{36+r}, v{36+r}")
    for r in range(4): a(f"v_fma_f32 v{44+r}, v{44+r}, s5, 1.0")
    for r in range(4): a(f"v_mul_f32 v{44+r}, v{44+r}, v{36+r}")
    for r in range(4): a(f"v_mul_f32 v{44+r}, s6, v{44+r}")
    for r in range(4): a(f"v_exp_f32 v{44+r}, v{44+r}")
    for r in range(4): a(f"v_add_f32 v{44+r}, 1.0, v{44+r}")
    for r in range(4): a(f"v_rcp_f32 v{44+r}, v{44+r}")
    for r in range(4): a(f"v_mul_f32 v{36+r}, v{36+r}, v{44+r}")
    for r in range(4): a(f"v_mul_f32 v{36+r}, v{36+r}, v{40+r}")
    a("v_cvt_pk_bf16_f32 v52, v36, v37\nv_cvt_pk_bf16_f32 v53, v38, v39\nv_min_u32 v52, -2, v52\nv_min_u32 v53, -2, v53")
    if ax4:
        a("v_mov_b32 v54, v52\nv_mov_b32 v55, v53\nv_permlane16_swap_b32 v52, v54\nv_permlane16_swap_b32 v53, v55")
        exec_set(0x000f000f if afull else 0xf, 0)
        a(f"global_store_dwordx4 v16, v[52:55], {pWS} sc1")
    else:
        exec_set(0x000f000f, 0x000f000f if afull else 0)
        a(f"global_store_dwordx2 v16, v[52:53], {pWS} sc1")
    stamp(6)
    stamps_out(range(8))
    a("s_endpgm")

    def down_dma():
        a(f"s_lshl_b32 s4, {sXc}, 2\ns_add_u32 s4, s4, {sXr}\ns_sub_u32 s4, s4, 28\ns_lshl_b32 s4, s4, 5\ns_mul_i32 s5, s3, {7*32*1024}\ns_add_u32 s4, s4, s5")
        a(f"v_lshrrev_b32 v14, 1, v0\nv_lshlrev_b32 v14, 10, v14\nv_and_b32 v13, 1, v0\nv_lshlrev_b32 v13, 4, v13\nv_add3_u32 v14, v14, v13, s4\ns_mul_i32 s6, s3, {7*1024}")
        a(f"s_add_u32 s6, s6, {L_SF}\ns_and_b32 s7, {sXr}, {3 if rot else 0}\ns_lshl_b32 s7, s7, 1")
        for kb in range(7):
            a(f"s_lshl_b32 s5, s7, 10\ns_add_u32 m0, s6, s5\ns_lshl_b32 s5, s7, 15\nv_add_u32 v13, s5, v14\nglobal_load_lds_dwordx4 v13, {pWD}")
            if kb < 6: a("s_add_u32 s7, s7, 1\ns_cmp_eq_u32 s7, 7\ns_cselect_b32 s7, 0, s7")
    a("L_down_s:")
    down_dma()
    a("v_and_b32 v12, 15, v0\nv_lshrrev_b32 v13, 4, v0\nv_lshlrev_b32 v14, 8, v13\nv_lshl_add_u32 v14, v12, 3, v14")
    a(f"s_mul_i32 s4, s3, {7*1024}\ns_add_u32 s4, s4, {L_SF}\nv_add_u32 v14, s4, v14")
    a(f"s_mul_i32 s4, s3, 7\nv_bfe_u32 v15, v0, 2, 2\nv_add_u32 v15, s4, v15\nv_add_u32 v16, 4, v15\nv_min_u32 v16, 55, v16")
    a(f"v_and_b32 v17, 3, v0\nv_lshlrev_b32 v18, 4, v17\nv_lshl_add_u32 v18, v13, 6, v18")
    a(f"ds_read_b128 v[60:63], v18 offset:{L_G}\nv_add_u32 v18, {WS_ACT}, v18")
    if afull: a(f"v_lshl_add_u32 v18, v13, 6, v18\ns_and_b32 s4, {sXr}, 1\ns_lshl_b32 s4, s4, 6\nv_add_u32 v18, s4, v18")
    a(f"v_lshl_add_u32 v15, v15, {8+afull}, v18\nv_lshl_add_u32 v16, v16, {8+afull}, v18")
    a(f"s_lshl_b32 s5, {sXc}, 2\ns_add_u32 s5, s5, {sXr}\ns_sub_u32 s5, s5, 28")
    a("s_lshl_b32 s6, s5, 5\nv_lshl_add_u32 v19, v17, 10, s6\nv_lshl_add_u32 v19, v13, 3, v19")
    a(f"s_and_b32 s6, {sXc}, {xrep-1}\ns_lshl_b32 s6, s6, 13\ns_add_u32 s6, s6, {WS_X1}\nv_lshl_add_u32 v56, v19, 1, s6")
    for k in range(4): a(f"v_mov_b32 v{32+k}, {sTag[k]}")
    def act_loads():
        L = a.label("Lal")
        a(f"s_cmp_lg_u32 s3, 0\ns_cbranch_scc1 {L}\nglobal_load_dwordx4 v[32:35], v56, {pWS} sc1\n{L}:")
        a(f"global_load_dwordx4 v[20:23], v15, {pWS} sc1\nglobal_load_dwordx4 v[24:27], v16, {pWS} sc1")
    def act_check():
        a("s_waitcnt vmcnt(0)")
        tree("v_max_u32", "v_max3_u32", "v57", vl(20, 8))
        for k in range(4): a(f"v_xor_b32 v{28+k}, {sTag[k]}, v{32+k}")
        a("v_cmp_eq_u32 s[6:7], -1, v57\nv_or3_b32 v58, v28, v29, v30\nv_or_b32 v58, v58, v31\nv_and_b32 v58, 0xff, v58\nv_cmp_ne_u32 vcc, 0, v58\ns_or_b64 vcc, vcc, s[6:7]")
    if afirst:
        act_loads()
        a("s_waitcnt vmcnt(3)")
        a("s_cmp_eq_u32 s3, 0\ns_cbranch_scc1 L_dw0\ns_waitcnt vmcnt(2)\nL_dw0:")
    else: a("s_waitcnt vmcnt(0)")
    for kb in range(7):
        a(f"ds_read_b64_tr_b16 v[{64+4*kb}:{65+4*kb}], v14 offset:{kb*1024}\nds_read_b64_tr_b16 v[{66+4*kb}:{67+4*kb}], v14 offset:{kb*1024+128}")
    stamp(9)
    if afirst:
        act_check()
        a("s_cbranch_scc0 L_gotact")
    if a2stage:
        m = sum(1 << (64 // aany * i) for i in range(aany))
        a(f"s_mov_b32 s6, {hex(m & 0xffffffff)}\ns_mov_b32 s7, {hex(m >> 32)}\ns_and_b32 s4, s2, {16 // aany - 1}\ns_lshl_b32 s4, s4, 2\ns_lshl_b64 exec, s[6:7], s4")
        if aflag:
            a(f"s_mul_i32 s4, s3, 14\ns_lshr_b32 s5, s2, 2\ns_and_b32 s5, s5, 7\ns_add_u32 s4, s4, s5\ns_lshl_b32 s4, s4, 7\ns_add_u32 s4, s4, {WS_AF}\nv_mov_b32 v58, s4")
            poll([("v58", 0)], 20, "v57", sleep=asleep)
            if fdel: a(f"s_sleep {fdel}")
        else: poll([("v15", 0)], 20, "v57", tagged=False, sleep=asleep, any_=True)
        exec_all()
    stamp(10)
    a(f"s_mov_b32 {sTO}, {TO}\nL_actp:")
    act_loads()
    act_check()
    a(f"s_cbranch_scc0 L_gotact\ns_sub_u32 {sTO}, {sTO}, 1\ns_cbranch_scc0 L_actp\nL_gotact:")
    if stamps: a(f"s_mov_b32 s92, {sTO}")
    stamp(6)
    a("s_waitcnt lgkmcnt(0)")
    for kb in range(7):
        d = vr(36 + 4 * (kb & 3))
        a(f"v_mfma_f32_16x16x32_bf16 {d}, {vr(64+4*kb)}, {vr(20+4*(kb>>2))}, {'0' if kb < 4 else d}")
    a(f"s_lshl_b32 s4, s3, 10\nv_lshl_add_u32 v12, v0, 4, s4")
    for k in (3, 1, 2):
        for r in range(4): a(f"v_add_f32_dpp v{36+r}, v{36+4*k+r}, v{36+r} row_shl:{4*k} row_mask:0xf bank_mask:0xf")
    a(f"ds_write_b128 v12, v[36:39] offset:{L_PM}")
    a("s_waitcnt lgkmcnt(0)\ns_barrier")
    a("s_cmp_eq_u32 s3, 4\ns_cbranch_scc1 L_epoch")
    a("s_cmp_lg_u32 s3, 0\ns_cbranch_scc1 L_fin_d")
    for w in range(1, 8): a(f"ds_read_b128 {vr(64+4*w)}, v12 offset:{L_PM+w*1024}")
    a("s_waitcnt lgkmcnt(0)")
    pkadd(64, 36, 68, 4)
    for w in (2, 4, 6): pkadd(64 + 4 * w, 64 + 4 * w, 68 + 4 * w, 4)
    for w in (0, 4): pkadd(64 + 4 * w, 64 + 4 * w, 72 + 4 * w, 4)
    pkadd(64, 64, 80, 4)
    for i in range(4): a(f"v_fma_f32 v{64+i}, v{60+i}, v{64+i}, v{28+i}")
    a("v_cvt_pk_bf16_f32 v68, v64, v65\nv_cvt_pk_bf16_f32 v69, v66, v67")
    exec_set(0x000f000f, 0x000f000f)
    a(f"global_store_dwordx2 v19, v[68:69], {pOUT} {opol}")
    stamp(7)
    a("L_fin_d:")
    stamps_out(range(12))
    a("s_endpgm")
    a("L_epoch:")
    a("s_cmp_lg_u32 s2, 224\ns_cbranch_scc1 L_fin_d")
    a(f"v_mov_b32 v12, {WS_EP}\nv_mov_b32 v13, {sT}\ns_mov_b64 exec, 1\nglobal_store_dword v12, v13, {pWS} {opol}")
    a("s_branch L_fin_d")

    a("L_helper:")
    vJ, vG, vY, vFF = "v1", "v2", "v7", "v3"
    a(f"v_and_b32 {vJ}, 15, v0\nv_lshrrev_b32 {vG}, 4, v0\nv_mov_b32 {vFF}, 0xff")
    a(f"s_lshl_b32 s10, {sW}, 12")
    if tmap:
        a(f"s_and_b32 s9, {sXc}, 3\ns_xor_b32 s9, s9, {sXr}")
        a("s_cmp_ge_u32 s2, 128\ns_cbranch_scc1 L_t1")
        a("s_and_b32 s12, s2, 3\ns_lshr_b32 s4, s2, 2\ns_lshr_b32 s5, s4, 1\ns_lshl_b32 s5, s5, 2\ns_and_b32 s6, s4, 1\ns_add_u32 s5, s5, s6")
        a("s_lshl_b32 s11, s4, 2\ns_sub_u32 s11, s11, 78\ns_cmp_lt_u32 s4, 24\ns_cselect_b32 s11, s5, s11\ns_branch L_t2")
        a(f"L_t1:\ns_and_b32 s12, {sPair}, 3\ns_and_b32 s4, {sPair}, 60\ns_add_u32 s5, s4, 3\ns_sub_u32 s11, s4, 46\ns_cmp_lt_u32 s4, 48\ns_cselect_b32 s11, s5, s11")
        a("s_bitcmp1_b32 s9, 0\ns_cselect_b32 s11, 48, s11\nL_t2:")
    else:
        a(f"s_lshr_b32 s11, s2, 2\ns_and_b32 s12, s2, 3\ns_mov_b32 s9, {sXr}")
    a(f"s_lshl_b32 s13, s12, 7\ns_lshl_b32 s4, {sW}, 5\ns_add_u32 s13, s13, s4")
    a("v_lshrrev_b32 v14, 3, v0\nv_add_u32 v14, s13, v14\nv_mul_u32_u24 v14, 6144, v14\nv_and_b32 v15, 7, v0\nv_lshlrev_b32 v15, 4, v15")
    a("s_lshl_b32 s4, s11, 7\nv_add3_u32 v14, v14, v15, s4")
    a(f"v_and_b32 v15, 3, v0\nv_lshlrev_b32 v15, 10, v15\nv_lshl_add_u32 v15, {vG}, 4, v15\ns_lshl_b32 s4, s13, 1\nv_add_u32 v15, s4, v15")
    a(f"s_lshl_b32 s4, {sXc}, 6\ns_lshl_b32 s5, {sW}, 4\ns_add_u32 s4, s4, s5\ns_lshl_b32 s4, s4, 13\ns_lshl_b32 s5, s9, 8\ns_add_u32 s4, s4, s5")
    a(f"v_lshl_add_u32 v16, {vG}, 13, s4\nv_lshl_add_u32 v16, {vJ}, 4, v16")
    a(f"s_lshl_b32 s4, {sW}, 10\nv_lshl_add_u32 v17, v0, 4, s4")
    a("s_waitcnt lgkmcnt(0)")
    stamp(0)
    a(f"s_load_dword {sT}, {pWS}, {WS_EP}")
    def dma(n, voff, ptr, stride, ldsbase_s, ldsoff):
        for i in range(n):
            a(f"s_add_u32 m0, {ldsbase_s}, {ldsoff + i*1024}")
            a(f"global_load_lds_dwordx4 v{voff}, {ptr} nt")
            if i + 1 < n: a(f"v_add_u32 v{voff}, {stride}, v{voff}")
    a("s_cmp_ge_u32 s11, 48\ns_cbranch_scc1 L_nomod1")
    a(f"global_load_dwordx4 v[20:23], v15, {pC}")
    dma(4, 14, pWM, 8 * 6144, "s10", L_SA)
    a("L_nomod1:")
    a(f"global_load_dwordx4 v[24:27], v17, {pX}")
    dma(4, 16, pWQ, 4 * 8192, "s10", L_SB)
    a("s_barrier")
    a("s_waitcnt lgkmcnt(0)")
    make_tags()
    a("s_cmp_ge_u32 s11, 48\ns_cbranch_scc1 L_nomod2")
    a("s_waitcnt vmcnt(9)")
    stamp(11)
    unpack(28, 20, 4)
    for i in range(8): a(f"v_mul_f32 v{36+i}, {hex(LOG2E | 0x80000000)}, v{28+i}")
    for i in range(8): a(f"v_exp_f32 v{36+i}, v{36+i}")
    for i in range(8): a(f"v_add_f32 v{36+i}, 1.0, v{36+i}")
    for i in range(8): a(f"v_rcp_f32 v{44+i}, v{36+i}")
    for i in range(8): a(f"v_mul_f32 v{52+i}, v{28+i}, v{44+i}")
    for i in range(8): a(f"v_fma_f32 v{28+i}, -v{52+i}, v{36+i}, v{28+i}")
    for i in range(8): a(f"v_fma_f32 v{28+i}, v{28+i}, v{44+i}, v{52+i}")
    for i in range(8): a(f"v_cmp_u_f32 vcc, v{28+i}, v{28+i}\nv_cndmask_b32 v{28+i}, v{28+i}, v{52+i}, vcc")
    for i in range(4): a(f"v_cvt_pk_bf16_f32 v{20+i}, v{28+2*i}, v{29+2*i}")
    a(f"v_lshlrev_b32 v14, 10, {vG}\nv_bfe_u32 v15, v0, 2, 2\nv_lshl_add_u32 v14, v15, 7, v14\nv_and_b32 v15, 3, v0\nv_lshl_add_u32 v14, v15, 3, v14\nv_add_u32 v14, s10, v14")
    a("s_waitcnt vmcnt(5)")
    stamp(1)
    for cs in range(4):
        a(f"ds_read_b64_tr_b16 v[{64+4*cs}:{65+4*cs}], v14 offset:{L_SA+cs*32}\nds_read_b64_tr_b16 v[{66+4*cs}:{67+4*cs}], v14 offset:{L_SA+cs*32+512}")
    for cs in range(4):
        a(f"s_waitcnt lgkmcnt({6-2*cs})")
        a(f"v_mfma_f32_16x16x32_bf16 {vr(36+4*cs)}, {vr(64+4*cs)}, v[20:23], 0")
    for cs in (1, 2, 3):
        for r in range(4): a(f"v_mov_b32_dpp v{36+r}, v{36+4*cs+r} quad_perm:[0,1,2,3] row_mask:0xf bank_mask:{hex(1<<cs)}")
    a(f"s_lshl_b32 s4, {sW}, 10\nv_lshl_add_u32 v12, v0, 4, s4\nds_write_b128 v12, v[36:39] offset:{L_PM}")
    a(f"v_mov_b32 v12, {L_CNT}\nv_mov_b32 v13, 1\ns_waitcnt lgkmcnt(0)\ns_mov_b64 exec, 1")
    a(f"ds_add_rtn_u32 v13, v12, v13 offset:{C_MOD}\ns_waitcnt lgkmcnt(0)\nv_readfirstlane_b32 s4, v13")
    exec_all()
    a(f"s_cmp_lg_u32 s4, 3\ns_cbranch_scc1 L_nomod2")
    a("v_lshlrev_b32 v12, 4, v0")
    for w in range(4): a(f"ds_read_b128 {vr(36+4*w)}, v12 offset:{L_PM+w*1024}")
    a("s_cmp_lt_u32 s11, 16\ns_cbranch_scc1 L_modp")
    a(f"s_sub_u32 s4, s11, 16\ns_lshr_b32 s5, s4, 3\ns_lshl_b32 s5, s5, 15\ns_and_b32 s4, s4, 7\ns_lshl_b32 s4, s4, 8\ns_add_u32 s4, s4, s5")
    a(f"s_lshl_b32 s5, s12, 13\ns_add_u32 s4, s4, s5\ns_add_u32 s4, s4, {WS_MODN}")
    a(f"v_and_b32 v12, 3, v0\nv_lshl_add_u32 v12, v12, 11, s4\nv_bfe_u32 v13, v0, 2, 2\nv_lshl_add_u32 v12, v13, 6, v12\nv_lshl_add_u32 v12, {vG}, 4, v12")
    a("s_branch L_modst")
    a("L_modp:")
    a(f"s_and_b32 s4, s11, 7\ns_lshl_b32 s4, s4, 13\ns_lshl_b32 s5, s12, 11\ns_add_u32 s4, s4, s5\ns_lshr_b32 s5, s11, 3\ns_lshl_b32 s5, s5, 7\ns_add_u32 s4, s4, s5\ns_add_u32 s4, s4, {WS_MODP}")
    a("v_and_b32 v12, 3, v0\nv_lshl_add_u32 v12, v12, 4, s4\nv_bfe_u32 v13, v0, 4, 1\nv_lshl_add_u32 v12, v13, 10, v12")
    a("v_bfe_u32 v13, v0, 2, 1\nv_lshl_add_u32 v12, v13, 9, v12\nv_lshrrev_b32 v13, 5, v0\nv_lshl_add_u32 v12, v13, 8, v12\nv_bfe_u32 v13, v0, 3, 1\nv_lshl_add_u32 v12, v13, 6, v12")
    a("L_modst:")
    a("s_waitcnt lgkmcnt(0)")
    pkadd(36, 36, 44, 8); pkadd(36, 36, 40, 4)
    tag(36, 1, vFF, rnd)
    a(f"global_store_dwordx4 v12, v[36:39], {pWS} sc1")
    stamp(2)
    a("s_waitcnt vmcnt(1)\ns_branch L_ln")
    a("L_nomod2:")
    a("s_waitcnt vmcnt(0)")
    a("L_ln:")
    unpack(28, 24, 4)
    a("v_add_f32 v36, v28, v29\nv_add_f32 v37, v30, v31\nv_add_f32 v38, v32, v33\nv_add_f32 v39, v34, v35\nv_add_f32 v36, v36, v37\nv_add_f32 v38, v38, v39\nv_add_f32 v36, v36, v38")
    wave_reduce("v_add_f32", ["v36"], ["v37"])
    a("v_mul_f32 v36, 0x3b000000, v36")
    for i in range(8): a(f"v_sub_f32 v{40+i}, v{28+i}, v36")
    a("v_mul_f32 v37, v40, v40")
    for i in range(1, 8): a(f"v_fmac_f32 v37, v{40+i}, v{40+i}")
    wave_reduce("v_add_f32", ["v37"], ["v38"])
    a("v_mul_f32 v37, 0x3b000000, v37")
    rnd2("v36", "v37", "v38")
    a("v_add_f32 v37, 0x3727c5ac, v37\nv_cvt_pk_bf16_f32 v37, v37, v37\nv_and_b32 v37, 0xffff0000, v37\nv_sqrt_f32 v37, v37")
    a("v_cvt_pk_bf16_f32 v37, v37, v37\nv_and_b32 v37, 0xffff0000, v37\nv_rcp_f32 v38, v37")
    for i in range(8): a(f"v_sub_f32 v{28+i}, v{28+i}, v36")
    rndn(28, 8, 48)
    for i in range(8): a(f"v_mul_f32 v{40+i}, v{28+i}, v38")
    for i in range(8): a(f"v_fma_f32 v{28+i}, -v{40+i}, v37, v{28+i}")
    for i in range(8): a(f"v_fma_f32 v{40+i}, v{28+i}, v38, v{40+i}")
    rndn(40, 8, 48)
    a(f"s_lshl_b32 s4, {sW}, 8\nv_and_b32 v12, 7, v0\nv_lshl_add_u32 v12, v12, 5, s4\ns_lshl_b32 s4, {sXc}, 3\ns_lshl_b64 exec, 0xff, s4")
    a(f"ds_write_b128 v12, v[40:43] offset:{L_N}\nds_write_b128 v12, v[44:47] offset:{L_N+16}")
    lds_inc(C_N)
    a(f"s_cmp_lg_u32 {sW}, 0\ns_cbranch_scc1 L_noq")
    lds_wait(C_N, 4)
    a(f"v_lshlrev_b32 v14, 11, {vG}\nv_bfe_u32 v15, v0, 2, 2\nv_lshl_add_u32 v14, v15, 8, v14\nv_and_b32 v15, 3, v0\nv_lshl_add_u32 v14, v15, 3, v14\nv_add_u32 v14, {L_SB}, v14")
    for cb in range(8):
        for kb in range(2):
            r = 128 + 4 * (2 * cb + kb)
            a(f"ds_read_b64_tr_b16 v[{r}:{r+1}], v14 offset:{kb*8192+cb*32}\nds_read_b64_tr_b16 v[{r+2}:{r+3}], v14 offset:{kb*8192+cb*32+1024}")
        if cb & 1: a("s_waitcnt lgkmcnt(0)")
    a(f"v_lshlrev_b32 v15, 8, v15\nv_bfe_u32 v13, v0, 2, 1\nv_lshl_add_u32 v15, v13, 7, v15\nv_lshl_add_u32 v15, {vG}, 5, v15")
    a(f"ds_read_b128 v[28:31], v15 offset:{L_N}\nds_read_b128 v[32:35], v15 offset:{L_N+16}")
    a(f"s_lshl_b32 s4, {sXc}, 13\ns_add_u32 s4, s4, {WS_MODP + 4096}\nv_lshl_add_u32 v14, v0, 4, s4")
    a(f"s_lshl_b32 s4, s9, 14\ns_lshl_b32 s5, {sXc}, 9\ns_add_u32 s4, s4, s5\ns_add_u32 s4, s4, {WS_QP}")
    a(f"v_and_b32 v16, 3, v0\nv_lshl_add_u32 v16, v16, 12, s4\nv_bfe_u32 v13, v0, 2, 2\nv_lshl_add_u32 v16, v13, 6, v16\nv_lshl_add_u32 v16, {vG}, 4, v16")
    a(f"s_lshl_b32 s4, {sH}, 14\ns_lshl_b32 s5, {sB}, 12\ns_add_u32 s4, s4, s5\ns_add_u32 s4, s4, {WS_QP}\nv_lshl_add_u32 v17, v0, 4, s4")
    a("v_mov_b32 v18, 1.0")
    stamp(3)
    if F1: lds_wait(C_FP, 1, sleep=2)
    poll([("v14", i * 1024 - 4096) for i in range(8)], 64, "v15", sleep=ps)
    stamp(4)
    pkadd(64, 64, 80, 16); pkadd(64, 64, 72, 8)
    rndn(64, 8, 72)
    for i in range(8): a(f"v_add_f32_dpp v{76+i}, v{64+i}, v18 row_ror:8 row_mask:0xf bank_mask:0xf")
    rndn(76, 8, 72)
    a("s_waitcnt lgkmcnt(0)")
    for i in range(8): a(f"v_mul_f32 v{76+i}, v{28+i}, v{76+i}")
    rndn(76, 8, 72)
    for i in range(8): a(f"v_add_f32 v{76+i}, v{76+i}, v{64+i}")
    for i in range(4): a(f"v_cvt_pk_bf16_f32 v{20+i}, v{76+2*i}, v{77+2*i}")
    for i in range(4): a(f"v_mov_b32_dpp v{20+i}, v{20+i} row_ror:8 row_mask:0xf bank_mask:0xc")
    for i in range(4): a(f"v_mov_b32 v{24+i}, v{20+i}")
    for i in range(4): a(f"v_mov_b32_dpp v{24+i}, v{20+i} row_ror:4 row_mask:0xf bank_mask:0x5")
    for i in range(4): a(f"v_mov_b32_dpp v{20+i}, v{20+i} row_ror:4 row_mask:0xf bank_mask:0xa")
    for kb in range(2):
        for cb in range(8):
            d = vr(64 + 4 * cb)
            a(f"v_mfma_f32_16x16x32_bf16 {d}, {vr(128+4*(2*cb+kb))}, {vr(20+4*kb)}, {'0' if kb == 0 else d}")
    for s_ in range(2):
        for u in (1, 2, 3):
            for r in range(4): a(f"v_mov_b32_dpp v{64+16*s_+r}, v{64+16*s_+4*u+r} quad_perm:[0,1,2,3] row_mask:0xf bank_mask:{hex(1<<u)}")
        tag(64 + 16 * s_, 1, vFF, rnd)
        a(f"global_store_dwordx4 v16, {vr(64+16*s_)}, {pWS} offset:{256*s_} {qpol}")
    stamp(12)
    if F2: lds_wait(C_FP, 2, sleep=2)
    poll([("v17", i * 1024) for i in range(4)], 96, "v15", sleep=ps)
    pkadd(96, 96, 104, 8); pkadd(96, 96, 100, 4)
    for r in range(4): a(f"v_mov_b32 v{100+r}, v{96+r}")
    for r in range(4): a(f"v_permlane32_swap_b32 v{96+r}, v{100+r}")
    pkadd(96, 96, 100, 4)
    a("v_cvt_pk_bf16_f32 v100, v96, v97\nv_cvt_pk_bf16_f32 v101, v98, v99")
    a(f"v_and_b32 v12, 31, v0\nv_lshlrev_b32 v12, 3, v12\nds_write_b64 v12, v[100:101] offset:{L_QB}\nv_mov_b32 v12, {L_CNT}\nv_mov_b32 v13, 1")
    a(f"ds_write_b32 v12, v13 offset:{C_Q}")
    a("L_noq:")
    stamp(5)
    lds_wait(C_XT, 4, sleep=4)
    a(f"s_cmp_eq_u32 {sW}, 2\ns_cbranch_scc1 L_w6")
    a(f"s_cmp_lg_u32 {sW}, 1\ns_cbranch_scc1 L_bg")
    a(f"s_cmp_lg_u32 {sSide}, 0\ns_cbranch_scc1 L_now")
    a(f"s_lshl_b32 s4, {sPair}, 7\ns_add_u32 s4, s4, {WS_W}\nv_mov_b32 v12, s4\nv_mov_b32 v13, 0")
    a(f"s_mov_b64 exec, 1\nglobal_store_dword v12, v13, {pWS} sc1")
    a("L_now:")
    a("s_branch L_bg")
    a("L_w6:")
    a("s_cmp_ge_u32 s2, 224\ns_cbranch_scc1 L_w6d")
    a("s_cmp_ge_u32 s2, 64\ns_cbranch_scc1 L_bg")
    a(f"s_lshl_b32 s4, s2, 9\ns_add_u32 s4, s4, {WS_ACT}\nv_lshl_add_u32 v12, v0, 3, s4\nv_mov_b32 v14, -1\nv_mov_b32 v15, -1\nglobal_store_dwordx2 v12, v[14:15], {pWS} sc1")
    a(f"v_and_b32 v12, 7, v0\nv_lshlrev_b32 v12, 4, v12\ns_lshl_b32 s4, s2, 7\nv_add_u32 v13, s4, v12")
    a(f"v_lshrrev_b32 v16, 1, v13\nglobal_load_dwordx2 v[36:37], v16, {pX}")
    a(f"v_bfe_u32 v14, v0, 3, 2\nv_lshl_add_u32 v14, v14, 13, v13\nv_add_u32 v14, {WS_MODN}, v14")
    a(f"v_lshrrev_b32 v17, 5, v0\nv_lshl_add_u32 v16, v17, 15, v14\nv_add_u32 v16, 32768, v16")
    poll([("v16", 0), ("v14", 0)], 20, "v15", sleep=8)
    ror("v_add_f32", vl(20, 8), 8)
    swap_add("v_permlane16_swap_b32", "v_add_f32", vl(20, 8), vl(28, 8))
    rndn(20, 8, 28)
    a("v_cvt_f32_u32 v18, v17")
    for i in range(4): a(f"v_add_f32 v{20+i}, v18, v{20+i}")
    rndn(20, 4, 28)
    unpack(32, 36, 2)
    a(f"ds_write_b128 v12, v[24:27] offset:{L_G}\nds_write_b128 v12, v[32:35] offset:{L_G+128}")
    for k in range(4): a(f"v_or_b32 v{20+k}, {sTag[k]}, v{20+k}")
    a(f"v_lshl_add_u32 v13, v17, 13, v13\nv_add_u32 v13, {WS_MODF}, v13")
    exec_set(0xff, 0xff)
    a(f"global_store_dwordx4 v13, v[20:23], {pWS} sc1")
    a("s_branch L_bg")
    a("L_w6d:")
    a(f"s_lshl_b32 s5, {sXc}, 2\ns_add_u32 s5, s5, {sXr}\ns_sub_u32 s5, s5, 28\ns_lshl_b32 s5, s5, 6\ns_add_u32 s5, s5, {WS_MODN + 3*32768}")
    a(f"v_lshl_add_u32 v14, {vJ}, 11, s5\nv_lshl_add_u32 v14, {vG}, 4, v14")
    poll([("v14", 0)], 20, "v15", sleep=8)
    ror("v_add_f32", vl(20, 4), 8); ror("v_add_f32", vl(20, 4), 4)
    rndn(20, 4, 28)
    a(f"v_and_b32 v12, 3, v0\nv_lshlrev_b32 v12, 4, v12\nv_lshl_add_u32 v12, {vG}, 6, v12\nds_write_b128 v12, v[20:23] offset:{L_G}")
    a("L_bg:")
    exec_all()
    a(f"s_lshl_b32 s4, {sH}, 17\ns_add_u32 s44, {lo(pWO)}, s4\ns_addc_u32 s45, {hi(pWO)}, 0\ns_mov_b32 s46, 0x20000\ns_mov_b32 s47, 0x20000")
    a(f"v_lshlrev_b32 v18, 15, {vG}\nv_lshl_add_u32 v18, {vJ}, 4, v18\ns_xor_b32 s13, {sH}, {sSide if wside else 0}\ns_and_b32 s13, s13, 1\ns_lshl_b32 s13, s13, 9")
    a("s_min_u32 s6, s2, 223")
    touch_addr("v14", "s6")
    a(f"s_lshl_b32 s11, {sH}, 1\ns_xor_b32 s11, s11, {sW}")
    for ph in range(2):
        L = a.label("Lbg")
        a(f"s_mov_b32 s12, 0\n{L}:")
        for k in range(BGD):
            a(f"s_xor_b32 s5, s12, s11\ns_lshl_b32 s6, s5, 10\ns_add_u32 m0, s6, {L_SF}")
            a("s_lshr_b32 s6, s5, 1\ns_lshl_b32 s6, s6, 10\ns_and_b32 s7, s5, 1\ns_lshl_b32 s7, s7, 8\ns_add_u32 s6, s6, s7\ns_add_u32 s6, s6, s13")
            a("s_and_b32 s7, s5, 6\ns_lshl_b32 s7, s7, 4\ns_and_b32 s5, s5, 16\ns_lshl_b32 s5, s5, 3\ns_or_b32 s5, s5, s7\nv_xor_b32 v19, s5, v18")
            a(f"buffer_load_dwordx4 v19, s[44:47], s6 offen {wpol} lds\ns_add_u32 s12, s12, 4")
        a(f"s_waitcnt vmcnt(0)\ns_cmp_lt_u32 s12, 64\ns_cbranch_scc1 {L}")
        lds_inc(C_BG)
        if ph == 0:
            for k, p in enumerate((pWD, pWG, pWU)):
                if (pref >> k) & 1:
                    Lk = a.label("Lpf")
                    a(f"s_cmp_lg_u32 {sW}, {k}\ns_cbranch_scc1 {Lk}\nglobal_load_dword v15, v14, {p}\n{Lk}:")
            lds_wait(C_BG, 4, sleep=4)
            wo_frags()
            lds_inc(C_BG)
            lds_wait(C_BG, 8, sleep=2)
            a("s_xor_b32 s13, s13, 512")
    if tlbw:
        a(f"s_cmp_lg_u32 {sW}, 3\ns_cbranch_scc1 L_notlb\nv_lshlrev_b32 v12, 16, v0\ns_mov_b64 exec, 0xfffffff")
        for k, p in enumerate((pWD, pWG, pWU)): a(f"global_load_dword v{20+k}, v12, {p}")
        a(f"s_mov_b64 exec, 1\nglobal_load_dword v23, v12, {pOUT}\ns_waitcnt vmcnt(0)")
        exec_all()
        a("L_notlb:")
    if latemf: lds_wait(C_KD, 4, sleep=8)
    a("s_cmp_ge_u32 s2, 176\ns_cbranch_scc1 L_nomf\ns_cmp_lt_u32 s2, 64\ns_cbranch_scc1 L_nomf")
    a(f"s_lshl_b32 s4, {sW}, 11\ns_add_u32 s4, s4, {WS_MODF}\nv_lshl_add_u32 v12, v0, 4, s4\nv_add_u32 v13, 8192, v12")
    poll([("v12", 0), ("v12", 1024), ("v13", 0), ("v13", 1024)], 104, "v15", sleep=8, first_plain=True)
    a("L_nomf:")
    a(f"s_cmp_lt_u32 s2, 224\ns_cbranch_scc1 L_nomf2\ns_cmp_lg_u32 {sW}, 2\ns_cbranch_scc1 L_nomf2")
    a(f"v_lshlrev_b32 v12, 7, v0\nv_add_u32 v12, {WS_MODF}, v12")
    poll([("v12", 0)], 104, "v15", sleep=8, first_plain=True)
    a("L_nomf2:")
    stamp(13)
    a(f"s_cmp_lg_u32 {sW}, 1\ns_cbranch_scc1 L_noclaim")
    GW = (64 - 4 * S) * 4
    NL = GW // 16
    assert NL % 2 == 0 and NL <= 8
    MAGIC = -(-65536 // GW)
    assert all((q * MAGIC) >> 16 == q // GW for q in range(4 * GW))
    lds_wait(C_KD, 4, sleep=8)
    a(f"s_mov_b32 s6, {4*S*64}\ns_cmp_eq_u32 {sSide}, 0\ns_cselect_b32 s4, s6, 4096\ns_cselect_b32 s5, 4096, s6")
    a(f"s_sub_u32 s7, s5, s4\ns_add_u32 s4, s4, {L_SC}")
    XB = 28; XM = XB + 4 * NL; XP = XM + 4; XA = XP + 2 * NL
    assert XA + NL <= 96
    for i in range(NL):
        a(f"v_add_u32 v13, {64*i}, v0\nv_mul_u32_u24 v14, {MAGIC}, v13\nv_lshrrev_b32 v14, 16, v14\nv_mul_u32_u24 v14, {8192 - 16*GW}, v14")
        a(f"v_lshl_add_u32 v14, v13, 4, v14\nv_add_u32 v{XA+i}, s4, v14\nds_read_b128 {vr(XB+4*i)}, v{XA+i}")
    a("v_and_b32 v20, 3, v0\nv_lshlrev_b32 v21, 3, v20")
    a(f"ds_read_b64 v[{XM}:{XM+1}], v21 offset:{L_CNT+C_ML}\nds_read_b64 v[{XM+2}:{XM+3}], v21 offset:{L_CNT+C_ML}")
    a(f"s_lshl_b32 s4, {sCh}, 12\ns_add_u32 s4, s4, {WS_XS}\nv_lshl_add_u32 v16, v0, 4, s4\nv_xor_b32 v17, 0x1000, v16")
    a(f"s_lshl_b32 s4, {sCh}, 7\ns_add_u32 s4, s4, {WS_XM}\nv_and_b32 v18, 7, v0\nv_lshl_add_u32 v18, v18, 4, s4\nv_xor_b32 v19, 0x80, v18")
    a("s_mov_b32 s4, 0x07060302\ns_waitcnt lgkmcnt(0)")
    for i in range(NL): a(f"v_add_u32 v{XA+i}, s7, v{XA+i}")
    for i in range(2 * NL): a(f"v_perm_b32 v{XP+i}, v{XB+2*i+1}, v{XB+2*i}, s4")
    for i in range(NL // 2): a(f"global_store_dwordx4 v16, {vr(XP+4*i)}, {pWS} offset:{i*1024} {xspol}")
    tag(XM, 1, vFF)
    a(f"s_waitcnt vmcnt(0)\ns_mov_b64 exec, 0xff\nglobal_store_dwordx4 v18, {vr(XM)}, {pWS} sc1")
    exec_all()
    a(f"v_and_b32 v24, 0xffffff00, v{XM}\nv_and_b32 v25, 0xffffff00, v{XM+1}")
    lds_wait(C_PROG, 4 * S - TH - PRE, sleep=8)
    poll([("v19", 0)], XM, "v15", sleep=16)
    for i in range(NL // 2): a(f"global_load_dwordx4 {vr(XP+4*i)}, v17, {pWS} offset:{i*1024} sc1")
    a("s_waitcnt vmcnt(0)")
    unpack(XB, XP, 2 * NL)
    for i in range(NL): a(f"ds_write_b128 v{XA+i}, {vr(XB+4*i)}")
    a(f"v_mov_b32_dpp v24, v{XM} quad_perm:[0,1,2,3] row_mask:0xf bank_mask:0xa\nv_mov_b32_dpp v25, v{XM+1} quad_perm:[0,1,2,3] row_mask:0xf bank_mask:0xa")
    a("v_mov_b32 v22, v24")
    for sh in (4, 2, 1): ror("v_max_f32", ["v22"], sh)
    a(f"v_sub_f32 v24, v24, v22\nv_mul_f32 v24, {hex(LOG2E)}, v24\nv_exp_f32 v24, v24\nv_mul_f32 v25, v25, v24")
    for sh in (4, 2, 1): ror("v_add_f32", ["v25"], sh)
    a(f"v_log_f32 v25, v25\nv_mov_b32 v24, v22\nv_sub_f32 v25, 0, v25")
    lds_wait(C_BG, 12, sleep=4)
    a(f"s_mov_b64 exec, 1\nds_write_b64 v12, v[24:25] offset:{C_REF}")
    NDYN = 128 - 8 * S
    a(f"s_lshl_b32 s4, {sPair}, 7\ns_add_u32 s4, s4, {WS_W}\nv_mov_b32 v18, s4\ns_add_u32 s48, {lo(pWS)}, s4\ns_addc_u32 s49, {hi(pWS)}, 0\ns_mov_b32 s12, 0\ns_mov_b32 s13, {0 if peek else KMAX}\ns_mov_b32 s11, {TH + peek}")
    a(f"L_claim:\nds_read_b128 v[20:23], v12 offset:{C_PROG}\ns_waitcnt lgkmcnt(0)")
    a("v_max3_u32 v20, v20, v21, v22\nv_max_u32 v20, v20, v23\nv_readfirstlane_b32 s4, v20")
    a(f"s_add_u32 s4, s4, s11\ns_add_u32 s5, s12, {4*S}\ns_cmp_ge_u32 s4, s5\ns_cbranch_scc1 L_doclaim\ns_sleep {csleep}\ns_branch L_claim")
    if satom: a(f"L_doclaim:\ns_mov_b32 s4, s13\ns_atomic_add s4, s[48:49], 0 glc\ns_waitcnt lgkmcnt(0)")
    else: a(f"L_doclaim:\nv_mov_b32 v19, s13\nglobal_atomic_add v19, v18, v19, {pWS} sc0 sc1\ns_waitcnt vmcnt(0)\nv_readfirstlane_b32 s4, v19")
    a(f"s_lshl_b32 s6, s12, 1\ns_add_u32 s6, s6, {MARG}\ns_cmp_lt_u32 s6, s4\ns_cselect_b32 s11, {THS}, {TH}\ns_cselect_b32 s6, {KSS}, {KSH}")
    a(f"s_sub_i32 s4, {NDYN}, s4\ns_max_i32 s5, s4, 0\ns_min_i32 s5, s5, s13\ns_add_u32 s12, s12, s5\ns_sub_i32 s4, s4, s13")
    a(f"s_cmp_gt_i32 s4, 0\ns_cselect_b32 s5, 0, 0x10000\ns_or_b32 s5, s5, s12\nv_mov_b32 v19, s5\nds_write_b32 v12, v19 offset:{C_LIM}")
    a(f"s_lshr_b32 s13, s4, s6\ns_min_u32 s13, s13, {KMAX}\ns_max_u32 s13, s13, 1")
    a("s_cmp_gt_i32 s4, 0\ns_cbranch_scc1 L_claim")
    a(f"s_add_u32 s12, s12, {4*S-EX}")
    a(f"L_near:\nds_read_b128 v[20:23], v12 offset:{C_PROG}\ns_waitcnt lgkmcnt(0)")
    a("v_min3_u32 v20, v20, v21, v22\nv_min_u32 v20, v20, v23\nv_readfirstlane_b32 s4, v20")
    a(f"s_cmp_ge_u32 s4, s12\ns_cbranch_scc1 L_near2\ns_sleep 1\ns_branch L_near")
    a(f"L_near2:\nv_mov_b32 v19, 1\nds_write_b32 v12, v19 offset:{C_END}")
    exec_all()
    a("L_noclaim:")
    a(f"s_and_b32 s4, {sXc}, {xrep-1}\ns_lshl_b32 s4, s4, 13\ns_lshl_b32 s5, {sW}, 11\ns_add_u32 s4, s4, s5\ns_add_u32 s4, s4, {WS_X1}\nv_lshl_add_u32 v23, v0, 4, s4")
    a(f"s_lshl_b32 s5, {sW}, 10\nv_lshl_add_u32 v24, v0, 3, s5")
    stamp(6)
    a(f"s_mul_i32 s4, {sXc}, 14\ns_add_u32 s4, s4, {sXr}\ns_sub_u32 s4, s4, 8\ns_lshl_b32 s4, s4, 5\ns_mul_i32 s5, {sW}, {128*3584}\ns_add_u32 s4, s4, s5")
    a(f"v_lshrrev_b32 v18, 2, v0\nv_mul_u32_u24 v14, 3584, v18\nv_and_b32 v19, 1, v0\nv_lshl_add_u32 v14, v19, 4, v14\nv_add_u32 v14, s4, v14")
    a(f"v_mov_b32 v16, {lo(pWG)}\nv_mov_b32 v17, {hi(pWG)}\nv_mov_b32 v12, {lo(pWU)}\nv_mov_b32 v13, {hi(pWU)}\nv_and_b32 v19, 2, v0\nv_cmp_eq_u32 vcc, 2, v19")
    a("v_cndmask_b32 v16, v16, v12, vcc\nv_cndmask_b32 v17, v17, v13, vcc\nv_add_co_u32 v16, vcc, v16, v14\nv_addc_co_u32 v17, vcc, 0, v17, vcc")
    a("s_waitcnt vmcnt(0)")
    if touch:
        a(f"s_mul_i32 s4, s2, 7168\ns_mul_i32 s5, {sW}, 1792\ns_add_u32 s4, s4, s5\nv_min_u32 v14, 13, v0\nv_lshl_add_u32 v14, v14, 7, s4")
        lds_wait(C_END, 1, sleep=2)
        a(f"global_load_dword v18, v14, {pWG}\nglobal_load_dword v19, v14, {pWU}")
    a("s_waitcnt lgkmcnt(0)\ns_barrier")
    stamp(7)
    y_product()
    stamp(8)
    a("s_cmp_ge_u32 s2, 224\ns_cbranch_scc1 L_down_s")
    a(f"s_cmp_ge_u32 s2, 176\ns_cbranch_scc1 L_idle_s\ns_cmp_lt_u32 s2, 64\ns_cbranch_scc1 {'L_idle_s' if post2 else 'L_fin_h'}")
    a(f"s_lshl_b32 s4, {sW}, 13\ns_add_u32 s4, s4, {L_SF}")
    a(f"s_mul_i32 s7, {sXc}, 14\ns_add_u32 s7, s7, {sXr}\ns_and_b32 s7, s7, {3 if rot else 0}\ns_lshl_b32 s7, s7, 1")
    for i in range(8):
        a(f"s_xor_b32 s5, s7, {i}\ns_mul_i32 s6, s5, {16*3584}\ns_lshl_b32 s5, s5, 10\ns_add_u32 m0, s4, s5")
        a(f"v_add_co_u32 v18, vcc, s6, v16\nv_addc_co_u32 v19, vcc, 0, v17, vcc\nglobal_load_lds_dwordx4 v[18:19], off")
    a("s_waitcnt vmcnt(0)")
    lds_inc(C_F)
    if x2stage:
        m = sum(1 << (64 // xany * i) for i in range(xany))
        a(f"s_mov_b32 s6, {hex(m & 0xffffffff)}\ns_mov_b32 s7, {hex(m >> 32)}\ns_and_b32 s4, {sXr}, {8 // xany - 1}\ns_lshl_b32 s4, s4, 3\ns_lshl_b64 exec, s[6:7], s4")
        poll([("v23", 0)], 40, "v15", sleep=xsleep, any_=True)
        exec_all()
        poll([("v23", 0), ("v23", 1024)], 40, "v15")
    else:
        ppoll([("v23", 0), ("v23", 1024)], 40, 128, "v15", sleep=xsleep)
    stamp(9)
    if ln1:
        a("v_pk_mul_f32 v[50:51], v[40:41], v[40:41]\nv_pk_add_f32 v[48:49], v[40:41], v[42:43]\nv_pk_fma_f32 v[50:51], v[42:43], v[42:43], v[50:51]\nv_pk_add_f32 v[52:53], v[44:45], v[46:47]")
        a("v_pk_fma_f32 v[50:51], v[44:45], v[44:45], v[50:51]\nv_pk_add_f32 v[48:49], v[48:49], v[52:53]\nv_pk_fma_f32 v[50:51], v[46:47], v[46:47], v[50:51]")
        a("v_add_f32 v36, v48, v49\nv_add_f32 v37, v50, v51")
        wave_reduce("v_add_f32", ["v36", "v37"], ["v38", "v39"])
        a("v_mul_f32 v36, 0xbb000000, v36\nv_mul_f32 v37, 0x3b000000, v37\nv_fma_f32 v38, -v36, v36, v37\nv_mov_b32 v37, v36\nv_max_f32 v38, 0, v38\nv_add_f32 v38, 0x3727c5ac, v38\nv_rsq_f32 v38, v38")
        for i in range(0, 8, 2): a(f"v_pk_add_f32 v[{40+i}:{41+i}], v[{40+i}:{41+i}], v[36:37]")
        a("v_mov_b32 v39, v38")
        for i in range(0, 8, 2): a(f"v_pk_mul_f32 v[{40+i}:{41+i}], v[{40+i}:{41+i}], v[{112+i}:{113+i}]")
        for i in range(0, 8, 2): a(f"v_pk_fma_f32 v[{40+i}:{41+i}], v[{40+i}:{41+i}], v[38:39], v[{104+i}:{105+i}]")
    else:
        a("v_add_f32 v36, v40, v41\nv_add_f32 v38, v42, v43\nv_add_f32 v39, v44, v45\nv_add_f32 v48, v46, v47")
        a("v_add_f32 v36, v36, v38\nv_add_f32 v39, v39, v48\nv_add_f32 v36, v36, v39")
        wave_reduce("v_add_f32", ["v36"], ["v38"])
        a("v_mul_f32 v36, 0x3b000000, v36")
        for i in range(8): a(f"v_sub_f32 v{40+i}, v{40+i}, v36")
        a("v_mul_f32 v37, v40, v40\nv_mul_f32 v38, v41, v41")
        for i in range(2, 8): a(f"v_fmac_f32 v{37+(i&1)}, v{40+i}, v{40+i}")
        a("v_add_f32 v37, v37, v38")
        for i in range(8): a(f"v_mul_f32 v{40+i}, v{40+i}, v{112+i}")
        wave_reduce("v_add_f32", ["v37"], ["v38"])
        a("v_mov_b32 v38, 0x3727c5ac\nv_fmac_f32 v38, 0x3b000000, v37\nv_rsq_f32 v38, v38")
        for i in range(8): a(f"v_fma_f32 v{40+i}, v{40+i}, v38, v{104+i}")
    for i in range(4): a(f"v_cvt_pk_bf16_f32 v{28+i}, v{40+2*i}, v{41+2*i}")
    a(f"ds_write_b64 v24, v[28:29] offset:{L_H2}\nds_write_b64 v24, v[30:31] offset:{L_H2+512}")
    if aflag:
        for k in range(4): a(f"v_mov_b32 v{32+k}, {sTag[k]}")
        a(f"s_sub_u32 s4, s2, 64\ns_lshl_b32 s4, s4, 7\ns_add_u32 s4, s4, {WS_AF}\nv_lshl_add_u32 v12, v0, 4, s4\ns_mov_b64 exec, 0xff")
    a("s_waitcnt lgkmcnt(0)\ns_barrier")
    if aflag:
        a(f"s_cmp_lg_u32 {sW}, 0\ns_cbranch_scc1 L_noaf\nglobal_store_dwordx4 v12, v[32:35], {pWS} sc1\nL_noaf:")
    stamp(10)
    a("L_fin_h:")
    stamps_out(range(14))
    a("L_end:\ns_endpgm")
    body, nops = a.finalize()
    tail = f""".section .rodata,"a"
.p2align 6
.amdhsa_kernel {KN}
  .amdhsa_next_free_vgpr 256
  .amdhsa_next_free_sgpr 102
  .amdhsa_accum_offset 256
  .amdhsa_group_segment_fixed_size 0
  .amdhsa_kernarg_size 112
  .amdhsa_user_sgpr_count 2
  .amdhsa_user_sgpr_kernarg_segment_ptr 1
  .amdhsa_system_sgpr_workgroup_id_x 1
  .amdhsa_float_denorm_mode_32 3
.end_amdhsa_kernel
"""
    body = body.replace("    ; @launch", "; @launch", 1)
    return body + tail

if __name__ == "__main__":
    kw = eval("dict(" + (sys.argv[2] if len(sys.argv) > 2 else "") + ")")
    open(sys.argv[1], "w").write(gen(**kw))
```
